```python
import torch

def _softmax(x, axis=-1):
    return torch.softmax(x, dim=axis)
def _gelu(x):
    return torch.nn.functional.gelu(x, approximate="tanh")
def _silu(x):
    return torch.nn.functional.silu(x)
def _sigmoid(x):
    return torch.sigmoid(x)
def _layernorm(x, axis=-1, eps=1e-5):
    m = x.mean(dim=axis, keepdim=True)
    v = x.var(dim=axis, keepdim=True, unbiased=False)
    return (x - m) / torch.sqrt(v + eps)
def _scatter_add(tgt, idx, src, axis=0):
    return tgt.clone().index_add_(axis, idx, src)
def _segment_sum(src, seg, n):
    out = torch.zeros((n,) + src.shape[1:], dtype=src.dtype)
    return out.index_add_(0, seg, src)
def _pad(x, pw):
    flat = tuple(v for pair in reversed(pw) for v in pair)
    return torch.nn.functional.pad(x, flat)

kernel_name = 'gated_mix__gqa_block_cached__dense_activation_silu__decode'

def setup_inputs():

    _w = (lambda a: (lambda t: t.to(torch.bfloat16) if t.is_floating_point() else t)(torch.as_tensor(a)))
    def _A_setup():
        B, Sq, D = 2, 1, 448
        Hq, Hkv, Sk, Dh = 16, 8, 32768, 256
        assert Hq % Hkv == 0, (Hq, Hkv)
        return {
            "x": _w((lambda *s: torch.randn(*s, dtype=torch.bfloat16) * 0.05)(B, Sq, D)),
            "k_cache": _w((lambda *s: torch.randn(*s, dtype=torch.bfloat16) * 6.4)(B, Hkv, Sk, Dh)),
            "v_cache": _w((lambda *s: torch.randn(*s, dtype=torch.bfloat16) * 0.8)(B, Hkv, Sk, Dh)),
            "wq": _w((lambda *s: torch.randn(*s, dtype=torch.bfloat16) * 6.4)(D, Hq * Dh) * (D ** -0.5)),
            "wo": _w((lambda *s: torch.randn(*s, dtype=torch.bfloat16) * 0.8)(Hq * Dh, D) * ((Hq * Dh) ** -0.5)),
        }
    _A_in = _A_setup()

    def _B_setup():
        B, S, D, F = 2, 1, 448, 1792
        return {
            "x": _w((lambda *s: torch.randn(*s, dtype=torch.bfloat16) * 0.05)(B, S, D)),
            "w1": _w((lambda *s: torch.randn(*s, dtype=torch.bfloat16) * 12.8)(D, F) * (D ** -0.5)),
            "w2": _w((lambda *s: torch.randn(*s, dtype=torch.bfloat16) * 0.2)(F, D) * (F ** -0.5)),
        }
    _B_in = _B_setup()

    return {
        "A_x": _A_in["x"],
        "A_k_cache": _A_in["k_cache"],
        "A_v_cache": _A_in["v_cache"],
        "A_wq": _A_in["wq"],
        "A_wo": _A_in["wo"],
        "B_x": _B_in["x"],
        "B_w1": _B_in["w1"],
        "B_w2": _B_in["w2"],
        "gate_w": _w((lambda *s: torch.randn(*s, dtype=torch.bfloat16) * 0.2)(448) * 16.0),
    }

def reference(A_x, A_k_cache, A_v_cache, A_wq, A_wo, B_x, B_w1, B_w2, gate_w):
    def _A_ref(x, k_cache, v_cache, wq, wo):
        B, Sq, D = x.shape
        Hq, Dh = 16, 256
        Hkv = k_cache.shape[1]
        rep = Hq // Hkv
        q = (lambda x, *d: x.permute(*d))((x @ wq).reshape(B, Sq, Hq, Dh), 0, 2, 1, 3)
        k = (lambda x, n, axis: torch.repeat_interleave(x, n, dim=axis))(k_cache, rep, axis=1)
        v = (lambda x, n, axis: torch.repeat_interleave(x, n, dim=axis))(v_cache, rep, axis=1)
        scores = torch.einsum("bhqd,bhkd->bhqk", q, k) * (Dh ** -0.5)
        p = _softmax(scores, axis=-1)
        o = torch.einsum("bhqk,bhkd->bhqd", p, v)
        return (lambda x, *d: x.permute(*d))(o, 0, 2, 1, 3).reshape(B, Sq, Hq * Dh) @ wo

    def _B_ref(x, w1, w2):
        h = torch.einsum("bsd,df->bsf", x, w1)
        h = _silu(h)
        out = torch.einsum("bsf,fd->bsd", h, w2)
        return out

    x = A_x
    g = _sigmoid((x * gate_w).sum(-1, keepdims=True))
    a = _A_ref(x, A_k_cache, A_v_cache, A_wq, A_wo)
    b = _B_ref(x, B_w1, B_w2)
    return g * a + (1 - g) * b
```

```python
import sys, struct, argparse

NAME = 'gated_mix__gqa_block_cached__dense_activation_silu__decode'

RING = 0
SLOT = 32768
STG = 131072
XS = STG + 14336
GS = XS + 2048
QS = GS + 1024
FL = QS + 1024
LDS_BYTES = FL + 512

QG = 0x10000
REC = 0x100000
YB = 0x200000
YROW = 7168
WS_BYTES = 0x400000
STAMP = 0x400000

def f32(x):
    return '0x%08x' % struct.unpack('<I', struct.pack('<f', x))[0]

LOG2E = 1.4426950408889634
DPPM = 'row_mask:0xf bank_mask:0xf'


class G:
    def __init__(self, o):
        self.L = []
        self.o = o
        self.uid = 0

    def A(self, s):
        self.L.append('    ' + s)

    def lab(self, s):
        self.L.append(s + ':')

    def new(self, p):
        self.uid += 1
        return f'.L{p}_{self.uid}'

    def srd(self, d, ptr, nbytes):
        A = self.A
        A(f's_mov_b32 s{d}, s{ptr}')
        A(f's_mov_b32 s{d+1}, s{ptr+1}')
        A(f's_mov_b32 s{d+2}, {nbytes:#x}')
        A(f's_mov_b32 s{d+3}, 0x20000')

    def stamp(self, k):
        if self.o.diag:
            self.A(f's_memrealtime s[{86+2*k}:{87+2*k}]')
            self.A('s_waitcnt lgkmcnt(0)')


def q(b, n=4):
    return f'v[{b}:{b+n-1}]'


def gen(o):
    g = G(o)
    A = g.A
    W = o.window
    K = NAME + '_kernel'
    pX, pK, pV, pWQ, pWO, pW1, pW2, pG, pOUT, pWS = 36, 38, 40, 42, 44, 48, 50, 52, 54, 58

    g.L.append(f'.globl {K}\n.p2align 8\n.type {K},@function\n{K}:')
    A('s_cmp_ge_u32 s2, 256')
    A('s_cbranch_scc1 .Lexit')
    A('s_load_dwordx16 s[36:51], s[0:1], 0')
    A('s_load_dwordx8 s[52:59], s[0:1], 64')
    A('v_lshrrev_b32 v1, 6, v0')
    A('v_lshlrev_b32 v8, 2, v0')
    A('v_readfirstlane_b32 s3, v1')
    A(f'v_add_u32 v8, {FL}, v8')
    A('v_mov_b32 v14, 0')
    A('ds_write_b32 v8, v14')
    A('v_and_b32 v1, 63, v0')
    A('s_cmp_lg_u32 s3, 0')
    A('s_cbranch_scc1 .Lcons')

    gs, U, sh = o.gs, o.unit, o.idxsh
    lg = gs.bit_length() - 1
    A(f's_lshr_b32 s17, s2, {sh}')
    A(f's_and_b32 s17, s17, {gs-1}')
    A(f's_lshr_b32 s18, s2, {sh+lg}')
    A(f's_lshl_b32 s18, s18, {sh}')
    A(f's_and_b32 s19, s2, {(1<<sh)-1}')
    A('s_or_b32 s18, s18, s19')
    A(f's_lshl_b32 s16, s18, {20+lg}')
    A(f's_mul_i32 s17, s17, {U*4096}')
    A('s_add_u32 s16, s16, s17')
    A('v_lshrrev_b32 v3, 5, v1')
    A('v_and_b32 v5, 31, v1')
    A('v_lshlrev_b32 v4, 1, v3')
    A('v_xor_b32 v5, v5, v4')
    A('v_lshlrev_b32 v5, 4, v5')
    A('v_lshl_add_u32 v20, v3, 9, v5')
    for i in range(1, 4):
        A(f'v_xor_b32 v{20+i}, {i*64}, v20')
    A(f'v_mov_b32 v7, {FL+256}')
    A('v_mov_b32 v15, 0')
    j0 = (W - 1) % 16
    lag = (W - 1) // 16 + 1
    A(f's_mov_b32 s22, {-lag}')
    A('s_mov_b32 s20, -3')
    A(f's_mov_b32 s25, {1<<22}')
    A('s_waitcnt lgkmcnt(0)')
    g.srd(8, pK, 0x10000000)
    g.srd(12, pV, 0x10000000)
    if o.diag:
        g.srd(28, pWS, STAMP + 0x10000)
    A('s_barrier')
    g.L.append('.p2align 6')
    g.lab('.Lload')
    for tt in range(4):
        ok = g.new('lok')
        sp = g.new('lspin')
        A('s_waitcnt lgkmcnt(0)')
        A('v_readfirstlane_b32 s24, v15')
        A('s_cmp_ge_i32 s24, s20')
        A(f's_cbranch_scc1 {ok}')
        g.lab(sp)
        A('ds_read_b32 v15, v7')
        A('s_waitcnt lgkmcnt(0)')
        A('v_readfirstlane_b32 s24, v15')
        A('s_cmp_ge_i32 s24, s20')
        A(f's_cbranch_scc1 {ok}')
        A('s_sleep 1')
        A('s_sub_u32 s25, s25, 1')
        A(f's_cbranch_scc0 {sp}')
        A('s_mov_b32 s25, 0')
        g.lab(ok)
        A('s_add_u32 s20, s20, 1')
        for half in (0, 1):
            for j in range(16):
                if j % 4 == 0:
                    k = tt * 4 + j // 4
                    A(f's_mov_b32 m0, {RING + tt*SLOT + half*16384 + j*1024:#x}')
                    A(f's_add_u32 s23, s16, {((k//U)*gs*U + k % U)*4096:#x}')
                A(f's_waitcnt vmcnt({W-1})')
                A(f'buffer_load_dwordx4 v{20+(j&3)}, s[{8+4*half}:{11+4*half}], s23 offen offset:{(j&3)*1024} nt lds')
                if j == j0:
                    A('s_add_u32 s22, s22, 1')
                    A('v_mov_b32 v14, s22')
                    A('ds_write_b32 v8, v14')
                if half == 1 and j == 12:
                    A('ds_read_b32 v15, v7')
    A(f's_add_u32 s16, s16, {16384*gs*4:#x}')
    A('s_cmp_lt_i32 s20, 61')
    A('s_cbranch_scc1 .Lload')
    for hc in range(128 - lag + 1, 129):
        A(f's_waitcnt vmcnt({16*(128-hc)})')
        A(f'v_mov_b32 v14, {hc}')
        A('ds_write_b32 v8, v14')
    if o.diag:
        A('s_memrealtime s[86:87]')
        A('s_waitcnt lgkmcnt(0)')
        A('v_mov_b32 v16, s86')
        A('v_mov_b32 v17, s87')
        A('v_mov_b32 v18, 0')
        A('s_lshl_b32 s17, s2, 7')
        A(f's_add_u32 s17, s17, {STAMP+64:#x}')
        A('s_mov_b64 exec, 1')
        A('buffer_store_dwordx2 v[16:17], v18, s[28:31], s17 offen')
    A('s_endpgm')

    sX, sWQ, sWS, sWO, sW1, sW2, sG, sOUT = 8, 12, 16, 20, 24, 28, 32, 60
    TAG, LNDA, CONA, KA0, VA0, M, NM, LS = 6, 7, 8, 9, 10, 11, 12, 13
    KAC, VAC, O, S, T, P8 = 16, 20, 28, 36, 44, 48
    KV, QF, PV, FP, G0, TL = 64, 128, 160, 192, 206, 208
    sT, sSLOT, sLND, sC, sNEED, sBUD = 81, 82, 83, 84, 85, 80
    g.L.append('.p2align 6')
    g.lab('.Lcons')
    A('v_and_b32 v2, 15, v1')
    A('v_lshrrev_b32 v3, 4, v1')
    A('v_bfe_u32 v4, v1, 2, 2')
    A('v_and_b32 v5, 3, v1')
    A('v_lshlrev_b32 v56, 4, v1')
    A('v_lshrrev_b32 v57, 1, v1')
    A('v_and_b32 v58, 1, v1')
    A('v_lshlrev_b32 v57, 13, v57')
    A('v_lshl_add_u32 v57, v58, 4, v57')
    A('v_mov_b32 v59, 0')
    A('s_and_b32 s4, s2, 7')
    A('s_lshl_b32 s4, s4, 5')
    A('s_lshr_b32 s5, s2, 3')
    A('s_add_u32 s4, s4, s5')
    A('s_lshl_b32 s5, s4, 5')
    A('s_waitcnt lgkmcnt(0)')
    g.srd(sWS, pWS, WS_BYTES + (0x10000 if o.diag else 0))
    g.srd(sX, pX, 1792)
    g.srd(sWQ, pWQ, 448 * 8192)
    A('s_barrier')
    g.stamp(0)
    A(f'buffer_load_dword v{TAG}, v59, s[{sWS}:{sWS+3}], 0 offen')
    A(f's_mov_b32 m0, {XS}')
    A('s_nop 0')
    A(f'buffer_load_dwordx4 v56, s[{sX}:{sX+3}], 0 offen lds')
    A(f'buffer_load_dwordx4 v56, s[{sX}:{sX+3}], 0 offen offset:1024 lds')
    for t in range(14):
        A(f's_mov_b32 m0, {STG + t*1024}')
        A(f's_add_u32 s6, s5, {t*262144:#x}')
        A(f'buffer_load_dwordx4 v57, s[{sWQ}:{sWQ+3}], s6 offen {o.wqflags} lds')
    g.srd(sWO, pWO, 4096 * 896)
    g.srd(sW1, pW1, 448 * 3584)
    g.srd(sW2, pW2, 1792 * 896)
    g.srd(sG, pG, 896)
    g.srd(sOUT, pOUT, 1792)
    A('v_and_b32 v58, 1, v2')
    A('v_mul_u32_u24 v60, 896, v58')
    A('v_lshl_add_u32 v60, v3, 4, v60')
    A(f'v_add_u32 v60, {XS}, v60')
    A('v_lshl_add_u32 v61, v3, 3, v4')
    A('v_lshlrev_b32 v61, 5, v61')
    A('v_lshl_add_u32 v61, v5, 3, v61')
    A(f'v_add_u32 v61, {STG}, v61')
    A('v_lshlrev_b32 v62, 14, v58')
    A('v_lshl_add_u32 v62, v3, 4, v62')
    A('v_and_b32 v14, 7, v2')
    A('v_lshlrev_b32 v14, 1, v14')
    A('v_xor_b32 v14, v14, v3')
    A('v_lshlrev_b32 v14, 4, v14')
    A(f'v_lshl_add_u32 v{KA0}, v2, 9, v14')
    A('v_lshl_add_u32 v14, v3, 2, v4')
    A('v_and_b32 v15, 7, v14')
    A('v_lshlrev_b32 v15, 5, v15')
    A('v_lshl_add_u32 v15, v5, 3, v15')
    A(f'v_lshl_add_u32 v{VA0}, v14, 9, v15')
    A(f'v_mov_b32 v{LNDA}, {FL}')
    for v in range(8):
        qq, u = v >> 1, v & 1
        m16 = (1 << (4*qq+u)) | (1 << (4*qq+u+2))
        m32 = m16 | (m16 << 16)
        A(f's_mov_b32 s{64+2*v}, {m32:#x}')
        A(f's_mov_b32 s{65+2*v}, {m32:#x}')
    A(f's_mov_b32 s{sC}, {f32(0.0625*LOG2E)}')
    A(f's_mov_b32 s{sBUD}, {1<<22}')
    A(f's_mov_b32 s{sLND}, 0')
    A(f's_mov_b32 s{sT}, 0')
    A(f's_mov_b32 s{sSLOT}, 0')
    A('s_mov_b32 s7, 1664525')
    A('s_lshl_b32 s5, s4, 6')
    A(f's_add_u32 s5, s5, {QG:#x}')
    A('s_lshr_b32 s6, s2, 4')
    A('s_lshl_b32 s6, s6, 11')
    A(f's_add_u32 s6, s6, {QG:#x}')
    XF, AF = 64, 128
    A('s_waitcnt vmcnt(14)')
    A(f'v_mul_lo_u32 v{TAG}, v{TAG}, s7')
    for t in range(14):
        A(f'ds_read_b128 {q(XF+4*t)}, v60 offset:{t*64}')
    A(f'v_add_u32 v{TAG}, 1013904223, v{TAG}')
    def qm(t):
        A(f'v_mfma_f32_16x16x32_bf16 {q(S)}, {q(AF+4*t)}, {q(XF+4*t)}, {"0" if t==0 else q(S)}')
    for t in range(14):
        A(f's_waitcnt vmcnt({13-t})')
        A(f'ds_read_b64_tr_b16 {q(AF+4*t,2)}, v61 offset:{t*1024}')
        A(f'ds_read_b64_tr_b16 {q(AF+4*t+2,2)}, v61 offset:{t*1024+128}')
        if t >= 2:
            A('s_waitcnt lgkmcnt(4)')
            qm(t-2)
    A('s_waitcnt lgkmcnt(2)')
    qm(12)
    A('s_waitcnt lgkmcnt(0)')
    qm(13)
    A(f'v_mov_b32 v{T+2}, v{TAG}')
    A(f'v_mov_b32 v{T+3}, v{TAG}')
    A('s_mov_b32 exec_lo, 0x00030003')
    A('s_mov_b32 exec_hi, 0x00030003')
    A('s_nop 4')
    A(f'v_cvt_pk_bf16_f32 v{T}, v{S}, v{S+1}')
    A(f'v_cvt_pk_bf16_f32 v{T+1}, v{S+2}, v{S+3}')
    A(f'buffer_store_dwordx4 {q(T)}, v62, s[{sWS}:{sWS+3}], s5 offen {o.stflags}')
    A('s_mov_b64 exec, -1')
    g.stamp(1)
    for i in range(8):
        A(f'v_mov_b32 v{O+i}, 0')
    for i in range(32):
        A(f'v_mov_b32 v{PV+i}, 0')
    A(f'v_mov_b32 v{M}, 0xff7fffff')
    A(f'v_mov_b32 v{NM}, 0xff7fffff')
    A(f'v_mov_b32 v{LS}, 0')
    A('v_lshlrev_b32 v57, 3, v1')
    A(f'v_add_u32 v57, {QS}, v57')
    A('v_bfe_u32 v58, v2, 1, 1')
    A('v_lshlrev_b32 v58, 9, v58')
    A('v_lshl_add_u32 v58, v3, 4, v58')
    A(f'v_add_u32 v58, {QS}, v58')
    g.lab('.Lqpoll')
    A(f'buffer_load_dwordx4 {q(KV)}, v56, s[{sWS}:{sWS+3}], s6 offen {o.ldflags}')
    A(f'buffer_load_dwordx4 {q(KV+4)}, v56, s[{sWS}:{sWS+3}], s6 offen offset:1024 {o.ldflags}')
    A('s_waitcnt vmcnt(0)')
    A(f'v_xor_b32 v14, v{KV+2}, v{TAG}')
    A(f'v_xor_b32 v15, v{KV+6}, v{TAG}')
    A('v_or_b32 v14, v14, v15')
    A('v_cmp_ne_u32 vcc, 0, v14')
    A('s_cbranch_vccz .Lqok')
    A(f's_sub_u32 s{sBUD}, s{sBUD}, 64')
    A('s_cbranch_scc0 .Lqpoll')
    A(f's_mov_b32 s{sBUD}, 0')
    g.lab('.Lqok')
    A(f'ds_write_b64 v57, {q(KV,2)}')
    A(f'ds_write_b64 v57, {q(KV+4,2)} offset:512')
    A('s_waitcnt lgkmcnt(0)')
    for j in range(8):
        A(f'ds_read_b128 {q(QF+4*j)}, v58 offset:{j*64}')
    g.stamp(2)

    def poll_landed():
        d = g.new('pd')
        sp = g.new('ps')
        A(f's_cmp_ge_i32 s{sLND}, s{sNEED}')
        A(f's_cbranch_scc1 {d}')
        g.lab(sp)
        A(f'ds_read_b32 v14, v{LNDA}')
        A('s_waitcnt lgkmcnt(0)')
        A(f'v_readfirstlane_b32 s{sLND}, v14')
        A(f's_cmp_ge_i32 s{sLND}, s{sNEED}')
        A(f's_cbranch_scc1 {d}')
        A('s_sleep 1')
        A(f's_sub_u32 s{sBUD}, s{sBUD}, 1')
        A(f's_cbranch_scc0 {sp}')
        A(f's_mov_b32 s{sBUD}, 0')
        g.lab(d)

    A(f's_mov_b32 s{sNEED}, 1')
    g.L.append('.p2align 6')
    g.lab('.Ltile')
    A(f'v_add_u32 v{KAC}, s{sSLOT}, v{KA0}')
    A(f'v_add_u32 v{VAC}, s{sSLOT}, v{VA0}')
    for i in range(1, 4):
        A(f'v_xor_b32 v{KAC+i}, {i*64}, v{KAC}')
    for i in range(1, 8):
        A(f'v_xor_b32 v{VAC+i}, {i*32}, v{VAC}')
    poll_landed()
    for i in range(16):
        j, hh = i >> 1, i & 1
        A(f'ds_read_b128 {q(KV+4*i)}, v{KAC+(j&3)} offset:{hh*8192+(j>>2)*256}')
    for i in range(16):
        j, hh = i >> 1, i & 1
        A(f's_waitcnt lgkmcnt({15-i})')
        A(f'v_mfma_f32_16x16x32_bf16 {q(S+4*hh)}, {q(KV+4*i)}, {q(QF+4*j)}, {"0" if j==0 else q(S+4*hh)}')
    A(f's_add_u32 s{sNEED}, s{sNEED}, 1')
    A('s_nop 6')
    for i in range(4):
        A(f'v_cvt_pk_bf16_f32 v{T+i}, v{S+2*i}, v{S+2*i+1}')
    for i in range(4):
        A(f'v_lshlrev_b32 v{S+2*i}, 16, v{T+i}')
        A(f'v_and_b32 v{S+2*i+1}, 0xffff0000, v{T+i}')
    A(f'v_max3_f32 v14, v{S}, v{S+1}, v{S+2}')
    A(f'v_max3_f32 v15, v{S+3}, v{S+4}, v{S+5}')
    A(f'v_max3_f32 v14, v14, v{S+6}, v{S+7}')
    A(f'v_max3_f32 v14, v14, v15, v{M}')
    A('v_mov_b32 v15, v14')
    A('s_nop 1')
    A('v_permlane16_swap_b32 v14, v15')
    A('v_max_f32 v14, v14, v15')
    A('v_mov_b32 v15, v14')
    A('s_nop 1')
    A('v_permlane32_swap_b32 v14, v15')
    A(f'v_max_f32 v{M}, v14, v15')
    A(f'v_mul_f32 v14, s{sC}, v{M}')
    A(f'v_sub_f32 v15, v{NM}, v14')
    A(f'v_mov_b32 v{NM}, v14')
    A('v_exp_f32 v15, v15')
    for i in range(8):
        A(f'v_fma_f32 v{P8+i}, v{S+i}, s{sC}, -v{NM}')
    for i in range(8):
        A(f'v_exp_f32 v{P8+i}, v{P8+i}')
    for a in range(2):
        for r in range(4):
            hq = 2 * (r >> 1)
            A(f'v_mul_f32_dpp v{O+4*a+r}, v15, v{O+4*a+r} quad_perm:[{hq},{hq},{hq},{hq}] {DPPM}')
    for i in range(4):
        A(f'v_cvt_pk_bf16_f32 v{T+i}, v{P8+2*i}, v{P8+2*i+1}')
    A(f'v_fma_f32 v{LS}, v{LS}, v15, v{P8}')
    A(f'v_add_f32 v{P8+1}, v{P8+1}, v{P8+2}')
    A(f'v_add_f32 v{P8+3}, v{P8+3}, v{P8+4}')
    A(f'v_add_f32 v{P8+5}, v{P8+5}, v{P8+6}')
    A(f'v_add_f32 v{LS}, v{LS}, v{P8+7}')
    A(f'v_add_f32 v{P8+1}, v{P8+1}, v{P8+3}')
    A(f'v_add_f32 v{LS}, v{LS}, v{P8+5}')
    A(f'v_add_f32 v{LS}, v{LS}, v{P8+1}')
    for v in range(8):
        A(f's_mov_b64 exec, s[{64+2*v}:{65+2*v}]')
        A(f'v_mov_b64 {q(PV+4*v,2)}, {q(T,2)}')
        A(f'v_mov_b64 {q(PV+4*v+2,2)}, {q(T+2,2)}')
    A('s_mov_b64 exec, -1')
    poll_landed()
    order = [(i & 1) * 8 + (i >> 1) for i in range(16)]
    def vread(i):
        m = order[i]
        for kh in range(2):
            A(f'ds_read_b64_tr_b16 {q(KV+4*i+2*kh,2)}, v{VAC+(m&7)} offset:{16384+kh*8192+(m>>3)*256}')
    PRE = 7
    for i in range(PRE):
        vread(i)
    for i in range(16):
        issued = min(16, i + PRE)
        A(f's_waitcnt lgkmcnt({2*(issued-i-1)})')
        m = order[i]
        a = m >> 3
        if i == 15:
            A(f's_add_u32 s{sT}, s{sT}, 1')
            A(f'v_mov_b32 v14, s{sT}')
            A(f'ds_write_b32 v{CONA}, v14')
        A(f'v_mfma_f32_16x16x32_bf16 {q(O+4*a)}, {q(PV+4*(m&7))}, {q(KV+4*i)}, {q(O+4*a)}')
        if i + PRE < 16:
            vread(i + PRE)
    A(f's_add_u32 s{sNEED}, s{sNEED}, 1')
    A(f's_add_u32 s{sSLOT}, s{sSLOT}, {SLOT:#x}')
    A(f's_and_b32 s{sSLOT}, s{sSLOT}, 0x1ffff')
    A(f's_cmp_eq_u32 s{sT}, {o.tj1}')
    A('s_cbranch_scc1 .Ljob1')
    A(f's_cmp_eq_u32 s{sT}, {o.tj2}')
    A('s_cbranch_scc1 .Ljob2')
    A(f's_cmp_lt_u32 s{sT}, 64')
    A('s_cbranch_scc1 .Ltile')
    A('s_branch .Ltail')

    g.lab('.Ljob1')
    A('s_and_b32 s4, s2, 7')
    A('s_mul_i32 s4, s4, 28')
    A('s_lshr_b32 s5, s2, 3')
    A('s_add_u32 s4, s4, s5')
    A('s_cmp_lt_u32 s5, 28')
    A('s_cselect_b32 s4, s4, 0x20000')
    A('s_lshl_b32 s5, s4, 4')
    A('s_mul_i32 s6, s4, 7168')
    A('v_mul_u32_u24 v57, 3584, v1')
    for t in range(7):
        A(f's_mov_b32 m0, {STG + t*1024}')
        A(f's_add_u32 s7, s5, {t*64*3584:#x}')
        A(f'buffer_load_dwordx4 v57, s[{sW1}:{sW1+3}], s7 offen {o.wqflags} lds')
    for t in range(7):
        A(f's_mov_b32 m0, {STG + 7168 + t*1024}')
        A(f's_add_u32 s7, s6, {t*1024}')
        A(f'buffer_load_dwordx4 v56, s[{sW2}:{sW2+3}], s7 offen nt lds')
    A(f's_mov_b32 m0, {GS}')
    A('s_nop 0')
    A(f'buffer_load_dwordx4 v56, s[{sG}:{sG+3}], 0 offen lds')
    A('s_branch .Ltile')

    g.lab('.Ljob2')
    A('s_waitcnt vmcnt(0)')
    A(f'v_add_u32 v57, {GS}, v56')
    A(f'ds_read_b128 {q(TL)}, v57')
    A(f'v_add_u32 v57, {XS}, v56')
    A(f'ds_read_b128 {q(TL+4)}, v57')
    A(f'ds_read_b128 {q(TL+8)}, v57 offset:896')
    A('v_lshl_add_u32 v61, v3, 3, v4')
    A('v_lshlrev_b32 v61, 4, v61')
    A('v_and_b32 v14, 1, v5')
    A('v_lshl_add_u32 v61, v14, 3, v61')
    A(f'v_add_u32 v61, {STG}, v61')
    A('v_and_b32 v14, 1, v3')
    A('v_lshl_add_u32 v15, v14, 2, v4')
    A('v_mul_u32_u24 v62, 896, v15')
    A('v_lshrrev_b32 v15, 1, v3')
    A('v_lshl_add_u32 v62, v15, 5, v62')
    A('v_lshl_add_u32 v62, v5, 3, v62')
    A('v_mul_u32_u24 v63, 3584, v14')
    A('v_add_u32 v63, v63, v62')
    A(f'v_add_u32 v63, {STG}, v63')
    A(f'v_add_u32 v62, {STG+7168}, v62')
    A('s_waitcnt lgkmcnt(0)')
    for b in range(2):
        acc = TL + 12 + b
        for d in range(4):
            A(f'v_lshlrev_b32 v{TL+16}, 16, v{TL+d}')
            A(f'v_and_b32 v{TL+17}, 0xffff0000, v{TL+d}')
            A(f'v_lshlrev_b32 v{TL+18}, 16, v{TL+4+4*b+d}')
            A(f'v_and_b32 v{TL+19}, 0xffff0000, v{TL+4+4*b+d}')
            A(f'v_mul_f32 v{TL+16}, v{TL+16}, v{TL+18}')
            A(f'v_mul_f32 v{TL+17}, v{TL+17}, v{TL+19}')
            A(f'v_cvt_pk_bf16_f32 v{TL+18}, v{TL+16}, v{TL+17}')
            A(f'v_lshlrev_b32 v{TL+16}, 16, v{TL+18}')
            A(f'v_and_b32 v{TL+17}, 0xffff0000, v{TL+18}')
            if d == 0:
                A(f'v_add_f32 v{acc}, v{TL+16}, v{TL+17}')
            else:
                A(f'v_add_f32 v{acc}, v{acc}, v{TL+16}')
                A(f'v_add_f32 v{acc}, v{acc}, v{TL+17}')
    Z = TL + 12
    A('s_nop 1')
    A(f'v_permlane32_swap_b32 v{Z}, v{Z+1}')
    A(f'v_add_f32 v{Z}, v{Z}, v{Z+1}')
    A(f'v_mov_b32 v{Z+1}, v{Z}')
    A('s_nop 1')
    A(f'v_permlane16_swap_b32 v{Z}, v{Z+1}')
    A(f'v_add_f32 v{Z}, v{Z}, v{Z+1}')
    for rr in (8, 4, 2, 1):
        A('s_nop 1')
        A(f'v_add_f32_dpp v{Z}, v{Z}, v{Z} row_ror:{rr} {DPPM}')
    def rbf(r):
        A(f'v_cvt_pk_bf16_f32 v{r}, v{r}, v{r}')
        A(f'v_and_b32 v{r}, 0xffff0000, v{r}')
    rbf(Z)
    A(f'v_mul_f32 v{Z}, {f32(-LOG2E)}, v{Z}')
    A(f'v_exp_f32 v{Z}, v{Z}')
    A('s_nop 0')
    A(f'v_add_f32 v{Z}, 1.0, v{Z}')
    A(f'v_rcp_f32 v{G0}, v{Z}')
    A('s_nop 0')
    rbf(G0)
    A(f'v_sub_f32 v{Z}, 1.0, v{G0}')
    rbf(Z)
    A(f'v_mov_b32 v{G0+1}, v{G0}')
    A(f'v_mov_b32 v{Z+1}, v{Z}')
    A('s_nop 1')
    A(f'v_permlane32_swap_b32 v{G0}, v{G0+1}')
    A(f'v_permlane32_swap_b32 v{Z}, v{Z+1}')
    H = TL + 16
    for half in range(2):
        for tt in range(7):
            t = half * 7 + tt
            A(f'ds_read_b128 {q(KV+8*tt)}, v60 offset:{t*64}')
            A(f'ds_read_b64_tr_b16 {q(KV+8*tt+4,2)}, v61 offset:{t*512}')
            A(f'ds_read_b64_tr_b16 {q(KV+8*tt+6,2)}, v61 offset:{t*512+64}')
        A('s_waitcnt lgkmcnt(0)')
        for tt in range(7):
            A(f'v_mfma_f32_16x16x32_bf16 {q(H)}, {q(KV+8*tt+4)}, {q(KV+8*tt)}, {"0" if (half==0 and tt==0) else q(H)}')
        A('s_nop 7')
    for i in range(14):
        A(f'ds_read_b64_tr_b16 {q(KV+2*i,2)}, v62 offset:{i*64}')
    for r in range(4):
        rbf(H + r)
    for r in range(4):
        A(f'v_mul_f32 v{H+4+r}, {f32(-LOG2E)}, v{H+r}')
    for r in range(4):
        A(f'v_exp_f32 v{H+4+r}, v{H+4+r}')
    A('s_nop 0')
    for r in range(4):
        A(f'v_add_f32 v{H+4+r}, 1.0, v{H+4+r}')
    for r in range(4):
        A(f'v_rcp_f32 v{H+4+r}, v{H+4+r}')
    A('s_nop 0')
    for r in range(4):
        A(f'v_mul_f32 v{H+r}, v{H+r}, v{H+4+r}')
    A(f'v_cvt_pk_bf16_f32 v{H+4}, v{H}, v{H+1}')
    A(f'v_cvt_pk_bf16_f32 v{H+5}, v{H+2}, v{H+3}')
    A('s_mov_b32 s4, 0x00030003')
    A('s_mov_b32 s5, 0x00300030')
    A('s_mov_b32 s6, 0x03000300')
    A('s_mov_b32 s7, 0x30003000')
    A(f'v_cndmask_b32 v{H+8}, 0, v{H+4}, s[4:5]')
    A(f'v_cndmask_b32 v{H+9}, 0, v{H+5}, s[4:5]')
    A(f'v_cndmask_b32 v{H+10}, 0, v{H+4}, s[6:7]')
    A(f'v_cndmask_b32 v{H+11}, 0, v{H+5}, s[6:7]')
    A('s_waitcnt lgkmcnt(0)')
    A('s_nop 0')
    FD = KV + 32
    for i in range(7):
        A(f'v_mfma_f32_16x16x16_bf16 {q(FD+4*i)}, {q(H+8,2)}, {q(KV+4*i,2)}, 0')
    for i in range(7):
        A(f'v_mfma_f32_16x16x16_bf16 {q(FD+4*i)}, {q(H+10,2)}, {q(KV+4*i+2,2)}, {q(FD+4*i)}')
    A('s_lshr_b32 s4, s2, 4')
    A('s_lshl_b32 s4, s4, 8')
    A('s_bfe_u32 s5, s2, 0x20002')
    A('s_lshl_b32 s5, s5, 5')
    A('s_add_u32 s4, s4, s5')
    A('s_and_b32 s5, s2, 3')
    A('s_lshl_b32 s5, s5, 2')
    A('s_add_u32 s4, s4, s5')
    A('s_mul_i32 s4, s4, 896')
    A('s_mov_b32 exec_hi, 0x00ffffff')
    for k in range(16):
        a, nn, u = k >> 3, (k >> 1) & 3, k & 1
        A(f's_mov_b32 m0, {STG + k*896}')
        A(f's_add_u32 s7, s4, {(128*a+16*u+nn)*896}')
        A(f'buffer_load_dwordx4 v56, s[{sWO}:{sWO+3}], s7 offen nt lds')
    A('s_mov_b64 exec, -1')
    for i in range(7):
        A(f'v_mul_f32 v{FP+2*i}, v{Z}, v{FD+4*i}')
        A(f'v_mul_f32 v{FP+2*i+1}, v{Z+1}, v{FD+4*i+1}')
    A('s_branch .Ltile')

    g.L.append('.p2align 6')
    g.lab('.Ltail')
    g.stamp(3)
    RG = TL
    HG = TL + 16
    A(f'v_mov_b32 v15, v{LS}')
    A('v_lshrrev_b32 v57, 2, v1')
    A('v_lshlrev_b32 v57, 7, v57')
    A(f'v_permlane16_swap_b32 v{LS}, v15')
    A('v_lshl_add_u32 v57, v5, 4, v57')
    A(f'v_add_f32 v{LS}, v{LS}, v15')
    A(f'v_mov_b32 v15, v{LS}')
    A('s_lshl_b32 s4, s2, 12')
    A(f's_add_u32 s4, s4, {REC:#x}')
    A(f'v_permlane32_swap_b32 v{LS}, v15')
    A(f'v_add_f32 v{LS}, v{LS}, v15')
    for h in range(2):
        for a in range(2):
            A(f'v_mov_b32 v{RG+8*h+4*a+3}, v{TAG}')
    for h in range(2):
        for a in range(2):
            r = RG + 8*h + 4*a
            src = NM if a == 0 else LS
            A(f'v_mov_b32_dpp v{r+2}, v{src} quad_perm:[{2*h},{2*h},{2*h},{2*h}] {DPPM}')
            A(f'v_mov_b64 {q(r,2)}, {q(O+4*a+2*h,2)}')
            A(f'buffer_store_dwordx4 {q(r)}, v57, s[{sWS}:{sWS+3}], s4 offen offset:{h*2048+a*64} {o.stflags}')
    A('v_lshrrev_b32 v58, 5, v1')
    A('v_lshl_add_u32 v58, v58, 2, v4')
    A('v_lshlrev_b32 v58, 12, v58')
    A('v_and_b32 v14, 1, v3')
    A('v_lshl_add_u32 v58, v14, 6, v58')
    A('v_lshl_add_u32 v58, v5, 4, v58')
    A('s_lshr_b32 s4, s2, 5')
    A('s_lshl_b32 s4, s4, 16')
    A('s_and_b32 s5, s2, 31')
    A('s_lshl_b32 s5, s5, 7')
    A('s_add_u32 s4, s4, s5')
    A(f's_add_u32 s4, s4, {REC:#x}')
    A('s_add_u32 s5, s4, 0x8000')
    A('s_add_u32 s6, s4, 0x80000')
    A('s_add_u32 s7, s4, 0x88000')
    WF = KV
    A('s_waitcnt vmcnt(4)')
    for i in range(14):
        A(f'ds_read_b64_tr_b16 {q(WF+4*i,2)}, v63 offset:{i*64}')
        A(f'ds_read_b64_tr_b16 {q(WF+4*i+2,2)}, v63 offset:{i*64+3584}')
    A('s_mov_b32 s64, 0x00030003')
    A('s_mov_b32 s65, 0x00300030')
    A('s_mov_b32 s66, 0x03000300')
    A('s_mov_b32 s67, 0x30003000')
    A(f's_mul_i32 s68, s2, {YROW}')
    A(f's_add_u32 s68, s68, {YB:#x}')
    A('s_add_u32 s69, s68, 0x1000')
    g.lab('.Lh1poll')
    for i in range(4):
        A(f'buffer_load_dwordx4 {q(HG+4*i)}, v58, s[{sWS}:{sWS+3}], s{4+i} offen {o.ldflags}')
    A('s_waitcnt vmcnt(0)')
    A(f'v_xor_b32 v14, v{HG+3}, v{TAG}')
    A(f'v_xor_b32 v15, v{HG+7}, v{TAG}')
    A(f'v_xor_b32 v36, v{HG+11}, v{TAG}')
    A(f'v_xor_b32 v37, v{HG+15}, v{TAG}')
    A('v_or3_b32 v14, v14, v15, v36')
    A('v_or_b32 v14, v14, v37')
    A('v_cmp_ne_u32 vcc, 0, v14')
    A('s_cbranch_vccz .Lh1ok')
    if o.h1sleep:
        A(f's_sleep {o.h1sleep}')
    A(f's_sub_u32 s{sBUD}, s{sBUD}, 64')
    A('s_cbranch_scc0 .Lh1poll')
    A(f's_mov_b32 s{sBUD}, 0')
    g.lab('.Lh1ok')
    g.stamp(4)
    for i in range(4):
        A(f'v_mov_b32 v{HG+4*i+3}, v{HG+4*i+2}')
    A('s_nop 0')
    for i in range(4):
        A(f'v_permlane16_swap_b32 v{HG+4*i+2}, v{HG+4*i+3}')
    A(f'v_max_f32 v36, v{HG+2}, v{HG+6}')
    A(f'v_max_f32 v37, v{HG+10}, v{HG+14}')
    A('s_nop 0')
    for rr in (4, 8):
        A(f'v_max_f32_dpp v36, v36, v36 row_ror:{rr} {DPPM}')
        A(f'v_max_f32_dpp v37, v37, v37 row_ror:{rr} {DPPM}')
        A('s_nop 0')
    A('v_mov_b32 v38, v36')
    A('v_mov_b32 v39, v37')
    A('s_nop 0')
    A('v_permlane32_swap_b32 v36, v38')
    A('v_permlane32_swap_b32 v37, v39')
    A('v_max_f32 v36, v36, v38')
    A('v_max_f32 v37, v37, v39')
    for i in range(4):
        A(f'v_sub_f32 v{40+i}, v{HG+4*i+2}, v{36+(i>>1)}')
    for i in range(4):
        A(f'v_exp_f32 v{40+i}, v{40+i}')
    A('s_nop 0')
    for b in range(2):
        for k, off in enumerate((0, 1, 3)):
            A(f'v_mul_f32 v{44+3*b+k}, v{40+2*b}, v{HG+8*b+off}')
        for k, off in enumerate((0, 1, 3)):
            A(f'v_fmac_f32 v{44+3*b+k}, v{41+2*b}, v{HG+8*b+4+off}')
    A('s_nop 0')
    for k in range(3):
        A(f'v_permlane32_swap_b32 v{44+k}, v{47+k}')
    for k in range(3):
        A(f'v_add_f32 v{44+k}, v{44+k}, v{47+k}')
    for rr in (4, 8):
        for k in range(3):
            A(f'v_add_f32_dpp v{44+k}, v{44+k}, v{44+k} row_ror:{rr} {DPPM}')
    A('v_rcp_f32 v46, v46')
    A('s_mov_b32 vcc_lo, 0xaaaaaaaa')
    A('s_mov_b32 vcc_hi, 0xaaaaaaaa')
    A('v_mul_f32 v44, v44, v46')
    A('v_mul_f32 v45, v45, v46')
    A('v_cvt_pk_bf16_f32 v44, v44, v45')
    A('v_mov_b32 v45, v44')
    A('s_nop 1')
    A('v_permlane32_swap_b32 v44, v45')
    A('s_nop 1')
    for nn in range(4):
        A(f'v_mov_b32_dpp v{36+nn}, v45 quad_perm:[{nn},{nn},{nn},{nn}] {DPPM}')
    for nn in range(4):
        A(f'v_cndmask_b32_dpp v{36+nn}, v44, v{36+nn}, vcc quad_perm:[{nn},{nn},{nn},{nn}] {DPPM}')
    for nn in range(4):
        A(f'v_cndmask_b32 v{48+nn}, 0, v{36+nn}, s[64:65]')
    for nn in range(4):
        A(f'v_cndmask_b32 v{52+nn}, 0, v{36+nn}, s[66:67]')
    A('s_waitcnt lgkmcnt(0)')
    YD = QF
    for i in range(7):
        A(f'v_mfma_f32_16x16x32_bf16 {q(YD+4*i)}, {q(48)}, {q(WF+8*i)}, 0')
    for i in range(7):
        A(f'v_mfma_f32_16x16x32_bf16 {q(YD+4*i)}, {q(52)}, {q(WF+8*i+4)}, {q(YD+4*i)}')
    YG = PV
    for i in range(7):
        A(f'v_mov_b32 v{YG+4*i+3}, v{TAG}')
    for i in range(7):
        if i == 6:
            A('s_nop 1')
        A(f'v_fma_f32 v{YG+4*i}, v{G0}, v{YD+4*i}, v{FP+2*i}')
        A(f'v_fma_f32 v{YG+4*i+1}, v{G0+1}, v{YD+4*i+1}, v{FP+2*i+1}')
        A(f'buffer_store_dwordx4 {q(YG+4*i)}, v56, s[{sWS}:{sWS+3}], s{68+(i>>2)} offen offset:{(i&3)*1024} {o.stflags}')
    g.stamp(5)
    A('s_cmp_ge_u32 s2, 112')
    A('s_cbranch_scc1 .Lfin')
    A('v_lshrrev_b32 v57, 2, v1')
    A(f'v_mul_u32_u24 v57, {YROW}, v57')
    A('v_lshl_add_u32 v57, v5, 4, v57')
    A('s_lshl_b32 s4, s2, 6')
    A(f's_add_u32 s64, s4, {YB:#x}')
    for i in range(1, 16):
        A(f's_add_u32 s{64+i}, s64, {i*16*YROW:#x}')
    A('v_lshrrev_b32 v58, 5, v1')
    A('v_mul_u32_u24 v58, 896, v58')
    A('v_lshl_add_u32 v58, v5, 1, v58')
    A('s_lshl_b32 s4, s2, 3')
    g.lab('.Lh2poll')
    for i in range(16):
        A(f'buffer_load_dwordx4 {q(KV+4*i)}, v57, s[{sWS}:{sWS+3}], s{64+i} offen {o.ldflags}')
    for i in range(16):
        A(f's_waitcnt vmcnt({15-i})')
        if i == 0:
            A(f'v_xor_b32 v14, v{KV+3}, v{TAG}')
            A(f'v_mov_b64 v[36:37], {q(KV,2)}')
        else:
            A(f'v_xor_b32 v15, v{KV+4*i+3}, v{TAG}')
            A(f'v_pk_add_f32 v[36:37], v[36:37], {q(KV+4*i,2)}')
            A('v_or_b32 v14, v14, v15')
    A('v_cmp_ne_u32 vcc, 0, v14')
    A('s_cbranch_vccz .Lh2ok')
    A(f's_sub_u32 s{sBUD}, s{sBUD}, 64')
    A('s_cbranch_scc0 .Lh2poll')
    A(f's_mov_b32 s{sBUD}, 0')
    g.lab('.Lh2ok')
    A('v_permlane32_swap_b32 v36, v37')
    A('v_add_f32 v36, v36, v37')
    A('v_mov_b32 v37, v36')
    A('s_nop 1')
    A('v_permlane16_swap_b32 v36, v37')
    A('v_add_f32 v36, v36, v37')
    for rr in (4, 8):
        A('s_nop 1')
        A(f'v_add_f32_dpp v36, v36, v36 row_ror:{rr} {DPPM}')
    A('v_cvt_pk_bf16_f32 v36, v36, v36')
    A('s_mov_b32 exec_lo, 0xf')
    A('s_mov_b32 exec_hi, 0xf')
    A(f'buffer_store_short v36, v58, s[{sOUT}:{sOUT+3}], s4 offen')
    A('s_cmp_lg_u32 s2, 0')
    A('s_cbranch_scc1 .Lfin')
    A('s_mov_b64 exec, 1')
    A(f'buffer_store_dword v{TAG}, v59, s[{sWS}:{sWS+3}], 0 offen')
    g.lab('.Lfin')
    if o.diag:
        g.stamp(6)
        A('s_mov_b64 exec, 1')
        A('s_lshl_b32 s4, s2, 7')
        A(f's_add_u32 s4, s4, {STAMP:#x}')
        for k in range(7):
            A(f'v_mov_b32 v14, s{86+2*k}')
            A(f'v_mov_b32 v15, s{87+2*k}')
            A(f'buffer_store_dwordx2 v[14:15], v59, s[{sWS}:{sWS+3}], s4 offen offset:{8*k}')
            A('s_nop 1')
    g.lab('.Lexit')
    A('s_endpgm')

    ref = open('cdna_kernels/' + NAME + '.s.ref').read().split('\n')
    head = [l for l in ref if l.startswith(';') and '@launch' not in l and 'Override launch' not in l and 'grid=ceil' not in l]
    txt = '\n'.join(head) + '\n'
    txt += f'; @launch grid=(256,1,1) block=(128,1,1) lds={LDS_BYTES}\n'
    txt += '.amdgcn_target "amdgcn-amd-amdhsa--gfx950"\n.text\n'
    txt += '\n'.join(g.L) + '\n'
    txt += f'''.section .rodata,"a"
.p2align 6
.amdhsa_kernel {K}
  .amdhsa_next_free_vgpr 256
  .amdhsa_next_free_sgpr 102
  .amdhsa_accum_offset 256
  .amdhsa_group_segment_fixed_size 0
  .amdhsa_kernarg_size 96
  .amdhsa_user_sgpr_count 2
  .amdhsa_user_sgpr_kernarg_segment_ptr 1
  .amdhsa_system_sgpr_workgroup_id_x 1
.end_amdhsa_kernel
'''
    return txt


def parser():
    p = argparse.ArgumentParser()
    p.add_argument('-o', default='cdna_kernels/' + NAME + '.s')
    p.add_argument('--window', type=int, default=20)
    p.add_argument('--gs', type=int, default=2)
    p.add_argument('--unit', type=int, default=8)
    p.add_argument('--idxsh', type=int, default=3)
    p.add_argument('--diag', action='store_true')
    p.add_argument('--wqflags', default='nt')
    p.add_argument('--stflags', default='sc1')
    p.add_argument('--ldflags', default='sc1')
    p.add_argument('--tj1', type=int, default=10)
    p.add_argument('--tj2', type=int, default=14)
    p.add_argument('--h1sleep', type=int, default=4)
    return p


if __name__ == '__main__':
    o = parser().parse_args()
    open(o.o, 'w').write(gen(o))
```

```python
import sys, struct, argparse

NAME = 'gated_mix__gqa_block_cached__dense_activation_silu__decode'

RING = 0
SLOT = 32768
STG = 131072
XS = STG + 14336
GS = XS + 2048
QS = GS + 1024
FL = QS + 1024
LDS_BYTES = FL + 512

QG = 0x10000
REC = 0x100000
YB = 0x200000
YROW = 7168
WS_BYTES = 0x400000
STAMP = 0x400000

def f32(x):
    return '0x%08x' % struct.unpack('<I', struct.pack('<f', x))[0]

LOG2E = 1.4426950408889634
DPPM = 'row_mask:0xf bank_mask:0xf'


class G:
    def __init__(self, o):
        self.L = []
        self.o = o
        self.uid = 0

    def A(self, s):
        self.L.append('    ' + s)

    def lab(self, s):
        self.L.append(s + ':')

    def new(self, p):
        self.uid += 1
        return f'.L{p}_{self.uid}'

    def srd(self, d, ptr, nbytes):
        A = self.A
        A(f's_mov_b32 s{d}, s{ptr}')
        A(f's_mov_b32 s{d+1}, s{ptr+1}')
        A(f's_mov_b32 s{d+2}, {nbytes:#x}')
        A(f's_mov_b32 s{d+3}, 0x20000')

    def stamp(self, k):
        if self.o.diag:
            self.A(f's_memrealtime s[{86+2*k}:{87+2*k}]')
            self.A('s_waitcnt lgkmcnt(0)')


def q(b, n=4):
    return f'v[{b}:{b+n-1}]'


def gen(o):
    g = G(o)
    A = g.A
    W = o.window
    K = NAME + '_kernel'
    pX, pK, pV, pWQ, pWO, pW1, pW2, pG, pOUT, pWS = 36, 38, 40, 42, 44, 48, 50, 52, 54, 58

    g.L.append(f'.globl {K}\n.p2align 8\n.type {K},@function\n{K}:')
    A('s_cmp_ge_u32 s2, 256')
    A('s_cbranch_scc1 .Lexit')
    A('s_load_dwordx16 s[36:51], s[0:1], 0')
    A('s_load_dwordx8 s[52:59], s[0:1], 64')
    A('v_lshrrev_b32 v1, 6, v0')
    A('v_lshlrev_b32 v8, 2, v0')
    A('v_readfirstlane_b32 s3, v1')
    A(f'v_add_u32 v8, {FL}, v8')
    A('v_mov_b32 v14, 0')
    A('ds_write_b32 v8, v14')
    A('v_and_b32 v1, 63, v0')
    A('s_cmp_lg_u32 s3, 0')
    A('s_cbranch_scc1 .Lcons')

    gs, U, sh = o.gs, o.unit, o.idxsh
    lg = gs.bit_length() - 1
    A(f's_lshr_b32 s17, s2, {sh}')
    A(f's_and_b32 s17, s17, {gs-1}')
    A(f's_lshr_b32 s18, s2, {sh+lg}')
    A(f's_lshl_b32 s18, s18, {sh}')
    A(f's_and_b32 s19, s2, {(1<<sh)-1}')
    A('s_or_b32 s18, s18, s19')
    A(f's_lshl_b32 s16, s18, {20+lg}')
    A(f's_mul_i32 s17, s17, {U*4096}')
    A('s_add_u32 s16, s16, s17')
    A('v_lshrrev_b32 v3, 5, v1')
    A('v_and_b32 v5, 31, v1')
    A('v_lshlrev_b32 v4, 1, v3')
    A('v_xor_b32 v5, v5, v4')
    A('v_lshlrev_b32 v5, 4, v5')
    A('v_lshl_add_u32 v20, v3, 9, v5')
    for i in range(1, 4):
        A(f'v_xor_b32 v{20+i}, {i*64}, v20')
    A(f'v_mov_b32 v7, {FL+256}')
    A('v_mov_b32 v15, 0')
    j0 = (W - 1) % 16
    lag = (W - 1) // 16 + 1
    A(f's_mov_b32 s22, {-lag}')
    A('s_mov_b32 s20, -3')
    A(f's_mov_b32 s25, {1<<22}')
    A('s_waitcnt lgkmcnt(0)')
    g.srd(8, pK, 0x10000000)
    g.srd(12, pV, 0x10000000)
    if o.diag:
        g.srd(28, pWS, STAMP + 0x10000)
    A('s_barrier')
    g.L.append('.p2align 6')
    g.lab('.Lload')
    for tt in range(4):
        ok = g.new('lok')
        sp = g.new('lspin')
        A('s_waitcnt lgkmcnt(0)')
        A('v_readfirstlane_b32 s24, v15')
        A('s_cmp_ge_i32 s24, s20')
        A(f's_cbranch_scc1 {ok}')
        g.lab(sp)
        A('ds_read_b32 v15, v7')
        A('s_waitcnt lgkmcnt(0)')
        A('v_readfirstlane_b32 s24, v15')
        A('s_cmp_ge_i32 s24, s20')
        A(f's_cbranch_scc1 {ok}')
        A('s_sleep 1')
        A('s_sub_u32 s25, s25, 1')
        A(f's_cbranch_scc0 {sp}')
        A('s_mov_b32 s25, 0')
        g.lab(ok)
        A('s_add_u32 s20, s20, 1')
        for half in (0, 1):
            for j in range(16):
                if j % 4 == 0:
                    k = tt * 4 + j // 4
                    A(f's_mov_b32 m0, {RING + tt*SLOT + half*16384 + j*1024:#x}')
                    A(f's_add_u32 s23, s16, {((k//U)*gs*U + k % U)*4096:#x}')
                A(f's_waitcnt vmcnt({W-1})')
                A(f'buffer_load_dwordx4 v{20+(j&3)}, s[{8+4*half}:{11+4*half}], s23 offen offset:{(j&3)*1024} {(o.kflags, o.vflags)[half]} lds')
                if j == j0:
                    A('s_add_u32 s22, s22, 1')
                    A('v_mov_b32 v14, s22')
                    A('ds_write_b32 v8, v14')
                if half == 1 and j == 12:
                    A('ds_read_b32 v15, v7')
    A(f's_add_u32 s16, s16, {16384*gs*4:#x}')
    A('s_cmp_lt_i32 s20, 61')
    A('s_cbranch_scc1 .Lload')
    for hc in range(128 - lag + 1, 129):
        A(f's_waitcnt vmcnt({16*(128-hc)})')
        A(f'v_mov_b32 v14, {hc}')
        A('ds_write_b32 v8, v14')
    if o.diag:
        A('s_memrealtime s[86:87]')
        A('s_waitcnt lgkmcnt(0)')
        A('v_mov_b32 v16, s86')
        A('v_mov_b32 v17, s87')
        A('v_mov_b32 v18, 0')
        A('s_lshl_b32 s17, s2, 7')
        A(f's_add_u32 s17, s17, {STAMP+64:#x}')
        A('s_mov_b64 exec, 1')
        A('buffer_store_dwordx2 v[16:17], v18, s[28:31], s17 offen')
    A('s_endpgm')

    sX, sWQ, sWS, sWO, sW1, sW2, sG, sOUT = 8, 12, 16, 20, 24, 28, 32, 60
    TAG, LNDA, CONA, KA0, VA0, M, NM, LS = 6, 7, 8, 9, 10, 11, 12, 13
    KAC, VAC, O, S, T, P8 = 16, 20, 28, 36, 44, 48
    KV, QF, PV, FP, G0, TL = 64, 128, 160, 192, 206, 208
    sT, sSLOT, sLND, sC, sNEED, sBUD = 81, 82, 83, 84, 85, 80
    g.L.append('.p2align 6')
    g.lab('.Lcons')
    A('v_and_b32 v2, 15, v1')
    A('v_lshrrev_b32 v3, 4, v1')
    A('v_bfe_u32 v4, v1, 2, 2')
    A('v_and_b32 v5, 3, v1')
    A('v_lshlrev_b32 v56, 4, v1')
    A('v_lshrrev_b32 v57, 1, v1')
    A('v_and_b32 v58, 1, v1')
    A('v_lshlrev_b32 v57, 13, v57')
    A('v_lshl_add_u32 v57, v58, 4, v57')
    A('v_mov_b32 v59, 0')
    A('s_and_b32 s4, s2, 7')
    A('s_lshl_b32 s4, s4, 5')
    A('s_lshr_b32 s5, s2, 3')
    A('s_add_u32 s4, s4, s5')
    A('s_lshl_b32 s5, s4, 5')
    A('s_waitcnt lgkmcnt(0)')
    g.srd(sWS, pWS, WS_BYTES + (0x10000 if o.diag else 0))
    g.srd(sX, pX, 1792)
    g.srd(sWQ, pWQ, 448 * 8192)
    A('s_barrier')
    g.stamp(0)
    A(f'buffer_load_dword v{TAG}, v59, s[{sWS}:{sWS+3}], 0 offen')
    A(f's_mov_b32 m0, {XS}')
    A('s_nop 0')
    A(f'buffer_load_dwordx4 v56, s[{sX}:{sX+3}], 0 offen lds')
    A(f'buffer_load_dwordx4 v56, s[{sX}:{sX+3}], 0 offen offset:1024 lds')
    for t in range(14):
        A(f's_mov_b32 m0, {STG + t*1024}')
        A(f's_add_u32 s6, s5, {t*262144:#x}')
        A(f'buffer_load_dwordx4 v57, s[{sWQ}:{sWQ+3}], s6 offen {o.wqflags} lds')
    g.srd(sWO, pWO, 4096 * 896)
    g.srd(sW1, pW1, 448 * 3584)
    g.srd(sW2, pW2, 1792 * 896)
    g.srd(sG, pG, 896)
    g.srd(sOUT, pOUT, 1792)
    A('v_and_b32 v58, 1, v2')
    A('v_mul_u32_u24 v60, 896, v58')
    A('v_lshl_add_u32 v60, v3, 4, v60')
    A(f'v_add_u32 v60, {XS}, v60')
    A('v_lshl_add_u32 v61, v3, 3, v4')
    A('v_lshlrev_b32 v61, 5, v61')
    A('v_lshl_add_u32 v61, v5, 3, v61')
    A(f'v_add_u32 v61, {STG}, v61')
    A('v_lshlrev_b32 v62, 14, v58')
    A('v_lshl_add_u32 v62, v3, 4, v62')
    A('v_and_b32 v14, 7, v2')
    A('v_lshlrev_b32 v14, 1, v14')
    A('v_xor_b32 v14, v14, v3')
    A('v_lshlrev_b32 v14, 4, v14')
    A(f'v_lshl_add_u32 v{KA0}, v2, 9, v14')
    A('v_lshl_add_u32 v14, v3, 2, v4')
    A('v_and_b32 v15, 7, v14')
    A('v_lshlrev_b32 v15, 5, v15')
    A('v_lshl_add_u32 v15, v5, 3, v15')
    A(f'v_lshl_add_u32 v{VA0}, v14, 9, v15')
    A(f'v_mov_b32 v{LNDA}, {FL}')
    for v in range(8):
        qq, u = v >> 1, v & 1
        m16 = (1 << (4*qq+u)) | (1 << (4*qq+u+2))
        m32 = m16 | (m16 << 16)
        A(f's_mov_b32 s{64+2*v}, {m32:#x}')
        A(f's_mov_b32 s{65+2*v}, {m32:#x}')
    A(f's_mov_b32 s{sC}, {f32(0.0625*LOG2E)}')
    A(f's_mov_b32 s{sBUD}, {1<<22}')
    A(f's_mov_b32 s{sLND}, 0')
    A(f's_mov_b32 s{sT}, 0')
    A(f's_mov_b32 s{sSLOT}, 0')
    A('s_mov_b32 s7, 1664525')
    A('s_lshl_b32 s5, s4, 6')
    A(f's_add_u32 s5, s5, {QG:#x}')
    A('s_lshr_b32 s6, s2, 4')
    A('s_lshl_b32 s6, s6, 11')
    A(f's_add_u32 s6, s6, {QG:#x}')
    XF, AF = 64, 128
    A('s_waitcnt vmcnt(14)')
    A(f'v_mul_lo_u32 v{TAG}, v{TAG}, s7')
    for t in range(14):
        A(f'ds_read_b128 {q(XF+4*t)}, v60 offset:{t*64}')
    A(f'v_add_u32 v{TAG}, 1013904223, v{TAG}')
    def qm(t):
        A(f'v_mfma_f32_16x16x32_bf16 {q(S)}, {q(AF+4*t)}, {q(XF+4*t)}, {"0" if t==0 else q(S)}')
    for t in range(14):
        A(f's_waitcnt vmcnt({13-t})')
        A(f'ds_read_b64_tr_b16 {q(AF+4*t,2)}, v61 offset:{t*1024}')
        A(f'ds_read_b64_tr_b16 {q(AF+4*t+2,2)}, v61 offset:{t*1024+128}')
        if t >= 2:
            A('s_waitcnt lgkmcnt(4)')
            qm(t-2)
    A('s_waitcnt lgkmcnt(2)')
    qm(12)
    A('s_waitcnt lgkmcnt(0)')
    qm(13)
    A(f'v_mov_b32 v{T+2}, v{TAG}')
    A(f'v_mov_b32 v{T+3}, v{TAG}')
    A('s_mov_b32 exec_lo, 0x00030003')
    A('s_mov_b32 exec_hi, 0x00030003')
    A('s_nop 4')
    A(f'v_cvt_pk_bf16_f32 v{T}, v{S}, v{S+1}')
    A(f'v_cvt_pk_bf16_f32 v{T+1}, v{S+2}, v{S+3}')
    A(f'buffer_store_dwordx4 {q(T)}, v62, s[{sWS}:{sWS+3}], s5 offen {o.stflags}')
    A('s_mov_b64 exec, -1')
    g.stamp(1)
    for i in range(8):
        A(f'v_mov_b32 v{O+i}, 0')
    for i in range(32):
        A(f'v_mov_b32 v{PV+i}, 0')
    A(f'v_mov_b32 v{M}, 0xff7fffff')
    A(f'v_mov_b32 v{NM}, 0xff7fffff')
    A(f'v_mov_b32 v{LS}, 0')
    A('v_lshlrev_b32 v57, 3, v1')
    A(f'v_add_u32 v57, {QS}, v57')
    A('v_bfe_u32 v58, v2, 1, 1')
    A('v_lshlrev_b32 v58, 9, v58')
    A('v_lshl_add_u32 v58, v3, 4, v58')
    A(f'v_add_u32 v58, {QS}, v58')
    g.lab('.Lqpoll')
    A(f'buffer_load_dwordx4 {q(KV)}, v56, s[{sWS}:{sWS+3}], s6 offen {o.ldflags}')
    A(f'buffer_load_dwordx4 {q(KV+4)}, v56, s[{sWS}:{sWS+3}], s6 offen offset:1024 {o.ldflags}')
    A('s_waitcnt vmcnt(0)')
    A(f'v_xor_b32 v14, v{KV+2}, v{TAG}')
    A(f'v_xor_b32 v15, v{KV+6}, v{TAG}')
    A('v_or_b32 v14, v14, v15')
    A('v_cmp_ne_u32 vcc, 0, v14')
    A('s_cbranch_vccz .Lqok')
    A(f's_sub_u32 s{sBUD}, s{sBUD}, 64')
    A('s_cbranch_scc0 .Lqpoll')
    A(f's_mov_b32 s{sBUD}, 0')
    g.lab('.Lqok')
    A(f'ds_write_b64 v57, {q(KV,2)}')
    A(f'ds_write_b64 v57, {q(KV+4,2)} offset:512')
    A('s_waitcnt lgkmcnt(0)')
    for j in range(8):
        A(f'ds_read_b128 {q(QF+4*j)}, v58 offset:{j*64}')
    g.stamp(2)

    def poll_landed():
        d = g.new('pd')
        sp = g.new('ps')
        A(f's_cmp_ge_i32 s{sLND}, s{sNEED}')
        A(f's_cbranch_scc1 {d}')
        g.lab(sp)
        A(f'ds_read_b32 v14, v{LNDA}')
        A('s_waitcnt lgkmcnt(0)')
        A(f'v_readfirstlane_b32 s{sLND}, v14')
        A(f's_cmp_ge_i32 s{sLND}, s{sNEED}')
        A(f's_cbranch_scc1 {d}')
        A('s_sleep 1')
        A(f's_sub_u32 s{sBUD}, s{sBUD}, 1')
        A(f's_cbranch_scc0 {sp}')
        A(f's_mov_b32 s{sBUD}, 0')
        g.lab(d)

    A(f's_mov_b32 s{sNEED}, 1')
    g.L.append('.p2align 6')
    g.lab('.Ltile')
    A(f'v_add_u32 v{KAC}, s{sSLOT}, v{KA0}')
    A(f'v_add_u32 v{VAC}, s{sSLOT}, v{VA0}')
    for i in range(1, 4):
        A(f'v_xor_b32 v{KAC+i}, {i*64}, v{KAC}')
    for i in range(1, 8):
        A(f'v_xor_b32 v{VAC+i}, {i*32}, v{VAC}')
    poll_landed()
    for i in range(16):
        j, hh = i >> 1, i & 1
        A(f'ds_read_b128 {q(KV+4*i)}, v{KAC+(j&3)} offset:{hh*8192+(j>>2)*256}')
    for i in range(16):
        j, hh = i >> 1, i & 1
        A(f's_waitcnt lgkmcnt({15-i})')
        A(f'v_mfma_f32_16x16x32_bf16 {q(S+4*hh)}, {q(KV+4*i)}, {q(QF+4*j)}, {"0" if j==0 else q(S+4*hh)}')
    A(f's_add_u32 s{sNEED}, s{sNEED}, 1')
    A('s_nop 6')
    for i in range(4):
        A(f'v_cvt_pk_bf16_f32 v{T+i}, v{S+2*i}, v{S+2*i+1}')
    for i in range(4):
        A(f'v_lshlrev_b32 v{S+2*i}, 16, v{T+i}')
        A(f'v_and_b32 v{S+2*i+1}, 0xffff0000, v{T+i}')
    A(f'v_max3_f32 v14, v{S}, v{S+1}, v{S+2}')
    A(f'v_max3_f32 v15, v{S+3}, v{S+4}, v{S+5}')
    A(f'v_max3_f32 v14, v14, v{S+6}, v{S+7}')
    A(f'v_max3_f32 v14, v14, v15, v{M}')
    A('v_mov_b32 v15, v14')
    A('s_nop 1')
    A('v_permlane16_swap_b32 v14, v15')
    A('v_max_f32 v14, v14, v15')
    A('v_mov_b32 v15, v14')
    A('s_nop 1')
    A('v_permlane32_swap_b32 v14, v15')
    A(f'v_max_f32 v{M}, v14, v15')
    A(f'v_mul_f32 v14, s{sC}, v{M}')
    A(f'v_sub_f32 v15, v{NM}, v14')
    A(f'v_mov_b32 v{NM}, v14')
    A('v_exp_f32 v15, v15')
    for i in range(8):
        A(f'v_fma_f32 v{P8+i}, v{S+i}, s{sC}, -v{NM}')
    for i in range(8):
        A(f'v_exp_f32 v{P8+i}, v{P8+i}')
    for a in range(2):
        for r in range(4):
            hq = 2 * (r >> 1)
            A(f'v_mul_f32_dpp v{O+4*a+r}, v15, v{O+4*a+r} quad_perm:[{hq},{hq},{hq},{hq}] {DPPM}')
    for i in range(4):
        A(f'v_cvt_pk_bf16_f32 v{T+i}, v{P8+2*i}, v{P8+2*i+1}')
    A(f'v_fma_f32 v{LS}, v{LS}, v15, v{P8}')
    A(f'v_add_f32 v{P8+1}, v{P8+1}, v{P8+2}')
    A(f'v_add_f32 v{P8+3}, v{P8+3}, v{P8+4}')
    A(f'v_add_f32 v{P8+5}, v{P8+5}, v{P8+6}')
    A(f'v_add_f32 v{LS}, v{LS}, v{P8+7}')
    A(f'v_add_f32 v{P8+1}, v{P8+1}, v{P8+3}')
    A(f'v_add_f32 v{LS}, v{LS}, v{P8+5}')
    A(f'v_add_f32 v{LS}, v{LS}, v{P8+1}')
    for v in range(8):
        A(f's_mov_b64 exec, s[{64+2*v}:{65+2*v}]')
        A(f'v_mov_b64 {q(PV+4*v,2)}, {q(T,2)}')
        A(f'v_mov_b64 {q(PV+4*v+2,2)}, {q(T+2,2)}')
    A('s_mov_b64 exec, -1')
    poll_landed()
    order = [(i & 1) * 8 + (i >> 1) for i in range(16)]
    def vread(i):
        m = order[i]
        for kh in range(2):
            A(f'ds_read_b64_tr_b16 {q(KV+4*i+2*kh,2)}, v{VAC+(m&7)} offset:{16384+kh*8192+(m>>3)*256}')
    PRE = 7
    for i in range(PRE):
        vread(i)
    for i in range(16):
        issued = min(16, i + PRE)
        A(f's_waitcnt lgkmcnt({2*(issued-i-1)})')
        m = order[i]
        a = m >> 3
        if i == 15:
            A(f's_add_u32 s{sT}, s{sT}, 1')
            A(f'v_mov_b32 v14, s{sT}')
            A(f'ds_write_b32 v{CONA}, v14')
        A(f'v_mfma_f32_16x16x32_bf16 {q(O+4*a)}, {q(PV+4*(m&7))}, {q(KV+4*i)}, {q(O+4*a)}')
        if i + PRE < 16:
            vread(i + PRE)
    A(f's_add_u32 s{sNEED}, s{sNEED}, 1')
    A(f's_add_u32 s{sSLOT}, s{sSLOT}, {SLOT:#x}')
    A(f's_and_b32 s{sSLOT}, s{sSLOT}, 0x1ffff')
    A(f's_cmp_eq_u32 s{sT}, {o.tj1}')
    A('s_cbranch_scc1 .Ljob1')
    A(f's_cmp_eq_u32 s{sT}, {o.tj2}')
    A('s_cbranch_scc1 .Ljob2')
    A(f's_cmp_lt_u32 s{sT}, 64')
    A('s_cbranch_scc1 .Ltile')
    A('s_branch .Ltail')

    g.lab('.Ljob1')
    A('s_and_b32 s4, s2, 7')
    A('s_mul_i32 s4, s4, 28')
    A('s_lshr_b32 s5, s2, 3')
    A('s_add_u32 s4, s4, s5')
    A('s_cmp_lt_u32 s5, 28')
    A('s_cselect_b32 s4, s4, 0x20000')
    A('s_lshl_b32 s5, s4, 4')
    A('s_mul_i32 s6, s4, 7168')
    A('v_mul_u32_u24 v57, 3584, v1')
    for t in range(7):
        A(f's_mov_b32 m0, {STG + t*1024}')
        A(f's_add_u32 s7, s5, {t*64*3584:#x}')
        A(f'buffer_load_dwordx4 v57, s[{sW1}:{sW1+3}], s7 offen {o.wqflags} lds')
    for t in range(7):
        A(f's_mov_b32 m0, {STG + 7168 + t*1024}')
        A(f's_add_u32 s7, s6, {t*1024}')
        A(f'buffer_load_dwordx4 v56, s[{sW2}:{sW2+3}], s7 offen nt lds')
    A(f's_mov_b32 m0, {GS}')
    A('s_nop 0')
    A(f'buffer_load_dwordx4 v56, s[{sG}:{sG+3}], 0 offen lds')
    A('s_branch .Ltile')

    g.lab('.Ljob2')
    A('s_waitcnt vmcnt(0)')
    A(f'v_add_u32 v57, {GS}, v56')
    A(f'ds_read_b128 {q(TL)}, v57')
    A(f'v_add_u32 v57, {XS}, v56')
    A(f'ds_read_b128 {q(TL+4)}, v57')
    A(f'ds_read_b128 {q(TL+8)}, v57 offset:896')
    A('v_lshl_add_u32 v61, v3, 3, v4')
    A('v_lshlrev_b32 v61, 4, v61')
    A('v_and_b32 v14, 1, v5')
    A('v_lshl_add_u32 v61, v14, 3, v61')
    A(f'v_add_u32 v61, {STG}, v61')
    A('v_and_b32 v14, 1, v3')
    A('v_lshl_add_u32 v15, v14, 2, v4')
    A('v_mul_u32_u24 v62, 896, v15')
    A('v_lshrrev_b32 v15, 1, v3')
    A('v_lshl_add_u32 v62, v15, 5, v62')
    A('v_lshl_add_u32 v62, v5, 3, v62')
    A('v_mul_u32_u24 v63, 3584, v14')
    A('v_add_u32 v63, v63, v62')
    A(f'v_add_u32 v63, {STG}, v63')
    A(f'v_add_u32 v62, {STG+7168}, v62')
    A('s_waitcnt lgkmcnt(0)')
    for b in range(2):
        acc = TL + 12 + b
        for d in range(4):
            A(f'v_lshlrev_b32 v{TL+16}, 16, v{TL+d}')
            A(f'v_and_b32 v{TL+17}, 0xffff0000, v{TL+d}')
            A(f'v_lshlrev_b32 v{TL+18}, 16, v{TL+4+4*b+d}')
            A(f'v_and_b32 v{TL+19}, 0xffff0000, v{TL+4+4*b+d}')
            A(f'v_mul_f32 v{TL+16}, v{TL+16}, v{TL+18}')
            A(f'v_mul_f32 v{TL+17}, v{TL+17}, v{TL+19}')
            A(f'v_cvt_pk_bf16_f32 v{TL+18}, v{TL+16}, v{TL+17}')
            A(f'v_lshlrev_b32 v{TL+16}, 16, v{TL+18}')
            A(f'v_and_b32 v{TL+17}, 0xffff0000, v{TL+18}')
            if d == 0:
                A(f'v_add_f32 v{acc}, v{TL+16}, v{TL+17}')
            else:
                A(f'v_add_f32 v{acc}, v{acc}, v{TL+16}')
                A(f'v_add_f32 v{acc}, v{acc}, v{TL+17}')
    Z = TL + 12
    A('s_nop 1')
    A(f'v_permlane32_swap_b32 v{Z}, v{Z+1}')
    A(f'v_add_f32 v{Z}, v{Z}, v{Z+1}')
    A(f'v_mov_b32 v{Z+1}, v{Z}')
    A('s_nop 1')
    A(f'v_permlane16_swap_b32 v{Z}, v{Z+1}')
    A(f'v_add_f32 v{Z}, v{Z}, v{Z+1}')
    for rr in (8, 4, 2, 1):
        A('s_nop 1')
        A(f'v_add_f32_dpp v{Z}, v{Z}, v{Z} row_ror:{rr} {DPPM}')
    def rbf(r):
        A(f'v_cvt_pk_bf16_f32 v{r}, v{r}, v{r}')
        A(f'v_and_b32 v{r}, 0xffff0000, v{r}')
    rbf(Z)
    A(f'v_mul_f32 v{Z}, {f32(-LOG2E)}, v{Z}')
    A(f'v_exp_f32 v{Z}, v{Z}')
    A('s_nop 0')
    A(f'v_add_f32 v{Z}, 1.0, v{Z}')
    A(f'v_rcp_f32 v{G0}, v{Z}')
    A('s_nop 0')
    rbf(G0)
    A(f'v_sub_f32 v{Z}, 1.0, v{G0}')
    rbf(Z)
    A(f'v_mov_b32 v{G0+1}, v{G0}')
    A(f'v_mov_b32 v{Z+1}, v{Z}')
    A('s_nop 1')
    A(f'v_permlane32_swap_b32 v{G0}, v{G0+1}')
    A(f'v_permlane32_swap_b32 v{Z}, v{Z+1}')
    H = TL + 16
    for half in range(2):
        for tt in range(7):
            t = half * 7 + tt
            A(f'ds_read_b128 {q(KV+8*tt)}, v60 offset:{t*64}')
            A(f'ds_read_b64_tr_b16 {q(KV+8*tt+4,2)}, v61 offset:{t*512}')
            A(f'ds_read_b64_tr_b16 {q(KV+8*tt+6,2)}, v61 offset:{t*512+64}')
        A('s_waitcnt lgkmcnt(0)')
        for tt in range(7):
            A(f'v_mfma_f32_16x16x32_bf16 {q(H)}, {q(KV+8*tt+4)}, {q(KV+8*tt)}, {"0" if (half==0 and tt==0) else q(H)}')
        A('s_nop 7')
    for i in range(14):
        A(f'ds_read_b64_tr_b16 {q(KV+2*i,2)}, v62 offset:{i*64}')
    for r in range(4):
        rbf(H + r)
    for r in range(4):
        A(f'v_mul_f32 v{H+4+r}, {f32(-LOG2E)}, v{H+r}')
    for r in range(4):
        A(f'v_exp_f32 v{H+4+r}, v{H+4+r}')
    A('s_nop 0')
    for r in range(4):
        A(f'v_add_f32 v{H+4+r}, 1.0, v{H+4+r}')
    for r in range(4):
        A(f'v_rcp_f32 v{H+4+r}, v{H+4+r}')
    A('s_nop 0')
    for r in range(4):
        A(f'v_mul_f32 v{H+r}, v{H+r}, v{H+4+r}')
    A(f'v_cvt_pk_bf16_f32 v{H+4}, v{H}, v{H+1}')
    A(f'v_cvt_pk_bf16_f32 v{H+5}, v{H+2}, v{H+3}')
    A('s_mov_b32 s4, 0x00030003')
    A('s_mov_b32 s5, 0x00300030')
    A('s_mov_b32 s6, 0x03000300')
    A('s_mov_b32 s7, 0x30003000')
    A(f'v_cndmask_b32 v{H+8}, 0, v{H+4}, s[4:5]')
    A(f'v_cndmask_b32 v{H+9}, 0, v{H+5}, s[4:5]')
    A(f'v_cndmask_b32 v{H+10}, 0, v{H+4}, s[6:7]')
    A(f'v_cndmask_b32 v{H+11}, 0, v{H+5}, s[6:7]')
    A('s_waitcnt lgkmcnt(0)')
    A('s_nop 0')
    FD = KV + 32
    for i in range(7):
        A(f'v_mfma_f32_16x16x16_bf16 {q(FD+4*i)}, {q(H+8,2)}, {q(KV+4*i,2)}, 0')
    for i in range(7):
        A(f'v_mfma_f32_16x16x16_bf16 {q(FD+4*i)}, {q(H+10,2)}, {q(KV+4*i+2,2)}, {q(FD+4*i)}')
    A('s_lshr_b32 s4, s2, 4')
    A('s_lshl_b32 s4, s4, 8')
    A('s_bfe_u32 s5, s2, 0x20002')
    A('s_lshl_b32 s5, s5, 5')
    A('s_add_u32 s4, s4, s5')
    A('s_and_b32 s5, s2, 3')
    A('s_lshl_b32 s5, s5, 2')
    A('s_add_u32 s4, s4, s5')
    A('s_mul_i32 s4, s4, 896')
    A('s_mov_b32 exec_hi, 0x00ffffff')
    for k in range(16):
        a, nn, u = k >> 3, (k >> 1) & 3, k & 1
        A(f's_mov_b32 m0, {STG + k*896}')
        A(f's_add_u32 s7, s4, {(128*a+16*u+nn)*896}')
        A(f'buffer_load_dwordx4 v56, s[{sWO}:{sWO+3}], s7 offen nt lds')
    A('s_mov_b64 exec, -1')
    for i in range(7):
        A(f'v_mul_f32 v{FP+2*i}, v{Z}, v{FD+4*i}')
        A(f'v_mul_f32 v{FP+2*i+1}, v{Z+1}, v{FD+4*i+1}')
    A('s_branch .Ltile')

    g.L.append('.p2align 6')
    g.lab('.Ltail')
    g.stamp(3)
    RG = TL
    HG = TL + 16
    A(f'v_mov_b32 v15, v{LS}')
    A('v_lshrrev_b32 v57, 2, v1')
    A('v_lshlrev_b32 v57, 7, v57')
    A(f'v_permlane16_swap_b32 v{LS}, v15')
    A('v_lshl_add_u32 v57, v5, 4, v57')
    A(f'v_add_f32 v{LS}, v{LS}, v15')
    A(f'v_mov_b32 v15, v{LS}')
    A('s_lshl_b32 s4, s2, 12')
    A(f's_add_u32 s4, s4, {REC:#x}')
    A(f'v_permlane32_swap_b32 v{LS}, v15')
    A(f'v_add_f32 v{LS}, v{LS}, v15')
    for h in range(2):
        for a in range(2):
            A(f'v_mov_b32 v{RG+8*h+4*a+3}, v{TAG}')
    for h in range(2):
        for a in range(2):
            r = RG + 8*h + 4*a
            src = NM if a == 0 else LS
            A(f'v_mov_b32_dpp v{r+2}, v{src} quad_perm:[{2*h},{2*h},{2*h},{2*h}] {DPPM}')
            A(f'v_mov_b64 {q(r,2)}, {q(O+4*a+2*h,2)}')
            A(f'buffer_store_dwordx4 {q(r)}, v57, s[{sWS}:{sWS+3}], s4 offen offset:{h*2048+a*64} {o.stflags}')
    A('v_lshrrev_b32 v58, 5, v1')
    A('v_lshl_add_u32 v58, v58, 2, v4')
    A('v_lshlrev_b32 v58, 12, v58')
    A('v_and_b32 v14, 1, v3')
    A('v_lshl_add_u32 v58, v14, 6, v58')
    A('v_lshl_add_u32 v58, v5, 4, v58')
    A('s_lshr_b32 s4, s2, 5')
    A('s_lshl_b32 s4, s4, 16')
    A('s_and_b32 s5, s2, 31')
    A('s_lshl_b32 s5, s5, 7')
    A('s_add_u32 s4, s4, s5')
    A(f's_add_u32 s4, s4, {REC:#x}')
    A('s_add_u32 s5, s4, 0x8000')
    A('s_add_u32 s6, s4, 0x80000')
    A('s_add_u32 s7, s4, 0x88000')
    WF = KV
    A('s_waitcnt vmcnt(4)')
    for i in range(14):
        A(f'ds_read_b64_tr_b16 {q(WF+4*i,2)}, v63 offset:{i*64}')
        A(f'ds_read_b64_tr_b16 {q(WF+4*i+2,2)}, v63 offset:{i*64+3584}')
    A('s_mov_b32 s64, 0x00030003')
    A('s_mov_b32 s65, 0x00300030')
    A('s_mov_b32 s66, 0x03000300')
    A('s_mov_b32 s67, 0x30003000')
    A(f's_mul_i32 s68, s2, {YROW}')
    A(f's_add_u32 s68, s68, {YB:#x}')
    A('s_add_u32 s69, s68, 0x1000')
    g.lab('.Lh1poll')
    for i in range(4):
        A(f'buffer_load_dwordx4 {q(HG+4*i)}, v58, s[{sWS}:{sWS+3}], s{4+i} offen {o.ldflags}')
    A('s_waitcnt vmcnt(0)')
    A(f'v_xor_b32 v14, v{HG+3}, v{TAG}')
    A(f'v_xor_b32 v15, v{HG+7}, v{TAG}')
    A(f'v_xor_b32 v36, v{HG+11}, v{TAG}')
    A(f'v_xor_b32 v37, v{HG+15}, v{TAG}')
    A('v_or3_b32 v14, v14, v15, v36')
    A('v_or_b32 v14, v14, v37')
    A('v_cmp_ne_u32 vcc, 0, v14')
    A('s_cbranch_vccz .Lh1ok')
    if o.h1sleep:
        A(f's_sleep {o.h1sleep}')
    A(f's_sub_u32 s{sBUD}, s{sBUD}, 64')
    A('s_cbranch_scc0 .Lh1poll')
    A(f's_mov_b32 s{sBUD}, 0')
    g.lab('.Lh1ok')
    g.stamp(4)
    for i in range(4):
        A(f'v_mov_b32 v{HG+4*i+3}, v{HG+4*i+2}')
    A('s_nop 0')
    for i in range(4):
        A(f'v_permlane16_swap_b32 v{HG+4*i+2}, v{HG+4*i+3}')
    A(f'v_max_f32 v36, v{HG+2}, v{HG+6}')
    A(f'v_max_f32 v37, v{HG+10}, v{HG+14}')
    A('s_nop 0')
    for rr in (4, 8):
        A(f'v_max_f32_dpp v36, v36, v36 row_ror:{rr} {DPPM}')
        A(f'v_max_f32_dpp v37, v37, v37 row_ror:{rr} {DPPM}')
        A('s_nop 0')
    A('v_mov_b32 v38, v36')
    A('v_mov_b32 v39, v37')
    A('s_nop 0')
    A('v_permlane32_swap_b32 v36, v38')
    A('v_permlane32_swap_b32 v37, v39')
    A('v_max_f32 v36, v36, v38')
    A('v_max_f32 v37, v37, v39')
    for i in range(4):
        A(f'v_sub_f32 v{40+i}, v{HG+4*i+2}, v{36+(i>>1)}')
    for i in range(4):
        A(f'v_exp_f32 v{40+i}, v{40+i}')
    A('s_nop 0')
    for b in range(2):
        for k, off in enumerate((0, 1, 3)):
            A(f'v_mul_f32 v{44+3*b+k}, v{40+2*b}, v{HG+8*b+off}')
        for k, off in enumerate((0, 1, 3)):
            A(f'v_fmac_f32 v{44+3*b+k}, v{41+2*b}, v{HG+8*b+4+off}')
    A('s_nop 0')
    for k in range(3):
        A(f'v_permlane32_swap_b32 v{44+k}, v{47+k}')
    for k in range(3):
        A(f'v_add_f32 v{44+k}, v{44+k}, v{47+k}')
    for rr in (4, 8):
        for k in range(3):
            A(f'v_add_f32_dpp v{44+k}, v{44+k}, v{44+k} row_ror:{rr} {DPPM}')
    A('v_rcp_f32 v46, v46')
    A('s_mov_b32 vcc_lo, 0xaaaaaaaa')
    A('s_mov_b32 vcc_hi, 0xaaaaaaaa')
    A('v_mul_f32 v44, v44, v46')
    A('v_mul_f32 v45, v45, v46')
    A('v_cvt_pk_bf16_f32 v44, v44, v45')
    A('v_mov_b32 v45, v44')
    A('s_nop 1')
    A('v_permlane32_swap_b32 v44, v45')
    A('s_nop 1')
    for nn in range(4):
        A(f'v_mov_b32_dpp v{36+nn}, v45 quad_perm:[{nn},{nn},{nn},{nn}] {DPPM}')
    for nn in range(4):
        A(f'v_cndmask_b32_dpp v{36+nn}, v44, v{36+nn}, vcc quad_perm:[{nn},{nn},{nn},{nn}] {DPPM}')
    for nn in range(4):
        A(f'v_cndmask_b32 v{48+nn}, 0, v{36+nn}, s[64:65]')
    for nn in range(4):
        A(f'v_cndmask_b32 v{52+nn}, 0, v{36+nn}, s[66:67]')
    A('s_waitcnt lgkmcnt(0)')
    YD = QF
    for i in range(7):
        A(f'v_mfma_f32_16x16x32_bf16 {q(YD+4*i)}, {q(48)}, {q(WF+8*i)}, 0')
    for i in range(7):
        A(f'v_mfma_f32_16x16x32_bf16 {q(YD+4*i)}, {q(52)}, {q(WF+8*i+4)}, {q(YD+4*i)}')
    YG = PV
    for i in range(7):
        A(f'v_mov_b32 v{YG+4*i+3}, v{TAG}')
    for i in range(7):
        if i == 6:
            A('s_nop 1')
        A(f'v_fma_f32 v{YG+4*i}, v{G0}, v{YD+4*i}, v{FP+2*i}')
        A(f'v_fma_f32 v{YG+4*i+1}, v{G0+1}, v{YD+4*i+1}, v{FP+2*i+1}')
        A(f'buffer_store_dwordx4 {q(YG+4*i)}, v56, s[{sWS}:{sWS+3}], s{68+(i>>2)} offen offset:{(i&3)*1024} {o.stflags}')
    g.stamp(5)
    A('s_cmp_ge_u32 s2, 112')
    A('s_cbranch_scc1 .Lfin')
    A('v_lshrrev_b32 v57, 2, v1')
    A(f'v_mul_u32_u24 v57, {YROW}, v57')
    A('v_lshl_add_u32 v57, v5, 4, v57')
    A('s_lshl_b32 s4, s2, 6')
    A(f's_add_u32 s64, s4, {YB:#x}')
    for i in range(1, 16):
        A(f's_add_u32 s{64+i}, s64, {i*16*YROW:#x}')
    A('v_lshrrev_b32 v58, 5, v1')
    A('v_mul_u32_u24 v58, 896, v58')
    A('v_lshl_add_u32 v58, v5, 1, v58')
    A('s_lshl_b32 s4, s2, 3')
    g.lab('.Lh2poll')
    for i in range(16):
        A(f'buffer_load_dwordx4 {q(KV+4*i)}, v57, s[{sWS}:{sWS+3}], s{64+i} offen {o.ldflags}')
    for i in range(16):
        A(f's_waitcnt vmcnt({15-i})')
        if i == 0:
            A(f'v_xor_b32 v14, v{KV+3}, v{TAG}')
            A(f'v_mov_b64 v[36:37], {q(KV,2)}')
        else:
            A(f'v_xor_b32 v15, v{KV+4*i+3}, v{TAG}')
            A(f'v_pk_add_f32 v[36:37], v[36:37], {q(KV+4*i,2)}')
            A('v_or_b32 v14, v14, v15')
    A('v_cmp_ne_u32 vcc, 0, v14')
    A('s_cbranch_vccz .Lh2ok')
    A(f's_sub_u32 s{sBUD}, s{sBUD}, 64')
    A('s_cbranch_scc0 .Lh2poll')
    A(f's_mov_b32 s{sBUD}, 0')
    g.lab('.Lh2ok')
    A('v_permlane32_swap_b32 v36, v37')
    A('v_add_f32 v36, v36, v37')
    A('v_mov_b32 v37, v36')
    A('s_nop 1')
    A('v_permlane16_swap_b32 v36, v37')
    A('v_add_f32 v36, v36, v37')
    for rr in (4, 8):
        A('s_nop 1')
        A(f'v_add_f32_dpp v36, v36, v36 row_ror:{rr} {DPPM}')
    A('v_cvt_pk_bf16_f32 v36, v36, v36')
    A('s_mov_b32 exec_lo, 0xf')
    A('s_mov_b32 exec_hi, 0xf')
    A(f'buffer_store_short v36, v58, s[{sOUT}:{sOUT+3}], s4 offen')
    A('s_cmp_lg_u32 s2, 0')
    A('s_cbranch_scc1 .Lfin')
    A('s_mov_b64 exec, 1')
    A(f'buffer_store_dword v{TAG}, v59, s[{sWS}:{sWS+3}], 0 offen')
    g.lab('.Lfin')
    if o.diag:
        g.stamp(6)
        A('s_mov_b64 exec, 1')
        A('s_lshl_b32 s4, s2, 7')
        A(f's_add_u32 s4, s4, {STAMP:#x}')
        for k in range(7):
            A(f'v_mov_b32 v14, s{86+2*k}')
            A(f'v_mov_b32 v15, s{87+2*k}')
            A(f'buffer_store_dwordx2 v[14:15], v59, s[{sWS}:{sWS+3}], s4 offen offset:{8*k}')
            A('s_nop 1')
        if o.dbgtime:
            g.srd(8, 56, 256)
            for k in range(7):
                A(f's_not_b32 s4, s{86+2*k}')
                A('v_mov_b32 v14, s4')
                A(f'v_mov_b32 v15, s{86+2*k}')
                A(f'buffer_atomic_umax v14, v59, s[8:11], 0 offen offset:{8*k} sc1')
                A(f'buffer_atomic_umax v15, v59, s[8:11], 0 offen offset:{8*k+4} sc1')
                A('s_nop 1')
    g.lab('.Lexit')
    A('s_endpgm')

    ref = open('cdna_kernels/' + NAME + '.s.ref').read().split('\n')
    head = [l for l in ref if l.startswith(';') and '@launch' not in l and 'Override launch' not in l and 'grid=ceil' not in l]
    txt = '\n'.join(head) + '\n'
    txt += f'; @launch grid=(256,1,1) block=(128,1,1) lds={LDS_BYTES}\n'
    txt += '.amdgcn_target "amdgcn-amd-amdhsa--gfx950"\n.text\n'
    txt += '\n'.join(g.L) + '\n'
    txt += f'''.section .rodata,"a"
.p2align 6
.amdhsa_kernel {K}
  .amdhsa_next_free_vgpr 256
  .amdhsa_next_free_sgpr 102
  .amdhsa_accum_offset 256
  .amdhsa_group_segment_fixed_size 0
  .amdhsa_kernarg_size 96
  .amdhsa_user_sgpr_count 2
  .amdhsa_user_sgpr_kernarg_segment_ptr 1
  .amdhsa_system_sgpr_workgroup_id_x 1
.end_amdhsa_kernel
'''
    return txt


def parser():
    p = argparse.ArgumentParser()
    p.add_argument('-o', default='cdna_kernels/' + NAME + '.s')
    p.add_argument('--window', type=int, default=20)
    p.add_argument('--gs', type=int, default=2)
    p.add_argument('--unit', type=int, default=8)
    p.add_argument('--idxsh', type=int, default=3)
    p.add_argument('--diag', action='store_true')
    p.add_argument('--dbgtime', action='store_true')
    p.add_argument('--kflags', default='nt')
    p.add_argument('--vflags', default='nt')
    p.add_argument('--wqflags', default='nt')
    p.add_argument('--stflags', default='sc1')
    p.add_argument('--ldflags', default='sc1')
    p.add_argument('--tj1', type=int, default=10)
    p.add_argument('--tj2', type=int, default=14)
    p.add_argument('--h1sleep', type=int, default=4)
    return p


if __name__ == '__main__':
    o = parser().parse_args()
    open(o.o, 'w').write(gen(o))
```

```python
import sys, struct, argparse

NAME = 'gated_mix__gqa_block_cached__dense_activation_silu__decode'

RING = 0
SLOT = 32768
STG = 131072
W2S = STG + 14336
XS = W2S + 8192
GS = XS + 2048
QS = GS + 1024
FL = QS + 1024
LDS_BYTES = FL + 512

QP = 0x20000
HP = 0x40000
REC = 0x100000
YB = 0x200000
YROW = 7168
WS_BYTES = 0x400000
STAMP = 0x400000
DONE = 0x10000
WDONE = 0x20000

def f32(x):
    return '0x%08x' % struct.unpack('<I', struct.pack('<f', x))[0]

LOG2E = 1.4426950408889634
DPPM = 'row_mask:0xf bank_mask:0xf'


class G:
    def __init__(self, o):
        self.L = []
        self.o = o
        self.uid = 0

    def A(self, s):
        self.L.append('    ' + s)

    def lab(self, s):
        self.L.append(s + ':')

    def new(self, p):
        self.uid += 1
        return f'.L{p}_{self.uid}'

    def srd(self, d, ptr, nbytes):
        A = self.A
        A(f's_mov_b32 s{d}, s{ptr}')
        A(f's_mov_b32 s{d+1}, s{ptr+1}')
        A(f's_mov_b32 s{d+2}, {nbytes:#x}')
        A(f's_mov_b32 s{d+3}, 0x20000')

    def stamp(self, k):
        if self.o.diag:
            self.A(f's_memrealtime s[{86+2*k}:{87+2*k}]')
            self.A('s_waitcnt lgkmcnt(0)')

    def apoll(self, name, loads, tagregs, masks, TAG, sBUD, sleep, slow=None, between=None):
        A = self.A
        for ld in loads:
            A(ld)
        if between:
            between()
        self.lab(f'.L{name}_loop')
        A(f's_sleep {sleep}')
        for t, m in zip(tagregs, masks):
            A(f'v_cmp_ne_u32 s[{m}:{m+1}], v{t}, v{TAG}')
        A(f's_or_b64 vcc, s[{masks[0]}:{masks[0]+1}], s[{masks[1]}:{masks[1]+1}]')
        for m in masks[2:]:
            A(f's_or_b64 vcc, vcc, s[{m}:{m+1}]')
        A(f's_cbranch_scc0 .L{name}_ok')
        for ld, m in zip(loads, masks):
            sk = self.new('sk')
            A(f's_mov_b64 exec, s[{m}:{m+1}]')
            A(f's_cbranch_execz {sk}')
            A(ld)
            self.lab(sk)
        A('s_mov_b64 exec, -1')
        if slow:
            thr, extra = slow
            sk = self.new('sk')
            A('s_bcnt1_i32_b64 vcc_lo, vcc')
            A(f's_cmp_le_u32 vcc_lo, {thr}')
            A(f's_cbranch_scc1 {sk}')
            A(f's_sleep {extra}')
            self.lab(sk)
        A(f's_sub_u32 s{sBUD}, s{sBUD}, 16')
        A(f's_cbranch_scc0 .L{name}_loop')
        A(f's_mov_b32 s{sBUD}, 0')
        self.lab(f'.L{name}_ok')


def q(b, n=4):
    return f'v[{b}:{b+n-1}]'


def gen(o):
    g = G(o)
    A = g.A
    W = o.window
    K = NAME + '_kernel'
    pX, pK, pV, pWQ, pWO, pW1, pW2, pG, pOUT, pWS = 36, 38, 40, 42, 44, 48, 50, 52, 54, 58

    g.L.append(f'.globl {K}\n.p2align 8\n.type {K},@function\n{K}:')
    A('s_cmp_ge_u32 s2, 256')
    A('s_cbranch_scc1 .Lexit')
    A('s_load_dwordx16 s[36:51], s[0:1], 0')
    A('s_load_dwordx8 s[52:59], s[0:1], 64')
    A('v_lshrrev_b32 v1, 6, v0')
    A('v_lshlrev_b32 v8, 2, v0')
    A('v_readfirstlane_b32 s3, v1')
    A(f'v_add_u32 v8, {FL}, v8')
    A('v_mov_b32 v14, 0')
    A('ds_write_b32 v8, v14')
    A('v_and_b32 v1, 63, v0')
    A('s_cmp_lg_u32 s3, 0')
    A('s_cbranch_scc1 .Lcons')

    gs, U, sh = o.gs, o.unit, o.idxsh
    lg = gs.bit_length() - 1
    A(f's_lshr_b32 s17, s2, {sh}')
    A(f's_and_b32 s17, s17, {gs-1}')
    A(f's_lshr_b32 s18, s2, {sh+lg}')
    A(f's_lshl_b32 s18, s18, {sh}')
    A(f's_and_b32 s19, s2, {(1<<sh)-1}')
    A('s_or_b32 s18, s18, s19')
    A(f's_lshl_b32 s16, s18, {20+lg}')
    A(f's_mul_i32 s17, s17, {U*4096}')
    A('s_add_u32 s16, s16, s17')
    A('v_lshrrev_b32 v3, 5, v1')
    A('v_and_b32 v5, 31, v1')
    A('v_lshlrev_b32 v4, 1, v3')
    A('v_xor_b32 v5, v5, v4')
    A('v_lshlrev_b32 v5, 4, v5')
    A('v_lshl_add_u32 v20, v3, 9, v5')
    for i in range(1, 4):
        A(f'v_xor_b32 v{20+i}, {i*64}, v20')
    A(f'v_mov_b32 v7, {FL+256}')
    A('v_lshlrev_b32 v24, 4, v1')
    j0 = (W - 1) % 16
    lag = (W - 1) // 16 + 1
    A(f's_mov_b32 s22, {-lag}')
    A('s_mov_b32 s20, -3')
    A('s_mov_b32 s24, 0')
    A(f's_mov_b32 s25, {1<<22}')
    A('s_lshr_b32 s4, s2, 4')
    A('s_lshl_b32 s4, s4, 8')
    A('s_bfe_u32 s5, s2, 0x20002')
    A('s_lshl_b32 s5, s5, 5')
    A('s_add_u32 s4, s4, s5')
    A('s_and_b32 s5, s2, 3')
    A('s_lshl_b32 s5, s5, 2')
    A('s_add_u32 s4, s4, s5')
    A('s_mul_i32 s4, s4, 896')
    A('s_mul_i32 s6, s2, 7168')
    A('s_waitcnt lgkmcnt(0)')
    g.srd(8, pK, 0x10000000)
    g.srd(12, pV, 0x10000000)
    g.srd(60, pWO, 4096 * 896)
    g.srd(64, pW2, 1792 * 896)
    if o.diag:
        g.srd(28, pWS, STAMP + 0x20000)
        A('v_mov_b32 v30, 0')
    A('s_barrier')
    g.L.append('.p2align 6')
    g.lab('.Lload')
    for tt in range(4):
        A('s_cmp_lt_i32 s24, s20')
        A(f's_cbranch_scc1 .Lspin{tt}')
        g.lab(f'.Lgo{tt}')
        for half in (0, 1):
            for j in range(16):
                if j % 4 == 0:
                    k = tt * 4 + o.perm[j // 4]
                    A(f's_mov_b32 m0, {RING + tt*SLOT + half*16384 + j*1024:#x}')
                    A(f's_add_u32 s23, s16, {((k//U)*gs*U + k % U)*4096:#x}')
                A(f's_waitcnt vmcnt({W-1})')
                A(f'buffer_load_dwordx4 v{20+(j&3)}, s[{8+4*half}:{11+4*half}], s23 offen offset:{(j&3)*1024} {(o.kflags, o.vflags)[half]} lds')
                if j == j0:
                    A('s_add_u32 s22, s22, 1')
                    A('s_max_i32 s21, s22, 0')
                    A('v_mov_b32 v14, s21')
                    A('ds_write_b32 v8, v14')
                if o.prog and half == 0 and j == 0:
                    A('s_memrealtime s[86:87]')
                if half == 1 and j == 9:
                    A('ds_read_b32 v15, v7')
                    A('s_add_u32 s20, s20, 1')
                if half == 1 and j == 14:
                    A('s_waitcnt lgkmcnt(0)')
                    A('v_readfirstlane_b32 s24, v15')
                    if tt == 3:
                        A(f's_add_u32 s16, s16, {16384*gs*4:#x}')
                if o.prog and half == 1 and j == 15:
                    A('s_add_u32 m0, s20, 2')
                    A('s_nop 0')
                    A('v_writelane_b32 v30, s86, m0')
    A('s_cmp_lt_i32 s20, 61')
    A('s_cbranch_scc1 .Lload')
    NX = 23
    todo = list(range(128 - lag + 1, 129))
    def flag(c):
        A(f's_add_u32 s22, s22, {1 + (DONE if c == 128 else 0):#x}')
        A('v_mov_b32 v14, s22')
        A('ds_write_b32 v8, v14')
        if c == 128 and o.diag:
            A('s_memrealtime s[86:87]')
    for e in range(NX):
        if e < 7:
            A(f's_mov_b32 m0, {W2S + e*1024}')
            A(f's_add_u32 s23, s6, {e*1024}')
            srd = 64
        else:
            k = e - 7
            a_, nn, u = k >> 3, (k >> 1) & 3, k & 1
            if k == 0:
                A('s_mov_b32 exec_hi, 0x00ffffff')
            A(f's_mov_b32 m0, {STG + k*896}')
            A(f's_add_u32 s23, s4, {(128*a_+16*u+nn)*896}')
            srd = 60
        A(f's_waitcnt vmcnt({W-1})')
        while todo and 2048 + e >= 16 * todo[0] - 1 + W:
            flag(todo.pop(0))
        A(f'buffer_load_dwordx4 v24, s[{srd}:{srd+3}], s23 offen nt lds')
    for c in todo:
        A(f's_waitcnt vmcnt({2048 + NX - 16*c})')
        flag(c)
    A('s_waitcnt vmcnt(0)')
    A(f's_add_u32 s22, s22, {WDONE:#x}')
    A('v_mov_b32 v14, s22')
    A('ds_write_b32 v8, v14')
    if o.diag:
        A('s_waitcnt lgkmcnt(0)')
        A('v_mov_b32 v16, s86')
        A('v_mov_b32 v17, s87')
        A('v_mov_b32 v18, s22')
        A('v_mov_b32 v19, 0')
        A('s_lshl_b32 s17, s2, 7')
        A(f's_add_u32 s17, s17, {STAMP+64:#x}')
        A('s_mov_b64 exec, 1')
        A('buffer_store_dwordx4 v[16:19], v19, s[28:31], s17 offen')
        A('s_mov_b64 exec, -1')
        A('v_lshlrev_b32 v19, 2, v1')
        A('s_lshl_b32 s17, s2, 8')
        A(f's_add_u32 s17, s17, {STAMP+0x10000:#x}')
        A('buffer_store_dword v30, v19, s[28:31], s17 offen')
    A('s_endpgm')
    for tt in range(4):
        g.lab(f'.Lspin{tt}')
        A('ds_read_b32 v15, v7')
        A('s_waitcnt lgkmcnt(0)')
        A('v_readfirstlane_b32 s24, v15')
        A('s_cmp_ge_i32 s24, s20')
        A(f's_cbranch_scc1 .Lgo{tt}')
        A('s_sleep 1')
        A('s_sub_u32 s25, s25, 1')
        A(f's_cbranch_scc0 .Lspin{tt}')
        A('s_mov_b32 s25, 0')
        A(f's_branch .Lgo{tt}')

    sX, sWQ, sWS, sW1, sG, sOUT = 8, 12, 16, 24, 32, 60
    TAG, LNDA, CONA, KA0, VA0, M, NM, LS = 6, 7, 8, 9, 10, 11, 12, 13
    KAC, VAC, O, S, T, P8 = 16, 20, 28, 36, 44, 48
    KV, QF, PV, FP, G0, TL = 64, 128, 160, 192, 206, 208
    HV = 240
    HA = 250
    OMG = 254
    sT, sSLOT, sLND, sC, sNEED, sBUD = 81, 82, 83, 84, 85, 80
    sRAW = 100
    WS = f's[{sWS}:{sWS+3}]'
    g.L.append('.p2align 6')
    g.lab('.Lcons')
    A('v_lshlrev_b32 v56, 4, v1')
    A('v_lshrrev_b32 v58, 3, v1')
    A('v_and_b32 v59, 7, v1')
    A('v_lshlrev_b32 v57, 13, v58')
    A('v_lshl_add_u32 v57, v59, 4, v57')
    A('v_mul_u32_u24 v58, 3584, v58')
    A('v_lshl_add_u32 v58, v59, 4, v58')
    A('v_mov_b32 v59, 0')
    A('v_and_b32 v2, 15, v1')
    A('v_lshrrev_b32 v3, 4, v1')
    A('v_bfe_u32 v4, v1, 2, 2')
    A('v_and_b32 v5, 3, v1')
    A('s_and_b32 s4, s2, 3')
    A(f's_mul_i32 s5, s4, {112*8192}')
    A('s_lshr_b32 s6, s2, 2')
    A('s_lshl_b32 s6, s6, 7')
    A('s_add_u32 s5, s5, s6')
    A('s_and_b32 s20, s2, 7')
    A(f's_mul_i32 s21, s20, {56*3584}')
    A('s_lshr_b32 s22, s2, 3')
    A('s_lshl_b32 s23, s22, 7')
    A('s_add_u32 s21, s21, s23')
    A('s_cmp_lt_u32 s2, 224')
    A('s_cselect_b32 s21, s21, 0x200000')
    A('s_waitcnt lgkmcnt(0)')
    g.srd(sWS, pWS, WS_BYTES + (0x10000 if o.diag else 0))
    g.srd(sX, pX, 1792)
    g.srd(sWQ, pWQ, 448 * 8192)
    if o.cfirst < 0:
        A('s_barrier')
    g.stamp(0)
    A(f'buffer_load_dword v{TAG}, v59, {WS}, 0 offen')
    A(f's_mov_b32 m0, {XS}')
    A('s_nop 0')
    A(f'buffer_load_dwordx4 v56, s[{sX}:{sX+3}], 0 offen lds')
    A(f'buffer_load_dwordx4 v56, s[{sX}:{sX+3}], 0 offen offset:1024 lds')
    for t in range(14):
        if o.cfirst == t:
            A('s_barrier')
        A(f's_mov_b32 m0, {STG + t*1024}')
        A(f's_add_u32 s6, s5, {t*65536:#x}')
        A(f'buffer_load_dwordx4 v57, s[{sWQ}:{sWQ+3}], s6 offen {o.wqflags} lds')
    if o.cfirst == 14:
        A('s_barrier')
    g.srd(sW1, pW1, 448 * 3584)
    g.srd(sG, pG, 896)
    A(f's_mov_b32 m0, {GS}')
    g.srd(sOUT, pOUT, 1792)
    A(f'buffer_load_dwordx4 v56, s[{sG}:{sG+3}], 0 offen lds')
    for t in range(8):
        A(f's_mov_b32 m0, {W2S + t*1024}')
        if t < 7:
            A(f's_add_u32 s6, s21, {t*8*3584:#x}')
        else:
            A('s_mov_b32 s6, 0x200000')
        A(f'buffer_load_dwordx4 v58, s[{sW1}:{sW1+3}], s6 offen nt lds')
    if o.cfirst > 14:
        A('s_barrier')
    NW1 = 9
    A('v_and_b32 v58, 1, v2')
    A('v_mul_u32_u24 v60, 896, v58')
    A('v_lshl_add_u32 v60, v3, 4, v60')
    A(f'v_add_u32 v60, {XS}, v60')
    A('v_lshl_add_u32 v61, v3, 3, v4')
    A('v_lshlrev_b32 v61, 7, v61')
    A('v_lshl_add_u32 v61, v5, 3, v61')
    A(f'v_add_u32 v61, {STG}, v61')
    A('v_lshl_add_u32 v63, v3, 2, v4')
    A('v_lshlrev_b32 v63, 7, v63')
    A('v_lshl_add_u32 v63, v5, 3, v63')
    A(f'v_add_u32 v63, {STG+96*128}, v63')
    A('s_mul_i32 s6, s4, 224')
    A('v_add_u32 v57, s6, v60')
    A('v_lshlrev_b32 v55, 3, v3')
    A('v_sub_u32 v55, v57, v55')
    A('s_mul_i32 s6, s20, 112')
    A('v_add_u32 v54, s6, v60')
    A('v_lshlrev_b32 v62, 16, v58')
    A('v_bfe_u32 v14, v2, 1, 2')
    A('v_lshl_add_u32 v62, v14, 6, v62')
    A('v_lshl_add_u32 v62, v3, 4, v62')
    A('v_lshlrev_b32 v53, 7, v14')
    A('v_lshl_add_u32 v53, v58, 5, v53')
    A('v_lshrrev_b32 v14, 1, v3')
    A('v_lshl_add_u32 v53, v14, 6, v53')
    A('v_and_b32 v14, 1, v3')
    A('v_lshl_add_u32 v53, v14, 4, v53')
    A(f'v_bfe_u32 v{HV+4}, v1, 2, 3')
    A(f'v_lshlrev_b32 v{HV+4}, 9, v{HV+4}')
    A(f'v_lshl_add_u32 v{HV+4}, v5, 4, v{HV+4}')
    A('v_and_b32 v14, 7, v2')
    A('v_lshlrev_b32 v14, 1, v14')
    A('v_xor_b32 v14, v14, v3')
    A('v_lshlrev_b32 v14, 4, v14')
    A(f'v_lshl_add_u32 v{KA0}, v2, 9, v14')
    A('v_lshl_add_u32 v14, v3, 2, v4')
    A('v_and_b32 v15, 7, v14')
    A('v_lshlrev_b32 v15, 5, v15')
    A('v_lshl_add_u32 v15, v5, 3, v15')
    A(f'v_lshl_add_u32 v{VA0}, v14, 9, v15')
    A(f'v_mov_b32 v{LNDA}, {FL}')
    for v in range(8):
        qq, u = v >> 1, v & 1
        m16 = (1 << (4*qq+u)) | (1 << (4*qq+u+2))
        m32 = m16 | (m16 << 16)
        A(f's_mov_b32 s{64+2*v}, {m32:#x}')
        A(f's_mov_b32 s{65+2*v}, {m32:#x}')
    A(f's_mov_b32 s{sC}, {f32(0.0625*LOG2E)}')
    A(f's_mov_b32 s{sBUD}, {1<<22}')
    A(f's_mov_b32 s{sLND}, 0')
    A(f's_mov_b32 s{sRAW}, 0')
    A(f's_mov_b32 s{sT}, 0')
    A(f's_mov_b32 s{sSLOT}, 0')
    A('s_mov_b32 s7, 1664525')
    A('s_lshr_b32 s5, s2, 5')
    A('s_lshl_b32 s5, s5, 13')
    A('s_lshl_b32 s4, s4, 11')
    A('s_add_u32 s5, s5, s4')
    A('s_bfe_u32 s4, s2, 0x30002')
    A('s_lshl_b32 s4, s4, 8')
    A('s_add_u32 s5, s5, s4')
    A(f's_add_u32 s5, s5, {QP:#x}')
    A('s_lshr_b32 s6, s2, 4')
    A('s_lshl_b32 s6, s6, 13')
    A(f's_add_u32 s6, s6, {QP:#x}')
    A('s_add_u32 s4, s6, 0x1000')
    A('s_lshl_b32 s21, s2, 9')
    A(f's_add_u32 s21, s21, {HP:#x}')
    A('s_lshl_b32 s22, s22, 12')
    A('s_lshl_b32 s20, s20, 6')
    A('s_add_u32 s22, s22, s20')
    A(f's_add_u32 s22, s22, {HP:#x}')
    for c in range(1, 4):
        m16 = (3 << (2*c)) | (3 << (2*c+8))
        A(f's_mov_b32 s{34+2*c}, {m16 | (m16 << 16):#x}')
        A(f's_mov_b32 s{35+2*c}, {m16 | (m16 << 16):#x}')
    for k in range(4):
        A(f's_mov_b32 s{42+k}, {0x07060500 + k:#x}')
    A('s_mov_b32 s46, 0x0c0c0400')
    A('s_mov_b32 s47, 0x04000c0c')

    def publish(D, dst, voff, soff):
        for c in range(1, 4):
            for r in range(4):
                A(f'v_cndmask_b32 v{D+r}, v{D+r}, v{D+4*c+r}, s[{34+2*c}:{35+2*c}]')
        for r in range(4):
            A(f'v_add_u32 v{D+r}, 0x80, v{D+r}')
        A('s_mov_b32 exec_lo, 0x00ff00ff')
        A('s_mov_b32 exec_hi, 0x00ff00ff')
        for r in range(4):
            A(f'v_perm_b32 v{dst+r}, v{D+r}, v{TAG}, s{42+r}')
        A(f'buffer_store_dwordx4 {q(dst)}, v{voff}, {WS}, s{soff} offen {o.stflags}')
        A('s_mov_b64 exec, -1')

    def rbf(r):
        A(f'v_cvt_pk_bf16_f32 v{r}, v{r}, v{r}')
        A(f'v_and_b32 v{r}, 0xffff0000, v{r}')

    XF, AF, QD = 64, 128, 80
    A(f's_waitcnt vmcnt({14+NW1})')
    A(f'v_mul_lo_u32 v{TAG}, v{TAG}, s7')
    for t in range(3):
        A(f'ds_read_b128 {q(XF+4*t)}, v57 offset:{t*64}')
    A(f'ds_read_b64 {q(XF+12,2)}, v55 offset:192')
    A(f'v_add_u32 v{TAG}, 1013904223, v{TAG}')
    def qm(t):
        for c in range(4):
            if t < 3:
                A(f'v_mfma_f32_16x16x32_bf16 {q(QD+4*c)}, {q(AF+16*t+4*c)}, {q(XF+4*t)}, {"0" if t==0 else q(QD+4*c)}')
            else:
                A(f'v_mfma_f32_16x16x16_bf16 {q(QD+4*c)}, {q(AF+48+2*c,2)}, {q(XF+12,2)}, {q(QD+4*c)}')
    for t in range(4):
        A(f's_waitcnt vmcnt({max(0, 10-4*t)+NW1})')
        for c in range(4):
            if t < 3:
                A(f'ds_read_b64_tr_b16 {q(AF+16*t+4*c,2)}, v61 offset:{t*4096+c*32}')
                A(f'ds_read_b64_tr_b16 {q(AF+16*t+4*c+2,2)}, v61 offset:{t*4096+c*32+512}')
            else:
                A(f'ds_read_b64_tr_b16 {q(AF+48+2*c,2)}, v63 offset:{c*32}')
        if t >= 1:
            A(f's_waitcnt lgkmcnt({8 if t < 3 else 4})')
            qm(t-1)
    A('s_waitcnt lgkmcnt(0)')
    qm(3)
    A('s_nop 5')
    publish(QD, T, 62, 5)
    g.stamp(1)
    HD = 104
    A('s_waitcnt vmcnt(1)')
    for t in range(2):
        A(f'ds_read_b128 {q(96+4*t)}, v54 offset:{t*64}')
    for t in range(2):
        for c in range(4):
            A(f'ds_read_b64_tr_b16 {q(AF+16*t+4*c,2)}, v61 offset:{W2S-STG+t*4096+c*32}')
            A(f'ds_read_b64_tr_b16 {q(AF+16*t+4*c+2,2)}, v61 offset:{W2S-STG+t*4096+c*32+512}')
    A(f'v_add_u32 v57, {GS}, v56')
    A(f'ds_read_b128 {q(TL)}, v57')
    A(f'v_add_u32 v57, {XS}, v56')
    A(f'ds_read_b128 {q(TL+4)}, v57')
    A(f'ds_read_b128 {q(TL+8)}, v57 offset:896')
    A('s_waitcnt lgkmcnt(3)')
    for t in range(2):
        for c in range(4):
            A(f'v_mfma_f32_16x16x32_bf16 {q(HD+4*c)}, {q(AF+16*t+4*c)}, {q(96+4*t)}, {"0" if t==0 else q(HD+4*c)}')
    A('s_nop 5')
    publish(HD, 120, 53, 21)
    A('s_waitcnt lgkmcnt(0)')
    for b in range(2):
        acc = TL + 12 + b
        for d in range(4):
            A(f'v_lshlrev_b32 v{TL+16}, 16, v{TL+d}')
            A(f'v_and_b32 v{TL+17}, 0xffff0000, v{TL+d}')
            A(f'v_lshlrev_b32 v{TL+18}, 16, v{TL+4+4*b+d}')
            A(f'v_and_b32 v{TL+19}, 0xffff0000, v{TL+4+4*b+d}')
            A(f'v_mul_f32 v{TL+16}, v{TL+16}, v{TL+18}')
            A(f'v_mul_f32 v{TL+17}, v{TL+17}, v{TL+19}')
            A(f'v_cvt_pk_bf16_f32 v{TL+18}, v{TL+16}, v{TL+17}')
            A(f'v_lshlrev_b32 v{TL+16}, 16, v{TL+18}')
            A(f'v_and_b32 v{TL+17}, 0xffff0000, v{TL+18}')
            if d == 0:
                A(f'v_add_f32 v{acc}, v{TL+16}, v{TL+17}')
            else:
                A(f'v_add_f32 v{acc}, v{acc}, v{TL+16}')
                A(f'v_add_f32 v{acc}, v{acc}, v{TL+17}')
    Z = TL + 12
    A('s_nop 1')
    A(f'v_permlane32_swap_b32 v{Z}, v{Z+1}')
    A(f'v_add_f32 v{Z}, v{Z}, v{Z+1}')
    A(f'v_mov_b32 v{Z+1}, v{Z}')
    A('s_nop 1')
    A(f'v_permlane16_swap_b32 v{Z}, v{Z+1}')
    A(f'v_add_f32 v{Z}, v{Z}, v{Z+1}')
    for rr in (8, 4, 2, 1):
        A('s_nop 1')
        A(f'v_add_f32_dpp v{Z}, v{Z}, v{Z} row_ror:{rr} {DPPM}')
    rbf(Z)
    A(f'v_mul_f32 v{Z}, {f32(-LOG2E)}, v{Z}')
    A(f'v_exp_f32 v{Z}, v{Z}')
    A('s_nop 0')
    A(f'v_add_f32 v{Z}, 1.0, v{Z}')
    A(f'v_rcp_f32 v{G0}, v{Z}')
    A('s_nop 0')
    rbf(G0)
    A(f'v_sub_f32 v{OMG}, 1.0, v{G0}')
    rbf(OMG)
    A(f'v_mov_b32 v{G0+1}, v{G0}')
    A(f'v_mov_b32 v{OMG+1}, v{OMG}')
    A('s_nop 1')
    A(f'v_permlane32_swap_b32 v{G0}, v{G0+1}')
    A(f'v_permlane32_swap_b32 v{OMG}, v{OMG+1}')
    for i in range(8):
        A(f'v_mov_b32 v{O+i}, 0')
    for i in range(32):
        A(f'v_mov_b32 v{PV+i}, 0')
    A(f'v_mov_b32 v{M}, 0xff7fffff')
    A(f'v_mov_b32 v{NM}, 0xff7fffff')
    A(f'v_mov_b32 v{LS}, 0')
    A('v_lshlrev_b32 v57, 3, v1')
    A(f'v_add_u32 v57, {QS}, v57')
    A('v_bfe_u32 v58, v2, 1, 1')
    A('v_lshlrev_b32 v58, 9, v58')
    A('v_lshl_add_u32 v58, v3, 4, v58')
    A(f'v_add_u32 v58, {QS}, v58')

    def poll_landed(exit_on_done):
        d = g.new('pd')
        sp = g.new('ps')
        A(f's_cmp_ge_u32 s{sLND}, s{sNEED}')
        A(f's_cbranch_scc1 {d}')
        g.lab(sp)
        if exit_on_done:
            A(f's_cmp_ge_u32 s{sRAW}, {DONE:#x}')
            A('s_cbranch_scc1 .Ltail')
        A(f'ds_read_b32 v14, v{LNDA}')
        A('s_waitcnt lgkmcnt(0)')
        A(f'v_readfirstlane_b32 s{sRAW}, v14')
        A(f's_and_b32 s{sLND}, s{sRAW}, 0xffff')
        A(f's_cmp_ge_u32 s{sLND}, s{sNEED}')
        A(f's_cbranch_scc1 {d}')
        if o.lsleep:
            A(f's_sleep {o.lsleep}')
        A(f's_sub_u32 s{sBUD}, s{sBUD}, 1')
        A(f's_cbranch_scc0 {sp}')
        A(f's_mov_b32 s{sBUD}, 0')
        if exit_on_done:
            A('s_branch .Ltail')
        g.lab(d)

    hload = f'buffer_load_dwordx4 {q(HV)}, v{HV+4}, {WS}, s22 offen {o.ldflags}'
    A(f's_mov_b32 s{sNEED}, {o.qwait}')
    poll_landed(False)
    g.lab('.Lqpoll')
    for i in range(8):
        A(f'buffer_load_dwordx4 {q(KV+4*i)}, v56, {WS}, s{6 if i < 4 else 4} offen offset:{(i&3)*1024} {o.ldflags}')
    for i in range(8):
        A(f's_waitcnt vmcnt({7-i})')
        A(f'v_perm_b32 v14, v{KV+4*i+1}, v{KV+4*i}, s46')
        A(f'v_perm_b32 v15, v{KV+4*i+3}, v{KV+4*i+2}, s47')
        for r in range(4):
            A(f'v_and_b32 v{KV+4*i+r}, 0xffffff00, v{KV+4*i+r}')
        A(f'v_xor_b32 v14, v14, v{TAG}')
        if i == 0:
            A('v_xor_b32 v36, v14, v15')
        else:
            A('v_xor_b32 v14, v14, v15')
            A('v_or_b32 v36, v36, v14')
        if i >= 2:
            h = i & 1
            A(f'v_pk_add_f32 {q(KV+4*h,2)}, {q(KV+4*h,2)}, {q(KV+4*i,2)}')
            A(f'v_pk_add_f32 {q(KV+4*h+2,2)}, {q(KV+4*h+2,2)}, {q(KV+4*i+2,2)}')
    A('v_cmp_ne_u32 vcc, 0, v36')
    A('s_cbranch_vccz .Lqok')
    A(f's_sleep {o.qsleep}')
    A(f's_sub_u32 s{sBUD}, s{sBUD}, 64')
    A('s_cbranch_scc0 .Lqpoll')
    A(f's_mov_b32 s{sBUD}, 0')
    g.lab('.Lqok')
    for h in range(2):
        A(f'v_cvt_pk_bf16_f32 v{T+2*h}, v{KV+4*h}, v{KV+4*h+1}')
        A(f'v_cvt_pk_bf16_f32 v{T+2*h+1}, v{KV+4*h+2}, v{KV+4*h+3}')
    A(f'ds_write_b64 v57, {q(T,2)}')
    A(f'ds_write_b64 v57, {q(T+2,2)} offset:512')
    A(hload)
    A('s_waitcnt lgkmcnt(0)')
    for j in range(8):
        A(f'ds_read_b128 {q(QF+4*j)}, v58 offset:{j*64}')
    g.stamp(2)

    A(f's_mov_b32 s{sNEED}, 1')
    g.L.append('.p2align 6')
    g.lab('.Ltile')
    poll_landed(True)
    A(f'v_add_u32 v{KAC}, s{sSLOT}, v{KA0}')
    for i in range(1, 4):
        A(f'v_xor_b32 v{KAC+i}, {i*64}, v{KAC}')
    for i in range(16):
        j, hh = i >> 1, i & 1
        A(f'ds_read_b128 {q(KV+4*i)}, v{KAC+(j&3)} offset:{hh*8192+(j>>2)*256}')
    A(f'v_add_u32 v{VAC}, s{sSLOT}, v{VA0}')
    for i in range(1, 8):
        A(f'v_xor_b32 v{VAC+i}, {i*32}, v{VAC}')
    for i in range(16):
        j, hh = i >> 1, i & 1
        A(f's_waitcnt lgkmcnt({15-i})')
        A(f'v_mfma_f32_16x16x32_bf16 {q(S+4*hh)}, {q(KV+4*i)}, {q(QF+4*j)}, {"0" if j==0 else q(S+4*hh)}')
    A(f's_add_u32 s{sNEED}, s{sNEED}, 1')
    A('s_nop 6')
    for i in range(4):
        A(f'v_cvt_pk_bf16_f32 v{T+i}, v{S+2*i}, v{S+2*i+1}')
    for i in range(4):
        A(f'v_lshlrev_b32 v{S+2*i}, 16, v{T+i}')
        A(f'v_and_b32 v{S+2*i+1}, 0xffff0000, v{T+i}')
    A(f'v_max3_f32 v14, v{S}, v{S+1}, v{S+2}')
    A(f'v_max3_f32 v15, v{S+3}, v{S+4}, v{S+5}')
    A(f'v_max3_f32 v14, v14, v{S+6}, v{S+7}')
    A(f'v_max3_f32 v14, v14, v15, v{M}')
    A('v_mov_b32 v15, v14')
    A('s_nop 1')
    A('v_permlane16_swap_b32 v14, v15')
    A('v_max_f32 v14, v14, v15')
    A('v_mov_b32 v15, v14')
    A('s_nop 1')
    A('v_permlane32_swap_b32 v14, v15')
    A(f'v_max_f32 v{M}, v14, v15')
    A(f'v_mul_f32 v14, s{sC}, v{M}')
    A(f'v_sub_f32 v15, v{NM}, v14')
    A(f'v_mov_b32 v{NM}, v14')
    A('v_exp_f32 v15, v15')
    for i in range(8):
        A(f'v_fma_f32 v{P8+i}, v{S+i}, s{sC}, -v{NM}')
    for i in range(8):
        A(f'v_exp_f32 v{P8+i}, v{P8+i}')
    for a in range(2):
        for r in range(4):
            hq = 2 * (r >> 1)
            A(f'v_mul_f32_dpp v{O+4*a+r}, v15, v{O+4*a+r} quad_perm:[{hq},{hq},{hq},{hq}] {DPPM}')
    for i in range(4):
        A(f'v_cvt_pk_bf16_f32 v{T+i}, v{P8+2*i}, v{P8+2*i+1}')
    A(f'v_fma_f32 v{LS}, v{LS}, v15, v{P8}')
    A(f'v_add_f32 v{P8+1}, v{P8+1}, v{P8+2}')
    A(f'v_add_f32 v{P8+3}, v{P8+3}, v{P8+4}')
    A(f'v_add_f32 v{P8+5}, v{P8+5}, v{P8+6}')
    A(f'v_add_f32 v{LS}, v{LS}, v{P8+7}')
    A(f'v_add_f32 v{P8+1}, v{P8+1}, v{P8+3}')
    A(f'v_add_f32 v{LS}, v{LS}, v{P8+5}')
    A(f'v_add_f32 v{LS}, v{LS}, v{P8+1}')
    for v in range(8):
        A(f's_mov_b64 exec, s[{64+2*v}:{65+2*v}]')
        A(f'v_mov_b64 {q(PV+4*v,2)}, {q(T,2)}')
        A(f'v_mov_b64 {q(PV+4*v+2,2)}, {q(T+2,2)}')
    A('s_mov_b64 exec, -1')
    poll_landed(False)
    order = [(i & 1) * 8 + (i >> 1) for i in range(16)]
    def vread(i):
        m = order[i]
        for kh in range(2):
            A(f'ds_read_b64_tr_b16 {q(KV+4*i+2*kh,2)}, v{VAC+(m&7)} offset:{16384+kh*8192+(m>>3)*256}')
    PRE = 7
    for i in range(PRE):
        vread(i)
    for i in range(16):
        issued = min(16, i + PRE)
        A(f's_waitcnt lgkmcnt({2*(issued-i-1)})')
        m = order[i]
        a = m >> 3
        if i == 15:
            A(f's_add_u32 s{sT}, s{sT}, 1')
            A(f'v_mov_b32 v14, s{sT}')
            A(f'ds_write_b32 v{CONA}, v14')
        A(f'v_mfma_f32_16x16x32_bf16 {q(O+4*a)}, {q(PV+4*(m&7))}, {q(KV+4*i)}, {q(O+4*a)}')
        if i + PRE < 16:
            vread(i + PRE)
    A(f's_add_u32 s{sNEED}, s{sNEED}, 1')
    A(f's_add_u32 s{sSLOT}, s{sSLOT}, {SLOT:#x}')
    A(f's_and_b32 s{sSLOT}, s{sSLOT}, 0x1ffff')
    A(f's_cmp_lg_u32 s{sT}, {o.tj}')
    A('s_cbranch_scc1 .Ltile')

    H = TL
    g.lab('.Lhchk')
    A('s_waitcnt vmcnt(0)')
    A(f'v_perm_b32 v14, v{HV+1}, v{HV}, s46')
    A(f'v_perm_b32 v15, v{HV+3}, v{HV+2}, s47')
    A('v_xor_b32 v14, v14, v15')
    A(f'v_cmp_ne_u32 vcc, v14, v{TAG}')
    A('s_cbranch_vccz .Lhok')
    A(hload)
    A(f's_sub_u32 s{sBUD}, s{sBUD}, 64')
    A('s_cbranch_scc0 .Lhchk')
    A(f's_mov_b32 s{sBUD}, 0')
    A('s_waitcnt vmcnt(0)')
    g.lab('.Lhok')
    for r in range(4):
        A(f'v_and_b32 v{H+r}, 0xffffff00, v{HV+r}')
    for rr in (4, 8):
        for r in range(4):
            A(f'v_add_f32_dpp v{H+r}, v{H+r}, v{H+r} row_ror:{rr} {DPPM}')
    for r in range(4):
        A(f'v_mov_b32 v{H+4+r}, v{H+r}')
    A('s_nop 0')
    for r in range(4):
        A(f'v_permlane16_swap_b32 v{H+r}, v{H+4+r}')
    for r in range(4):
        A(f'v_add_f32 v{H+r}, v{H+r}, v{H+4+r}')
    for r in range(4):
        rbf(H + r)
    for r in range(4):
        A(f'v_mul_f32 v{H+4+r}, {f32(-LOG2E)}, v{H+r}')
    for r in range(4):
        A(f'v_exp_f32 v{H+4+r}, v{H+4+r}')
    A('s_nop 0')
    for r in range(4):
        A(f'v_add_f32 v{H+4+r}, 1.0, v{H+4+r}')
    for r in range(4):
        A(f'v_rcp_f32 v{H+4+r}, v{H+4+r}')
    A('s_nop 0')
    for r in range(4):
        A(f'v_mul_f32 v{H+r}, v{H+r}, v{H+4+r}')
    A(f'v_cvt_pk_bf16_f32 v{H+4}, v{H}, v{H+1}')
    A(f'v_cvt_pk_bf16_f32 v{H+5}, v{H+2}, v{H+3}')
    A('v_and_b32 v14, 1, v2')
    A('v_and_b32 v15, 1, v3')
    A('v_lshlrev_b32 v14, 3, v14')
    A('v_lshl_add_u32 v57, v15, 2, v14')
    A(f'ds_bpermute_b32 v{H+6}, v57, v{H+4}')
    A(f'ds_bpermute_b32 v{H+8}, v57, v{H+5}')
    A('s_mov_b32 s48, 0x00030003')
    A('s_mov_b32 s49, 0x00300030')
    A('s_mov_b32 s50, 0x03000300')
    A('s_mov_b32 s51, 0x30003000')
    A('v_lshl_add_u32 v14, v15, 2, v4')
    A('v_mul_u32_u24 v60, 896, v14')
    A('v_lshrrev_b32 v14, 1, v3')
    A('v_lshl_add_u32 v60, v14, 5, v60')
    A('v_lshl_add_u32 v60, v5, 3, v60')
    A('v_mul_u32_u24 v63, 3584, v15')
    A('v_add_u32 v63, v63, v60')
    A(f'v_add_u32 v63, {STG}, v63')
    A(f'v_add_u32 v60, {W2S}, v60')
    A('s_waitcnt lgkmcnt(0)')
    A(f'v_cndmask_b32 v{HA}, 0, v{H+6}, s[48:49]')
    A(f'v_cndmask_b32 v{HA+1}, 0, v{H+8}, s[48:49]')
    A(f'v_cndmask_b32 v{HA+2}, 0, v{H+6}, s[50:51]')
    A(f'v_cndmask_b32 v{HA+3}, 0, v{H+8}, s[50:51]')
    RG = TL
    HG = TL + 16
    for i in range(4):
        A(f'v_mov_b32 v{RG+4*i+3}, v{TAG}')
        A(f'v_not_b32 v{HG+4*i+3}, v{TAG}')
    A('v_lshrrev_b32 v57, 2, v1')
    A(f'v_mul_u32_u24 v61, {YROW}, v57')
    A('v_lshlrev_b32 v57, 7, v57')
    A('v_lshl_add_u32 v57, v5, 4, v57')
    A('v_lshl_add_u32 v61, v5, 4, v61')
    A('v_lshrrev_b32 v58, 5, v1')
    A('v_mul_u32_u24 v62, 896, v58')
    A('v_lshl_add_u32 v62, v5, 1, v62')
    A('v_lshl_add_u32 v58, v58, 2, v4')
    A('v_lshlrev_b32 v58, 12, v58')
    A('v_lshl_add_u32 v58, v15, 6, v58')
    A('v_lshl_add_u32 v58, v5, 4, v58')
    A('s_lshr_b32 s4, s2, 5')
    A('s_lshl_b32 s4, s4, 16')
    A('s_and_b32 s5, s2, 31')
    A('s_lshl_b32 s5, s5, 7')
    A('s_add_u32 s4, s4, s5')
    A(f's_add_u32 s4, s4, {REC:#x}')
    A('s_add_u32 s5, s4, 0x8000')
    A('s_add_u32 s6, s4, 0x80000')
    A('s_add_u32 s7, s4, 0x88000')
    A('s_lshl_b32 s44, s2, 12')
    A(f's_add_u32 s44, s44, {REC:#x}')
    A(f's_mul_i32 s45, s2, {YROW}')
    A(f's_add_u32 s45, s45, {YB:#x}')
    A('s_add_u32 s46, s45, 0x1000')
    A('s_lshl_b32 s47, s2, 3')
    A('s_branch .Ltile')

    g.L.append('.p2align 6')
    g.lab('.Ltail')
    g.stamp(3)
    A(f'v_mov_b32 v15, v{LS}')
    for h in range(2):
        A(f'v_mov_b32_dpp v{RG+8*h+2}, v{NM} quad_perm:[{2*h},{2*h},{2*h},{2*h}] {DPPM}')
    A(f'v_permlane16_swap_b32 v{LS}, v15')
    A(f'v_add_f32 v{LS}, v{LS}, v15')
    A(f'v_mov_b32 v15, v{LS}')
    for h in range(2):
        A(f'v_mov_b64 {q(RG+8*h,2)}, {q(O+2*h,2)}')
    A(f'v_permlane32_swap_b32 v{LS}, v15')
    A(f'v_add_f32 v{LS}, v{LS}, v15')
    for h in range(2):
        A(f'buffer_store_dwordx4 {q(RG+8*h)}, v57, {WS}, s44 offen offset:{h*2048} {o.stflags}')
    for h in range(2):
        r = RG + 8*h + 4
        A(f'v_mov_b32_dpp v{r+2}, v{LS} quad_perm:[{2*h},{2*h},{2*h},{2*h}] {DPPM}')
        A(f'v_mov_b64 {q(r,2)}, {q(O+4+2*h,2)}')
        A(f'buffer_store_dwordx4 {q(r)}, v57, {WS}, s44 offen offset:{h*2048+64} {o.stflags}')
    WF = KV
    YD = QF
    YG = PV
    def between():
        g.lab('.Lwwait')
        A(f'ds_read_b32 v14, v{LNDA}')
        A('s_waitcnt lgkmcnt(0)')
        A(f'v_readfirstlane_b32 s{sRAW}, v14')
        A(f's_cmp_ge_u32 s{sRAW}, {WDONE:#x}')
        A('s_cbranch_scc1 .Lwok')
        A('s_sleep 1')
        A(f's_sub_u32 s{sBUD}, s{sBUD}, 1')
        A('s_cbranch_scc0 .Lwwait')
        A(f's_mov_b32 s{sBUD}, 0')
        g.lab('.Lwok')
        W2F = PV
        for i in range(14):
            A(f'ds_read_b64_tr_b16 {q(W2F+2*i,2)}, v60 offset:{i*64}')
        A('s_waitcnt lgkmcnt(0)')
        for i in range(7):
            A(f'v_mfma_f32_16x16x16_bf16 {q(YD+4*i)}, {q(HA,2)}, {q(W2F+4*i,2)}, 0')
        for i in range(7):
            A(f'v_mfma_f32_16x16x16_bf16 {q(YD+4*i)}, {q(HA+2,2)}, {q(W2F+4*i+2,2)}, {q(YD+4*i)}')
        for i in range(14):
            A(f'ds_read_b64_tr_b16 {q(WF+4*i,2)}, v63 offset:{i*64}')
            A(f'ds_read_b64_tr_b16 {q(WF+4*i+2,2)}, v63 offset:{i*64+3584}')
        for i in range(7):
            A(f'v_mul_f32 v{FP+2*i}, v{OMG}, v{YD+4*i}')
            A(f'v_mul_f32 v{FP+2*i+1}, v{OMG+1}, v{YD+4*i+1}')
        for i in range(7):
            A(f'v_mov_b32 v{YG+4*i+3}, v{TAG}')
        A('s_lshl_b32 s64, s2, 6')
        A(f's_add_u32 s64, s64, {YB:#x}')
        for i in range(1, 16):
            A(f's_add_u32 s{64+i}, s64, {i*16*YROW:#x}')
    g.apoll('h1', [f'buffer_load_dwordx4 {q(HG+4*i)}, v58, {WS}, s{4+i} offen {o.ldflags}' for i in range(4)],
            [HG+4*i+3 for i in range(4)], [36, 38, 40, 42], TAG, sBUD, o.h1sleep,
            slow=(o.h1thr, o.h1slow) if o.h1slow else None, between=between)
    g.stamp(4)
    for i in range(4):
        A(f'v_mov_b32 v{16+i}, v{HG+4*i+2}')
        A(f'v_mov_b32 v{20+i}, v{HG+4*i+2}')
    for i in range(4):
        if i == 3:
            A('v_max_f32 v36, v16, v17')
        A(f'v_permlane16_swap_b32 v{16+i}, v{20+i}')
    A('v_max_f32 v37, v18, v19')
    A('s_nop 0')
    A(f'v_max_f32_dpp v36, v36, v36 row_ror:4 {DPPM}')
    A(f'v_max_f32_dpp v37, v37, v37 row_ror:4 {DPPM}')
    A('s_nop 0')
    A(f'v_max_f32_dpp v36, v36, v36 row_ror:8 {DPPM}')
    A(f'v_max_f32_dpp v37, v37, v37 row_ror:8 {DPPM}')
    A('v_mov_b32 v38, v36')
    A('v_mov_b32 v39, v37')
    A('s_nop 0')
    A('v_permlane32_swap_b32 v36, v38')
    A('v_permlane32_swap_b32 v37, v39')
    A('v_max_f32 v36, v36, v38')
    A('v_max_f32 v37, v37, v39')
    for i in range(4):
        A(f'v_sub_f32 v{40+i}, v{16+i}, v{36+(i>>1)}')
    for i in range(4):
        A(f'v_exp_f32 v{40+i}, v{40+i}')
    A('s_mov_b32 vcc_lo, 0xaaaaaaaa')
    for b in range(2):
        srcs0 = (HG+8*b, HG+8*b+1, 20+2*b)
        srcs1 = (HG+8*b+4, HG+8*b+5, 21+2*b)
        for k in range(3):
            A(f'v_mul_f32 v{44+3*b+k}, v{40+2*b}, v{srcs0[k]}')
        for k in range(3):
            A(f'v_fmac_f32 v{44+3*b+k}, v{41+2*b}, v{srcs1[k]}')
    A('s_mov_b32 vcc_hi, 0xaaaaaaaa')
    for k in range(3):
        A(f'v_permlane32_swap_b32 v{44+k}, v{47+k}')
    for k in range(3):
        A(f'v_add_f32 v{44+k}, v{44+k}, v{47+k}')
    for rr in (4, 8):
        for k in (2, 0, 1) if rr == 8 else (0, 1, 2):
            if rr == 8 and k == 2:
                A('s_nop 1')
            A(f'v_add_f32_dpp v{44+k}, v{44+k}, v{44+k} row_ror:{rr} {DPPM}')
            if rr == 8 and k == 2:
                A('v_rcp_f32 v46, v46')
    A('v_mul_f32 v44, v44, v46')
    A('v_mul_f32 v45, v45, v46')
    A('v_cvt_pk_bf16_f32 v44, v44, v45')
    A('v_mov_b32 v45, v44')
    A('s_nop 1')
    A('v_permlane32_swap_b32 v44, v45')
    A('s_nop 1')
    for nn in range(4):
        A(f'v_mov_b32_dpp v{36+nn}, v45 quad_perm:[{nn},{nn},{nn},{nn}] {DPPM}')
    for nn in range(4):
        A(f'v_cndmask_b32_dpp v{36+nn}, v44, v{36+nn}, vcc quad_perm:[{nn},{nn},{nn},{nn}] {DPPM}')
    for nn in range(4):
        A(f'v_cndmask_b32 v{48+nn}, 0, v{36+nn}, s[48:49]')
    for nn in range(4):
        A(f'v_cndmask_b32 v{52+nn}, 0, v{36+nn}, s[50:51]')
    A('s_waitcnt lgkmcnt(0)')
    seq = []
    for i in range(7):
        seq.append((i, 0))
        if i >= 1:
            seq.append((i-1, 1))
    seq.append((6, 1))
    for n, (i, e) in enumerate(seq):
        A(f'v_mfma_f32_16x16x32_bf16 {q(YD+4*i)}, {q(48+4*e)}, {q(WF+8*i+4*e)}, {"0" if e==0 else q(YD+4*i)}')
    for i in range(7):
        A(f'v_fma_f32 v{YG+4*i}, v{G0}, v{YD+4*i}, v{FP+2*i}')
        A(f'v_fma_f32 v{YG+4*i+1}, v{G0+1}, v{YD+4*i+1}, v{FP+2*i+1}')
        A(f'buffer_store_dwordx4 {q(YG+4*i)}, v56, {WS}, s{45+(i>>2)} offen offset:{(i&3)*1024} {o.stflags}')
    g.stamp(5)
    A('s_cmp_ge_u32 s2, 112')
    A('s_cbranch_scc1 .Lfin')
    for i in range(16):
        A(f'v_not_b32 v{KV+4*i+3}, v{TAG}')
    if o.h2sleep0:
        A(f's_sleep {o.h2sleep0}')
    mk = [8, 10, 12, 14, 20, 22, 24, 26, 28, 30, 32, 34, 36, 38, 40, 42]
    g.apoll('h2', [f'buffer_load_dwordx4 {q(KV+4*i)}, v61, {WS}, s{64+i} offen {o.ldflags}' for i in range(16)],
            [KV+4*i+3 for i in range(16)], mk, TAG, sBUD, o.h2sleep)
    for k in range(4):
        A(f'v_pk_add_f32 v[{36+2*k}:{37+2*k}], {q(KV+8*k,2)}, {q(KV+8*k+4,2)}')
    for k in range(4):
        A(f'v_pk_add_f32 v[{44+2*k}:{45+2*k}], {q(KV+32+8*k,2)}, {q(KV+32+8*k+4,2)}')
    for k in range(4):
        A(f'v_pk_add_f32 v[{36+2*k}:{37+2*k}], v[{36+2*k}:{37+2*k}], v[{44+2*k}:{45+2*k}]')
    A('v_pk_add_f32 v[36:37], v[36:37], v[38:39]')
    A('v_pk_add_f32 v[40:41], v[40:41], v[42:43]')
    A('v_pk_add_f32 v[36:37], v[36:37], v[40:41]')
    A('s_nop 1')
    A('v_permlane32_swap_b32 v36, v37')
    A('v_add_f32 v36, v36, v37')
    A('v_mov_b32 v37, v36')
    A('s_nop 1')
    A('v_permlane16_swap_b32 v36, v37')
    A('v_add_f32 v36, v36, v37')
    for rr in (4, 8):
        A('s_nop 1')
        A(f'v_add_f32_dpp v36, v36, v36 row_ror:{rr} {DPPM}')
    A('v_cvt_pk_bf16_f32 v36, v36, v36')
    A('s_mov_b32 exec_lo, 0xf')
    A('s_mov_b32 exec_hi, 0xf')
    A(f'buffer_store_short v36, v62, s[{sOUT}:{sOUT+3}], s47 offen')
    A('s_cmp_lg_u32 s2, 0')
    A('s_cbranch_scc1 .Lfin')
    A('s_mov_b64 exec, 1')
    A(f'buffer_store_dword v{TAG}, v59, {WS}, 0 offen')
    g.lab('.Lfin')
    if o.diag:
        g.stamp(6)
        A('s_mov_b64 exec, 1')
        A('s_lshl_b32 s4, s2, 7')
        A(f's_add_u32 s4, s4, {STAMP:#x}')
        for k in range(7):
            A(f'v_mov_b32 v14, s{86+2*k}')
            A(f'v_mov_b32 v15, s{87+2*k}')
            A(f'buffer_store_dwordx2 v[14:15], v59, {WS}, s4 offen offset:{8*k}')
            A('s_nop 1')
    g.lab('.Lexit')
    A('s_endpgm')

    ref = open('cdna_kernels/' + NAME + '.s.ref').read().split('\n')
    head = [l for l in ref if l.startswith(';') and '@launch' not in l and 'Override launch' not in l and 'grid=ceil' not in l]
    txt = '\n'.join(head) + '\n'
    txt += f'; @launch grid=(256,1,1) block=(128,1,1) lds={LDS_BYTES}\n'
    txt += '.amdgcn_target "amdgcn-amd-amdhsa--gfx950"\n.text\n'
    txt += '\n'.join(g.L) + '\n'
    txt += f'''.section .rodata,"a"
.p2align 6
.amdhsa_kernel {K}
  .amdhsa_next_free_vgpr 256
  .amdhsa_next_free_sgpr 102
  .amdhsa_accum_offset 256
  .amdhsa_group_segment_fixed_size 0
  .amdhsa_kernarg_size 96
  .amdhsa_user_sgpr_count 2
  .amdhsa_user_sgpr_kernarg_segment_ptr 1
  .amdhsa_system_sgpr_workgroup_id_x 1
.end_amdhsa_kernel
'''
    return txt


def parser():
    p = argparse.ArgumentParser()
    il = lambda x: [int(v) for v in x.split(',') if v]
    p.add_argument('-o', default='cdna_kernels/' + NAME + '.s')
    p.add_argument('--window', type=int, default=20)
    p.add_argument('--gs', type=int, default=2)
    p.add_argument('--unit', type=int, default=8)
    p.add_argument('--idxsh', type=int, default=3)
    p.add_argument('--perm', type=il, default=[0, 2, 1, 3])
    p.add_argument('--qwait', type=int, default=3)
    p.add_argument('--cfirst', type=int, default=14)
    p.add_argument('--diag', action='store_true')
    p.add_argument('--prog', action='store_true')
    p.add_argument('--kflags', default='nt')
    p.add_argument('--vflags', default='nt')
    p.add_argument('--wqflags', default='nt')
    p.add_argument('--stflags', default='sc1')
    p.add_argument('--ldflags', default='sc1')
    p.add_argument('--tj', type=int, default=8)
    p.add_argument('--lsleep', type=int, default=1)
    p.add_argument('--qsleep', type=int, default=6)
    p.add_argument('--h1sleep', type=int, default=4)
    p.add_argument('--h1thr', type=int, default=16)
    p.add_argument('--h1slow', type=int, default=16)
    p.add_argument('--h2sleep0', type=int, default=8)
    p.add_argument('--h2sleep', type=int, default=4)
    return p


if __name__ == '__main__':
    o = parser().parse_args()
    open(o.o, 'w').write(gen(o))
```

```python
import sys, struct, argparse

NAME = 'gated_mix__gqa_block_cached__dense_activation_silu__decode'

RING = 0
SLOT = 16384
STG = 131072
W1S = STG + 14336
W2S = RING
WOS = RING + SLOT
XS = W1S + 8192
GS = XS + 2048
QS = GS + 1024
FL = QS + 1024
LDS_BYTES = FL + 512

QP = 0x20000
HP = 0x40000
REC = 0x100000
YB = 0x200000
YROW = 7168
WS_BYTES = 0x400000
STAMP = 0x400000
WDONE = 0x20000

def f32(x):
    return '0x%08x' % struct.unpack('<I', struct.pack('<f', x))[0]

LOG2E = 1.4426950408889634
DPPM = 'row_mask:0xf bank_mask:0xf'


class G:
    def __init__(self, o):
        self.L = []
        self.o = o
        self.uid = 0

    def A(self, s):
        self.L.append('    ' + s)

    def lab(self, s):
        self.L.append(s + ':')

    def new(self, p):
        self.uid += 1
        return f'.L{p}_{self.uid}'

    def srd(self, d, ptr, nbytes):
        A = self.A
        A(f's_mov_b32 s{d}, s{ptr}')
        A(f's_mov_b32 s{d+1}, s{ptr+1}')
        A(f's_mov_b32 s{d+2}, {nbytes:#x}')
        A(f's_mov_b32 s{d+3}, 0x20000')

    def stamp(self, k):
        if self.o.diag:
            self.A(f's_memrealtime s[{86+2*k}:{87+2*k}]')
            self.A('s_waitcnt lgkmcnt(0)')

    def apoll(self, name, loads, tagregs, masks, TAG, sBUD, sleep, slow=None, between=None):
        A = self.A
        for ld in loads:
            A(ld)
        if between:
            between()
        self.lab(f'.L{name}_loop')
        A(f's_sleep {sleep}')
        for t, m in zip(tagregs, masks):
            A(f'v_cmp_ne_u32 s[{m}:{m+1}], v{t}, v{TAG}')
        A(f's_or_b64 vcc, s[{masks[0]}:{masks[0]+1}], s[{masks[1]}:{masks[1]+1}]')
        for m in masks[2:]:
            A(f's_or_b64 vcc, vcc, s[{m}:{m+1}]')
        A(f's_cbranch_scc0 .L{name}_ok')
        for ld, m in zip(loads, masks):
            sk = self.new('sk')
            A(f's_mov_b64 exec, s[{m}:{m+1}]')
            A(f's_cbranch_execz {sk}')
            A(ld)
            self.lab(sk)
        A('s_mov_b64 exec, -1')
        if slow:
            thr, extra = slow
            sk = self.new('sk')
            A('s_bcnt1_i32_b64 vcc_lo, vcc')
            A(f's_cmp_le_u32 vcc_lo, {thr}')
            A(f's_cbranch_scc1 {sk}')
            A(f's_sleep {extra}')
            self.lab(sk)
        A(f's_sub_u32 s{sBUD}, s{sBUD}, 16')
        A(f's_cbranch_scc0 .L{name}_loop')
        A(f's_mov_b32 s{sBUD}, 0')
        self.lab(f'.L{name}_ok')


def q(b, n=4):
    return f'v[{b}:{b+n-1}]'


def gen(o):
    g = G(o)
    A = g.A
    W = o.window
    K = NAME + '_kernel'
    pX, pK, pV, pWQ, pWO, pW1, pW2, pG, pOUT, pWS = 36, 38, 40, 42, 44, 48, 50, 52, 54, 58

    g.L.append(f'.globl {K}\n.p2align 8\n.type {K},@function\n{K}:')
    A('s_cmp_ge_u32 s2, 256')
    A('s_cbranch_scc1 .Lexit')
    A('s_load_dwordx16 s[36:51], s[0:1], 0')
    A('s_load_dwordx8 s[52:59], s[0:1], 64')
    if o.icpf:
        A(f's_cmp_ge_u32 s2, {o.icpf}')
        A('s_cbranch_scc1 .Lnopf')
        A('s_getpc_b64 s[4:5]')
        g.lab('.Lpc')
        A('v_lshlrev_b32 v9, 7, v0')
        A('v_add_u32 v10, 0x4000, v9')
        A('v_min_u32 v10, .Lexit-.Lpc, v10')
        A('global_load_dword v249, v9, s[4:5]')
        A('global_load_dword v248, v10, s[4:5]')
        g.lab('.Lnopf')
    A('v_lshrrev_b32 v1, 6, v0')
    A('v_lshlrev_b32 v8, 2, v0')
    A('v_readfirstlane_b32 s3, v1')
    A(f'v_add_u32 v8, {FL}, v8')
    A('v_mov_b32 v14, 0')
    A('ds_write_b32 v8, v14')
    A('v_and_b32 v1, 63, v0')
    A('s_cmp_lg_u32 s3, 0')
    A('s_cbranch_scc1 .Lcons')

    gs, U, sh = o.gs, o.unit, o.idxsh
    lg = gs.bit_length() - 1
    A(f's_lshr_b32 s17, s2, {sh}')
    A(f's_and_b32 s17, s17, {gs-1}')
    A(f's_lshr_b32 s18, s2, {sh+lg}')
    A(f's_lshl_b32 s18, s18, {sh}')
    A(f's_and_b32 s19, s2, {(1<<sh)-1}')
    A('s_or_b32 s18, s18, s19')
    A(f's_lshl_b32 s16, s18, {20+lg}')
    A(f's_mul_i32 s17, s17, {U*4096}')
    A('s_add_u32 s16, s16, s17')
    A('v_lshrrev_b32 v3, 5, v1')
    A('v_and_b32 v5, 31, v1')
    A('v_lshlrev_b32 v4, 1, v3')
    A('v_xor_b32 v5, v5, v4')
    A('v_lshlrev_b32 v5, 4, v5')
    A('v_lshl_add_u32 v20, v3, 9, v5')
    for i in range(1, 4):
        A(f'v_xor_b32 v{20+i}, {i*64}, v20')
    A(f'v_mov_b32 v7, {FL+256}')
    A('v_lshlrev_b32 v24, 4, v1')
    j0 = (W - 1) % 16
    lag = (W - 1) // 16 + 1
    A('s_mov_b32 s20, -7')
    A('s_mov_b32 s27, s16')
    A('s_mov_b32 s24, 0')
    A(f's_mov_b32 s25, {1<<22}')
    A('s_lshr_b32 s4, s2, 4')
    A('s_lshl_b32 s4, s4, 8')
    A('s_bfe_u32 s5, s2, 0x20002')
    A('s_lshl_b32 s5, s5, 5')
    A('s_add_u32 s4, s4, s5')
    A('s_and_b32 s5, s2, 3')
    A('s_lshl_b32 s5, s5, 2')
    A('s_add_u32 s4, s4, s5')
    A('s_mul_i32 s4, s4, 896')
    A('s_mul_i32 s6, s2, 7168')
    A('s_waitcnt lgkmcnt(0)')
    g.srd(8, pK, 0x10000000)
    g.srd(60, pWO, 4096 * 896)
    g.srd(64, pW2, 1792 * 896)
    if o.diag:
        g.srd(28, pWS, STAMP + 0x20000)
        A('v_mov_b32 v30, 0')
    A('s_barrier')
    spins = []
    def check(name):
        A('s_cmp_lt_i32 s24, s20')
        A(f's_cbranch_scc1 .Lspin{name}')
        g.lab(f'.Lgo{name}')
        spins.append(name)
    def body(name, wins, first=False):
        for tt in range(8):
            Wd = wins[tt]
            if not first:
                check(f'{name}{tt}')
            for j in range(16):
                if j % 4 == 0:
                    k = tt * 4 + o.perm[j // 4]
                    A(f's_mov_b32 m0, {RING + tt*SLOT + j*1024:#x}')
                    A(f's_add_u32 s23, s16, {((k//U)*gs*U + k % U)*4096:#x}')
                if not (first and tt * 16 + j < Wd):
                    A(f's_waitcnt vmcnt({Wd-1})')
                elif j % 4 == 0:
                    A('s_nop 0')
                A(f'buffer_load_dwordx4 v{20+(j&3)}, s[8:11], s23 offen offset:{(j&3)*1024} {o.kflags} lds')
                if j == (Wd - 1) % 16:
                    if first:
                        v = tt - (Wd - 1) // 16
                        if v > 0:
                            A(f'v_mov_b32 v14, {v}')
                            A('ds_write_b32 v8, v14')
                    else:
                        A(f's_add_u32 s21, s20, {(7 if j <= 9 else 6) - (Wd - 1) // 16}')
                        A('v_mov_b32 v14, s21')
                        A('ds_write_b32 v8, v14')
                if o.prog and j == 0 and tt % 2 == 0:
                    A('s_memrealtime s[86:87]')
                if j == 9:
                    if not first or tt == 7:
                        A('ds_read_b32 v15, v7')
                    A('s_add_u32 s20, s20, 1')
                if j == 13 and tt == 7:
                    if name == 'k':
                        A('s_mov_b32 s16, s27')
                    else:
                        A(f's_add_u32 s16, s16, {16384*gs*8:#x}')
                if j == 14 and (not first or tt == 7 or o.prog):
                    A('s_waitcnt lgkmcnt(0)')
                    if not first or tt == 7:
                        A('v_readfirstlane_b32 s24, v15')
                if o.prog and j == 15 and tt % 2 == 1:
                    A('s_add_u32 s17, s20, 6')
                    A('s_lshr_b32 m0, s17, 1')
                    A('s_nop 0')
                    A('v_writelane_b32 v30, s86, m0')
    A('s_mov_b32 s26, 49')
    body('f', o.w1 or [W] * 8, True)
    g.L.append('.p2align 6')
    g.lab('.Lload')
    body('m', [W] * 8)
    A('s_cmp_lt_i32 s20, s26')
    A('s_cbranch_scc1 .Lload')
    A('s_cmp_gt_i32 s20, 49')
    A('s_cbranch_scc1 .Ldrain')
    A('s_mov_b32 s26, 121')
    body('k', o.wk or [W] * 8)
    A(f's_mov_b32 s8, s{pV}')
    A(f's_mov_b32 s9, s{pV+1}')
    A('s_branch .Lload')
    g.lab('.Ldrain')
    NX = 23
    todo = list(range(128 - lag + 1, 129))
    def flag(c):
        A(f'v_mov_b32 v14, {c}')
        A('ds_write_b32 v8, v14')
        if c == 128 and o.diag:
            A('s_memrealtime s[86:87]')
    A('s_add_u32 s20, s20, 1')
    check('w')
    for e in range(NX):
        if e < 7:
            A(f's_mov_b32 m0, {W2S + e*1024}')
            A(f's_add_u32 s23, s6, {e*1024}')
            srd = 64
        else:
            k = e - 7
            a_, nn, u = k >> 3, (k >> 1) & 3, k & 1
            if k == 0:
                A('s_mov_b32 exec_hi, 0x00ffffff')
            A(f's_mov_b32 m0, {WOS + k*896}')
            A(f's_add_u32 s23, s4, {(128*a_+16*u+nn)*896}')
            srd = 60
        A(f's_waitcnt vmcnt({W-1})')
        while todo and 2048 + e >= 16 * todo[0] - 1 + W:
            flag(todo.pop(0))
        A(f'buffer_load_dwordx4 v24, s[{srd}:{srd+3}], s23 offen nt lds')
    for c in todo:
        A(f's_waitcnt vmcnt({2048 + NX - 16*c})')
        flag(c)
    A('s_waitcnt vmcnt(0)')
    A(f'v_mov_b32 v14, {WDONE + 128:#x}')
    A('ds_write_b32 v8, v14')
    if o.diag:
        A('s_waitcnt lgkmcnt(0)')
        A('v_mov_b32 v16, s86')
        A('v_mov_b32 v17, s87')
        A('v_mov_b32 v18, 0')
        A('v_mov_b32 v19, 0')
        A('s_lshl_b32 s17, s2, 7')
        A(f's_add_u32 s17, s17, {STAMP+64:#x}')
        A('s_mov_b64 exec, 1')
        A('buffer_store_dwordx4 v[16:19], v19, s[28:31], s17 offen')
        A('s_mov_b64 exec, -1')
        A('v_lshlrev_b32 v19, 2, v1')
        A('s_lshl_b32 s17, s2, 8')
        A(f's_add_u32 s17, s17, {STAMP+0x10000:#x}')
        A('buffer_store_dword v30, v19, s[28:31], s17 offen')
    A('s_endpgm')
    for tt in spins:
        g.lab(f'.Lspin{tt}')
        A('ds_read_b32 v15, v7')
        A('s_waitcnt lgkmcnt(0)')
        A('v_readfirstlane_b32 s24, v15')
        A('s_cmp_ge_i32 s24, s20')
        A(f's_cbranch_scc1 .Lgo{tt}')
        A('s_sleep 1')
        A('s_sub_u32 s25, s25, 1')
        A(f's_cbranch_scc0 .Lspin{tt}')
        A('s_mov_b32 s25, 0')
        A(f's_branch .Lgo{tt}')

    sX, sWQ, sWS, sW1, sG, sOUT = 8, 12, 16, 24, 32, 60
    TAG, LNDA, CONA, KA0, VA0, M, NM, LS = 6, 7, 8, 9, 10, 11, 12, 13
    KAC, VAC, O, S, T, P8 = 16, 20, 28, 36, 44, 48
    KV, QF, PV, FP, G0, TL = 64, 128, 160, 192, 206, 208
    HV = 240
    HA = 250
    OMG = 254
    sT, sSLOT, sLND, sC, sNEED, sBUD = 81, 82, 83, 84, 85, 80
    sRAW = 100
    WS = f's[{sWS}:{sWS+3}]'
    g.L.append('.p2align 6')
    g.lab('.Lcons')
    A('v_lshlrev_b32 v56, 4, v1')
    A('v_lshrrev_b32 v58, 3, v1')
    A('v_and_b32 v59, 7, v1')
    A('v_lshlrev_b32 v57, 13, v58')
    A('v_lshl_add_u32 v57, v59, 4, v57')
    A('v_mul_u32_u24 v58, 3584, v58')
    A('v_lshl_add_u32 v58, v59, 4, v58')
    A('v_mov_b32 v59, 0')
    A('v_and_b32 v2, 15, v1')
    A('v_lshrrev_b32 v3, 4, v1')
    A('v_bfe_u32 v4, v1, 2, 2')
    A('v_and_b32 v5, 3, v1')
    A('s_and_b32 s4, s2, 3')
    A(f's_mul_i32 s5, s4, {112*8192}')
    A('s_lshr_b32 s6, s2, 2')
    A('s_lshl_b32 s6, s6, 7')
    A('s_add_u32 s5, s5, s6')
    A('s_and_b32 s20, s2, 7')
    A(f's_mul_i32 s21, s20, {56*3584}')
    A('s_lshr_b32 s22, s2, 3')
    A('s_lshl_b32 s23, s22, 7')
    A('s_add_u32 s21, s21, s23')
    A('s_cmp_lt_u32 s2, 224')
    A('s_cselect_b32 s21, s21, 0x200000')
    A('s_waitcnt lgkmcnt(0)')
    g.srd(sWS, pWS, WS_BYTES + (0x10000 if o.diag else 0))
    g.srd(sX, pX, 1792)
    g.srd(sWQ, pWQ, 448 * 8192)
    if o.cfirst < 0:
        A('s_barrier')
    g.stamp(0)
    A(f'buffer_load_dword v{TAG}, v59, {WS}, 0 offen')
    A(f's_mov_b32 m0, {XS}')
    A('s_nop 0')
    A(f'buffer_load_dwordx4 v56, s[{sX}:{sX+3}], 0 offen lds')
    A(f'buffer_load_dwordx4 v56, s[{sX}:{sX+3}], 0 offen offset:1024 lds')
    for t in range(14):
        if o.cfirst == t:
            A('s_barrier')
        A(f's_mov_b32 m0, {STG + t*1024}')
        A(f's_add_u32 s6, s5, {t*65536:#x}')
        A(f'buffer_load_dwordx4 v57, s[{sWQ}:{sWQ+3}], s6 offen {o.wqflags} lds')
    if o.cfirst == 14:
        A('s_barrier')
    g.srd(sW1, pW1, 448 * 3584)
    g.srd(sG, pG, 896)
    A(f's_mov_b32 m0, {GS}')
    g.srd(sOUT, pOUT, 1792)
    A(f'buffer_load_dwordx4 v56, s[{sG}:{sG+3}], 0 offen lds')
    for t in range(8):
        A(f's_mov_b32 m0, {W1S + t*1024}')
        if t < 7:
            A(f's_add_u32 s6, s21, {t*8*3584:#x}')
        else:
            A('s_mov_b32 s6, 0x200000')
        A(f'buffer_load_dwordx4 v58, s[{sW1}:{sW1+3}], s6 offen nt lds')
    if o.cfirst > 14:
        A('s_barrier')
    NW1 = 9
    A('v_and_b32 v58, 1, v2')
    A('v_mul_u32_u24 v60, 896, v58')
    A('v_lshl_add_u32 v60, v3, 4, v60')
    A(f'v_add_u32 v60, {XS}, v60')
    A('v_lshl_add_u32 v61, v3, 3, v4')
    A('v_lshlrev_b32 v61, 7, v61')
    A('v_lshl_add_u32 v61, v5, 3, v61')
    A(f'v_add_u32 v61, {STG}, v61')
    A('v_lshl_add_u32 v63, v3, 2, v4')
    A('v_lshlrev_b32 v63, 7, v63')
    A('v_lshl_add_u32 v63, v5, 3, v63')
    A(f'v_add_u32 v63, {STG+96*128}, v63')
    A('s_mul_i32 s6, s4, 224')
    A('v_add_u32 v57, s6, v60')
    A('v_lshlrev_b32 v55, 3, v3')
    A('v_sub_u32 v55, v57, v55')
    A('s_mul_i32 s6, s20, 112')
    A('v_add_u32 v54, s6, v60')
    A('v_lshlrev_b32 v62, 16, v58')
    A('v_bfe_u32 v14, v2, 1, 2')
    A('v_lshl_add_u32 v62, v14, 6, v62')
    A('v_lshl_add_u32 v62, v3, 4, v62')
    A('v_lshlrev_b32 v53, 7, v14')
    A('v_lshl_add_u32 v53, v58, 5, v53')
    A('v_lshrrev_b32 v14, 1, v3')
    A('v_lshl_add_u32 v53, v14, 6, v53')
    A('v_and_b32 v14, 1, v3')
    A('v_lshl_add_u32 v53, v14, 4, v53')
    A(f'v_bfe_u32 v{HV+4}, v1, 2, 3')
    A(f'v_lshlrev_b32 v{HV+4}, 9, v{HV+4}')
    A(f'v_lshl_add_u32 v{HV+4}, v5, 4, v{HV+4}')
    A('v_and_b32 v14, 7, v2')
    A('v_lshlrev_b32 v14, 1, v14')
    A('v_xor_b32 v14, v14, v3')
    A('v_lshlrev_b32 v14, 4, v14')
    A(f'v_lshl_add_u32 v{KA0}, v2, 9, v14')
    A('v_lshl_add_u32 v14, v3, 2, v4')
    A('v_and_b32 v15, 7, v14')
    A('v_lshlrev_b32 v15, 5, v15')
    A('v_lshl_add_u32 v15, v5, 3, v15')
    A(f'v_lshl_add_u32 v{VA0}, v14, 9, v15')
    A(f'v_mov_b32 v{LNDA}, {FL}')
    for v in range(8):
        qq, u = v >> 1, v & 1
        m16 = (1 << (4*qq+u)) | (1 << (4*qq+u+2))
        m32 = m16 | (m16 << 16)
        A(f's_mov_b32 s{64+2*v}, {m32:#x}')
        A(f's_mov_b32 s{65+2*v}, {m32:#x}')
    A(f's_mov_b32 s{sC}, {f32(0.0625*LOG2E)}')
    A(f's_mov_b32 s{sBUD}, {1<<22}')
    A(f's_mov_b32 s{sLND}, 0')
    A(f's_mov_b32 s{sSLOT}, 0')
    A('s_mov_b32 s7, 1664525')
    A('s_lshr_b32 s5, s2, 5')
    A('s_lshl_b32 s5, s5, 13')
    A('s_lshl_b32 s4, s4, 11')
    A('s_add_u32 s5, s5, s4')
    A('s_bfe_u32 s4, s2, 0x30002')
    A('s_lshl_b32 s4, s4, 8')
    A('s_add_u32 s5, s5, s4')
    A(f's_add_u32 s5, s5, {QP:#x}')
    A('s_lshr_b32 s6, s2, 4')
    A('s_lshl_b32 s6, s6, 13')
    A(f's_add_u32 s6, s6, {QP:#x}')
    A('s_add_u32 s4, s6, 0x1000')
    A('s_lshl_b32 s21, s2, 9')
    A(f's_add_u32 s21, s21, {HP:#x}')
    A('s_lshl_b32 s22, s22, 12')
    A('s_lshl_b32 s20, s20, 6')
    A('s_add_u32 s22, s22, s20')
    A(f's_add_u32 s22, s22, {HP:#x}')
    for c in range(1, 4):
        m16 = (3 << (2*c)) | (3 << (2*c+8))
        A(f's_mov_b32 s{34+2*c}, {m16 | (m16 << 16):#x}')
        A(f's_mov_b32 s{35+2*c}, {m16 | (m16 << 16):#x}')
    for k in range(4):
        A(f's_mov_b32 s{42+k}, {0x07060500 + k:#x}')
    A('s_mov_b32 s46, 0x0c0c0400')
    A('s_mov_b32 s47, 0x04000c0c')

    def publish(D, dst, voff, soff):
        for c in range(1, 4):
            for r in range(4):
                A(f'v_cndmask_b32 v{D+r}, v{D+r}, v{D+4*c+r}, s[{34+2*c}:{35+2*c}]')
        for r in range(4):
            A(f'v_add_u32 v{D+r}, 0x80, v{D+r}')
        A('s_mov_b32 exec_lo, 0x00ff00ff')
        A('s_mov_b32 exec_hi, 0x00ff00ff')
        for r in range(4):
            A(f'v_perm_b32 v{dst+r}, v{D+r}, v{TAG}, s{42+r}')
        A(f'buffer_store_dwordx4 {q(dst)}, v{voff}, {WS}, s{soff} offen {o.stflags}')
        A('s_mov_b64 exec, -1')

    def rbf(r):
        A(f'v_cvt_pk_bf16_f32 v{r}, v{r}, v{r}')
        A(f'v_and_b32 v{r}, 0xffff0000, v{r}')

    XF, AF, QD = 64, 128, 80
    A(f's_waitcnt vmcnt({14+NW1})')
    A(f'v_mul_lo_u32 v{TAG}, v{TAG}, s7')
    for t in range(3):
        A(f'ds_read_b128 {q(XF+4*t)}, v57 offset:{t*64}')
    A(f'ds_read_b64 {q(XF+12,2)}, v55 offset:192')
    A(f'v_add_u32 v{TAG}, 1013904223, v{TAG}')
    def qm(t):
        for c in range(4):
            if t < 3:
                A(f'v_mfma_f32_16x16x32_bf16 {q(QD+4*c)}, {q(AF+16*t+4*c)}, {q(XF+4*t)}, {"0" if t==0 else q(QD+4*c)}')
            else:
                A(f'v_mfma_f32_16x16x16_bf16 {q(QD+4*c)}, {q(AF+48+2*c,2)}, {q(XF+12,2)}, {q(QD+4*c)}')
    for t in range(4):
        A(f's_waitcnt vmcnt({max(0, 10-4*t)+NW1})')
        for c in range(4):
            if t < 3:
                A(f'ds_read_b64_tr_b16 {q(AF+16*t+4*c,2)}, v61 offset:{t*4096+c*32}')
                A(f'ds_read_b64_tr_b16 {q(AF+16*t+4*c+2,2)}, v61 offset:{t*4096+c*32+512}')
            else:
                A(f'ds_read_b64_tr_b16 {q(AF+48+2*c,2)}, v63 offset:{c*32}')
        if t >= 1:
            A(f's_waitcnt lgkmcnt({8 if t < 3 else 4})')
            qm(t-1)
    A('s_waitcnt lgkmcnt(0)')
    qm(3)
    A('s_nop 5')
    publish(QD, T, 62, 5)
    g.stamp(1)
    HD = 104
    A('s_waitcnt vmcnt(1)')
    for t in range(2):
        A(f'ds_read_b128 {q(96+4*t)}, v54 offset:{t*64}')
    for t in range(2):
        for c in range(4):
            A(f'ds_read_b64_tr_b16 {q(AF+16*t+4*c,2)}, v61 offset:{W1S-STG+t*4096+c*32}')
            A(f'ds_read_b64_tr_b16 {q(AF+16*t+4*c+2,2)}, v61 offset:{W1S-STG+t*4096+c*32+512}')
    A(f'v_add_u32 v57, {GS}, v56')
    A(f'ds_read_b128 {q(TL)}, v57')
    A(f'v_add_u32 v57, {XS}, v56')
    A(f'ds_read_b128 {q(TL+4)}, v57')
    A(f'ds_read_b128 {q(TL+8)}, v57 offset:896')
    A('s_waitcnt lgkmcnt(3)')
    for t in range(2):
        for c in range(4):
            A(f'v_mfma_f32_16x16x32_bf16 {q(HD+4*c)}, {q(AF+16*t+4*c)}, {q(96+4*t)}, {"0" if t==0 else q(HD+4*c)}')
    A('s_nop 5')
    publish(HD, 120, 53, 21)
    A('s_waitcnt lgkmcnt(0)')
    for b in range(2):
        acc = TL + 12 + b
        for d in range(4):
            A(f'v_lshlrev_b32 v{TL+16}, 16, v{TL+d}')
            A(f'v_and_b32 v{TL+17}, 0xffff0000, v{TL+d}')
            A(f'v_lshlrev_b32 v{TL+18}, 16, v{TL+4+4*b+d}')
            A(f'v_and_b32 v{TL+19}, 0xffff0000, v{TL+4+4*b+d}')
            A(f'v_mul_f32 v{TL+16}, v{TL+16}, v{TL+18}')
            A(f'v_mul_f32 v{TL+17}, v{TL+17}, v{TL+19}')
            A(f'v_cvt_pk_bf16_f32 v{TL+18}, v{TL+16}, v{TL+17}')
            A(f'v_lshlrev_b32 v{TL+16}, 16, v{TL+18}')
            A(f'v_and_b32 v{TL+17}, 0xffff0000, v{TL+18}')
            if d == 0:
                A(f'v_add_f32 v{acc}, v{TL+16}, v{TL+17}')
            else:
                A(f'v_add_f32 v{acc}, v{acc}, v{TL+16}')
                A(f'v_add_f32 v{acc}, v{acc}, v{TL+17}')
    Z = TL + 12
    A('s_nop 1')
    A(f'v_permlane32_swap_b32 v{Z}, v{Z+1}')
    A(f'v_add_f32 v{Z}, v{Z}, v{Z+1}')
    A(f'v_mov_b32 v{Z+1}, v{Z}')
    A('s_nop 1')
    A(f'v_permlane16_swap_b32 v{Z}, v{Z+1}')
    A(f'v_add_f32 v{Z}, v{Z}, v{Z+1}')
    for rr in (8, 4, 2, 1):
        A('s_nop 1')
        A(f'v_add_f32_dpp v{Z}, v{Z}, v{Z} row_ror:{rr} {DPPM}')
    rbf(Z)
    A(f'v_mul_f32 v{Z}, {f32(-LOG2E)}, v{Z}')
    A(f'v_exp_f32 v{Z}, v{Z}')
    A('s_nop 0')
    A(f'v_add_f32 v{Z}, 1.0, v{Z}')
    A(f'v_rcp_f32 v{G0}, v{Z}')
    A('s_nop 0')
    rbf(G0)
    A(f'v_sub_f32 v{OMG}, 1.0, v{G0}')
    rbf(OMG)
    A(f'v_mov_b32 v{G0+1}, v{G0}')
    A(f'v_mov_b32 v{OMG+1}, v{OMG}')
    A('s_nop 1')
    A(f'v_permlane32_swap_b32 v{G0}, v{G0+1}')
    A(f'v_permlane32_swap_b32 v{OMG}, v{OMG+1}')
    for i in range(8):
        A(f'v_mov_b32 v{O+i}, 0')
    for i in range(32):
        A(f'v_mov_b32 v{PV+i}, 0')
    A(f'v_mov_b32 v{M}, 0xff7fffff')
    A(f'v_mov_b32 v{LS}, 0')
    A('v_lshlrev_b32 v57, 3, v1')
    A(f'v_add_u32 v57, {QS}, v57')
    A('v_bfe_u32 v58, v2, 1, 1')
    SCA = 245
    A(f'v_lshlrev_b32 v{SCA}, 6, v58')
    A(f'v_lshl_add_u32 v{SCA}, v3, 4, v{SCA}')
    A(f'v_add_u32 v{SCA}, {STG}, v{SCA}')
    A('v_lshlrev_b32 v58, 9, v58')
    A('v_lshl_add_u32 v58, v3, 4, v58')
    A(f'v_add_u32 v58, {QS}, v58')

    def poll_landed():
        d = g.new('pd')
        sp = g.new('ps')
        A(f's_cmp_ge_u32 s{sLND}, s{sNEED}')
        A(f's_cbranch_scc1 {d}')
        g.lab(sp)
        A(f'ds_read_b32 v14, v{LNDA}')
        A('s_waitcnt lgkmcnt(0)')
        A(f'v_readfirstlane_b32 s{sLND}, v14')
        A(f's_cmp_ge_u32 s{sLND}, s{sNEED}')
        A(f's_cbranch_scc1 {d}')
        if o.lsleep:
            A(f's_sleep {o.lsleep}')
        A(f's_sub_u32 s{sBUD}, s{sBUD}, 1')
        A(f's_cbranch_scc0 {sp}')
        A(f's_mov_b32 s{sBUD}, 0')
        g.lab(d)

    hload = f'buffer_load_dwordx4 {q(HV)}, v{HV+4}, {WS}, s22 offen {o.ldflags}'
    A(f's_mov_b32 s{sNEED}, {o.qwait}')
    poll_landed()
    g.lab('.Lqpoll')
    for i in range(8):
        A(f'buffer_load_dwordx4 {q(KV+4*i)}, v56, {WS}, s{6 if i < 4 else 4} offen offset:{(i&3)*1024} {o.ldflags}')
    for i in range(8):
        A(f's_waitcnt vmcnt({7-i})')
        A(f'v_perm_b32 v14, v{KV+4*i+1}, v{KV+4*i}, s46')
        A(f'v_perm_b32 v15, v{KV+4*i+3}, v{KV+4*i+2}, s47')
        for r in range(4):
            A(f'v_and_b32 v{KV+4*i+r}, 0xffffff00, v{KV+4*i+r}')
        A(f'v_xor_b32 v14, v14, v{TAG}')
        if i == 0:
            A('v_xor_b32 v36, v14, v15')
        else:
            A('v_xor_b32 v14, v14, v15')
            A('v_or_b32 v36, v36, v14')
        if i >= 2:
            h = i & 1
            A(f'v_pk_add_f32 {q(KV+4*h,2)}, {q(KV+4*h,2)}, {q(KV+4*i,2)}')
            A(f'v_pk_add_f32 {q(KV+4*h+2,2)}, {q(KV+4*h+2,2)}, {q(KV+4*i+2,2)}')
    A('v_cmp_ne_u32 vcc, 0, v36')
    A('s_cbranch_vccz .Lqok')
    A(f's_sleep {o.qsleep}')
    A(f's_sub_u32 s{sBUD}, s{sBUD}, 64')
    A('s_cbranch_scc0 .Lqpoll')
    A(f's_mov_b32 s{sBUD}, 0')
    g.lab('.Lqok')
    for h in range(2):
        A(f'v_cvt_pk_bf16_f32 v{T+2*h}, v{KV+4*h}, v{KV+4*h+1}')
        A(f'v_cvt_pk_bf16_f32 v{T+2*h+1}, v{KV+4*h+2}, v{KV+4*h+3}')
    A(f'ds_write_b64 v57, {q(T,2)}')
    A(f'ds_write_b64 v57, {q(T+2,2)} offset:512')
    A(hload)
    A('s_waitcnt lgkmcnt(0)')
    for j in range(8):
        A(f'ds_read_b128 {q(QF+4*j)}, v58 offset:{j*64}')
    g.stamp(2)

    A(f's_mov_b32 s{sNEED}, 1')
    g.L.append('.p2align 6')
    g.lab('.Lktile')
    A(f'v_add_u32 v{KAC}, s{sSLOT}, v{KA0}')
    for i in range(1, 4):
        A(f'v_xor_b32 v{KAC+i}, {i*64}, v{KAC}')
    poll_landed()
    for i in range(16):
        j, hh = i >> 1, i & 1
        A(f'ds_read_b128 {q(KV+4*i)}, v{KAC+(j&3)} offset:{hh*8192+(j>>2)*256}')
    A(f'v_mov_b32 v14, s{sNEED}')
    for i in range(16):
        j, hh = i >> 1, i & 1
        A(f's_waitcnt lgkmcnt({15-i})')
        if i == 15:
            A(f'ds_write_b32 v{CONA}, v14')
        A(f'v_mfma_f32_16x16x32_bf16 {q(S+4*hh)}, {q(KV+4*i)}, {q(QF+4*j)}, {"0" if j==0 else q(S+4*hh)}')
    A(f's_add_u32 s{sNEED}, s{sNEED}, 1')
    A(f's_add_u32 s{sSLOT}, s{sSLOT}, {SLOT:#x}')
    A(f's_and_b32 s{sSLOT}, s{sSLOT}, 0x1ffff')
    A('s_nop 4')
    for i in range(4):
        A(f'v_cvt_pk_bf16_f32 v{T+i}, v{S+2*i}, v{S+2*i+1}')
    A('s_mov_b64 exec, s[64:65]')
    A(f'ds_write_b128 v{SCA}, {q(T)}')
    A('s_mov_b64 exec, -1')
    A(f'v_max3_f32 v14, v{S}, v{S+1}, v{S+2}')
    A(f'v_max3_f32 v15, v{S+3}, v{S+4}, v{S+5}')
    A(f'v_max3_f32 v14, v14, v{S+6}, v{S+7}')
    A(f'v_max3_f32 v{M}, v14, v15, v{M}')
    A(f'v_add_u32 v{SCA}, 128, v{SCA}')
    A(f's_cmp_le_u32 s{sNEED}, 64')
    A('s_cbranch_scc1 .Lktile')
    A(f'v_mov_b32 v15, v{M}')
    A(f'v_subrev_u32 v{SCA}, {64*128}, v{SCA}')
    A('s_nop 0')
    A(f'v_permlane16_swap_b32 v{M}, v15')
    A(f'v_max_f32 v{M}, v{M}, v15')
    A(f'v_mov_b32 v15, v{M}')
    A('s_nop 1')
    A(f'v_permlane32_swap_b32 v{M}, v15')
    A(f'v_max_f32 v{M}, v{M}, v15')
    rbf(M)
    A(f'v_mul_f32 v{NM}, s{sC}, v{M}')

    H = TL
    g.lab('.Lhchk')
    A('s_waitcnt vmcnt(0)')
    A(f'v_perm_b32 v14, v{HV+1}, v{HV}, s46')
    A(f'v_perm_b32 v15, v{HV+3}, v{HV+2}, s47')
    A('v_xor_b32 v14, v14, v15')
    A(f'v_cmp_ne_u32 vcc, v14, v{TAG}')
    A('s_cbranch_vccz .Lhok')
    A(hload)
    A(f's_sub_u32 s{sBUD}, s{sBUD}, 64')
    A('s_cbranch_scc0 .Lhchk')
    A(f's_mov_b32 s{sBUD}, 0')
    A('s_waitcnt vmcnt(0)')
    g.lab('.Lhok')
    for r in range(4):
        A(f'v_and_b32 v{H+r}, 0xffffff00, v{HV+r}')
    for rr in (4, 8):
        for r in range(4):
            A(f'v_add_f32_dpp v{H+r}, v{H+r}, v{H+r} row_ror:{rr} {DPPM}')
    for r in range(4):
        A(f'v_mov_b32 v{H+4+r}, v{H+r}')
    A('s_nop 0')
    for r in range(4):
        A(f'v_permlane16_swap_b32 v{H+r}, v{H+4+r}')
    for r in range(4):
        A(f'v_add_f32 v{H+r}, v{H+r}, v{H+4+r}')
    for r in range(4):
        rbf(H + r)
    for r in range(4):
        A(f'v_mul_f32 v{H+4+r}, {f32(-LOG2E)}, v{H+r}')
    for r in range(4):
        A(f'v_exp_f32 v{H+4+r}, v{H+4+r}')
    A('s_nop 0')
    for r in range(4):
        A(f'v_add_f32 v{H+4+r}, 1.0, v{H+4+r}')
    for r in range(4):
        A(f'v_rcp_f32 v{H+4+r}, v{H+4+r}')
    A('s_nop 0')
    for r in range(4):
        A(f'v_mul_f32 v{H+r}, v{H+r}, v{H+4+r}')
    A(f'v_cvt_pk_bf16_f32 v{H+4}, v{H}, v{H+1}')
    A(f'v_cvt_pk_bf16_f32 v{H+5}, v{H+2}, v{H+3}')
    A('v_and_b32 v14, 1, v2')
    A('v_and_b32 v15, 1, v3')
    A('v_lshlrev_b32 v14, 3, v14')
    A('v_lshl_add_u32 v57, v15, 2, v14')
    A(f'ds_bpermute_b32 v{H+6}, v57, v{H+4}')
    A(f'ds_bpermute_b32 v{H+8}, v57, v{H+5}')
    A('s_mov_b32 s48, 0x00030003')
    A('s_mov_b32 s49, 0x00300030')
    A('s_mov_b32 s50, 0x03000300')
    A('s_mov_b32 s51, 0x30003000')
    A('v_lshl_add_u32 v14, v15, 2, v4')
    A('v_mul_u32_u24 v60, 896, v14')
    A('v_lshrrev_b32 v14, 1, v3')
    A('v_lshl_add_u32 v60, v14, 5, v60')
    A('v_lshl_add_u32 v60, v5, 3, v60')
    A('v_mul_u32_u24 v63, 3584, v15')
    A('v_add_u32 v63, v63, v60')
    A(f'v_add_u32 v63, {WOS}, v63')
    A(f'v_add_u32 v60, {W2S}, v60')
    A('s_waitcnt lgkmcnt(0)')
    A(f'v_cndmask_b32 v{HA}, 0, v{H+6}, s[48:49]')
    A(f'v_cndmask_b32 v{HA+1}, 0, v{H+8}, s[48:49]')
    A(f'v_cndmask_b32 v{HA+2}, 0, v{H+6}, s[50:51]')
    A(f'v_cndmask_b32 v{HA+3}, 0, v{H+8}, s[50:51]')
    RG = TL
    HG = TL + 16
    for i in range(4):
        A(f'v_mov_b32 v{RG+4*i+3}, v{TAG}')
        A(f'v_not_b32 v{HG+4*i+3}, v{TAG}')
    A('v_lshrrev_b32 v57, 2, v1')
    A(f'v_mul_u32_u24 v61, {YROW}, v57')
    A('v_lshlrev_b32 v57, 7, v57')
    A('v_lshl_add_u32 v57, v5, 4, v57')
    A('v_lshl_add_u32 v61, v5, 4, v61')
    A('v_lshrrev_b32 v58, 5, v1')
    A('v_mul_u32_u24 v62, 896, v58')
    A('v_lshl_add_u32 v62, v5, 1, v62')
    A('v_lshl_add_u32 v58, v58, 2, v4')
    A('v_lshlrev_b32 v58, 12, v58')
    A('v_lshl_add_u32 v58, v15, 6, v58')
    A('v_lshl_add_u32 v58, v5, 4, v58')
    A('s_lshr_b32 s4, s2, 5')
    A('s_lshl_b32 s4, s4, 16')
    A('s_and_b32 s5, s2, 31')
    A('s_lshl_b32 s5, s5, 7')
    A('s_add_u32 s4, s4, s5')
    A(f's_add_u32 s4, s4, {REC:#x}')
    A('s_add_u32 s5, s4, 0x8000')
    A('s_add_u32 s6, s4, 0x80000')
    A('s_add_u32 s7, s4, 0x88000')
    A('s_lshl_b32 s44, s2, 12')
    A(f's_add_u32 s44, s44, {REC:#x}')
    A(f's_mul_i32 s45, s2, {YROW}')
    A(f's_add_u32 s45, s45, {YB:#x}')
    A('s_add_u32 s46, s45, 0x1000')
    A('s_lshl_b32 s47, s2, 3')

    g.L.append('.p2align 6')
    g.lab('.Lvtile')
    A(f'ds_read_b128 {q(T)}, v{SCA}')
    A(f'v_add_u32 v{SCA}, 128, v{SCA}')
    A(f'v_add_u32 v{VAC}, s{sSLOT}, v{VA0}')
    for i in range(1, 8):
        A(f'v_xor_b32 v{VAC+i}, {i*32}, v{VAC}')
    A('s_waitcnt lgkmcnt(0)')
    for i in range(4):
        A(f'v_lshlrev_b32 v{S+2*i}, 16, v{T+i}')
        A(f'v_and_b32 v{S+2*i+1}, 0xffff0000, v{T+i}')
    for i in range(8):
        A(f'v_fma_f32 v{P8+i}, v{S+i}, s{sC}, -v{NM}')
    for i in range(8):
        A(f'v_exp_f32 v{P8+i}, v{P8+i}')
    A('s_nop 0')
    for i in range(4):
        A(f'v_cvt_pk_bf16_f32 v{T+i}, v{P8+2*i}, v{P8+2*i+1}')
    A(f'v_add_f32 v{LS}, v{LS}, v{P8}')
    A(f'v_add_f32 v{P8+1}, v{P8+1}, v{P8+2}')
    A(f'v_add_f32 v{P8+3}, v{P8+3}, v{P8+4}')
    A(f'v_add_f32 v{P8+5}, v{P8+5}, v{P8+6}')
    A(f'v_add_f32 v{LS}, v{LS}, v{P8+7}')
    A(f'v_add_f32 v{P8+1}, v{P8+1}, v{P8+3}')
    A(f'v_add_f32 v{LS}, v{LS}, v{P8+5}')
    A(f'v_add_f32 v{LS}, v{LS}, v{P8+1}')
    for v in range(8):
        A(f's_mov_b64 exec, s[{64+2*v}:{65+2*v}]')
        A(f'v_mov_b64 {q(PV+4*v,2)}, {q(T,2)}')
        A(f'v_mov_b64 {q(PV+4*v+2,2)}, {q(T+2,2)}')
    A('s_mov_b64 exec, -1')
    poll_landed()
    order = [(i & 1) * 8 + (i >> 1) for i in range(16)]
    def vread(i):
        m = order[i]
        for kh in range(2):
            A(f'ds_read_b64_tr_b16 {q(KV+4*i+2*kh,2)}, v{VAC+(m&7)} offset:{kh*8192+(m>>3)*256}')
    PRE = 7
    for i in range(PRE):
        vread(i)
    A(f'v_mov_b32 v14, s{sNEED}')
    for i in range(16):
        issued = min(16, i + PRE)
        A(f's_waitcnt lgkmcnt({2*(issued-i-1)})')
        m = order[i]
        a = m >> 3
        if i == 15:
            A(f'ds_write_b32 v{CONA}, v14')
        A(f'v_mfma_f32_16x16x32_bf16 {q(O+4*a)}, {q(PV+4*(m&7))}, {q(KV+4*i)}, {q(O+4*a)}')
        if i + PRE < 16:
            vread(i + PRE)
    A(f's_add_u32 s{sNEED}, s{sNEED}, 1')
    A(f's_add_u32 s{sSLOT}, s{sSLOT}, {SLOT:#x}')
    A(f's_and_b32 s{sSLOT}, s{sSLOT}, 0x1ffff')
    A(f's_cmp_le_u32 s{sNEED}, 128')
    A('s_cbranch_scc1 .Lvtile')

    g.stamp(3)
    A(f'v_mov_b32 v15, v{LS}')
    for h in range(2):
        A(f'v_mov_b32_dpp v{RG+8*h+2}, v{NM} quad_perm:[{2*h},{2*h},{2*h},{2*h}] {DPPM}')
    A(f'v_permlane16_swap_b32 v{LS}, v15')
    A(f'v_add_f32 v{LS}, v{LS}, v15')
    A(f'v_mov_b32 v15, v{LS}')
    for h in range(2):
        A(f'v_mov_b64 {q(RG+8*h,2)}, {q(O+2*h,2)}')
    A(f'v_permlane32_swap_b32 v{LS}, v15')
    A(f'v_add_f32 v{LS}, v{LS}, v15')
    for h in range(2):
        A(f'buffer_store_dwordx4 {q(RG+8*h)}, v57, {WS}, s44 offen offset:{h*2048} {o.stflags}')
    for h in range(2):
        r = RG + 8*h + 4
        A(f'v_mov_b32_dpp v{r+2}, v{LS} quad_perm:[{2*h},{2*h},{2*h},{2*h}] {DPPM}')
        A(f'v_mov_b64 {q(r,2)}, {q(O+4+2*h,2)}')
        A(f'buffer_store_dwordx4 {q(r)}, v57, {WS}, s44 offen offset:{h*2048+64} {o.stflags}')
    WF = KV
    YD = QF
    YG = PV
    def between():
        g.lab('.Lwwait')
        A(f'ds_read_b32 v14, v{LNDA}')
        A('s_waitcnt lgkmcnt(0)')
        A(f'v_readfirstlane_b32 s{sRAW}, v14')
        A(f's_cmp_ge_u32 s{sRAW}, {WDONE:#x}')
        A('s_cbranch_scc1 .Lwok')
        A('s_sleep 1')
        A(f's_sub_u32 s{sBUD}, s{sBUD}, 1')
        A('s_cbranch_scc0 .Lwwait')
        A(f's_mov_b32 s{sBUD}, 0')
        g.lab('.Lwok')
        W2F = PV
        for i in range(14):
            A(f'ds_read_b64_tr_b16 {q(W2F+2*i,2)}, v60 offset:{i*64}')
        A('s_waitcnt lgkmcnt(0)')
        for i in range(7):
            A(f'v_mfma_f32_16x16x16_bf16 {q(YD+4*i)}, {q(HA,2)}, {q(W2F+4*i,2)}, 0')
        for i in range(7):
            A(f'v_mfma_f32_16x16x16_bf16 {q(YD+4*i)}, {q(HA+2,2)}, {q(W2F+4*i+2,2)}, {q(YD+4*i)}')
        for i in range(14):
            A(f'ds_read_b64_tr_b16 {q(WF+4*i,2)}, v63 offset:{i*64}')
            A(f'ds_read_b64_tr_b16 {q(WF+4*i+2,2)}, v63 offset:{i*64+3584}')
        for i in range(7):
            A(f'v_mul_f32 v{FP+2*i}, v{OMG}, v{YD+4*i}')
            A(f'v_mul_f32 v{FP+2*i+1}, v{OMG+1}, v{YD+4*i+1}')
        for i in range(7):
            A(f'v_mov_b32 v{YG+4*i+3}, v{TAG}')
        A('s_lshl_b32 s64, s2, 6')
        A(f's_add_u32 s64, s64, {YB:#x}')
        for i in range(1, 16):
            A(f's_add_u32 s{64+i}, s64, {i*16*YROW:#x}')
    g.apoll('h1', [f'buffer_load_dwordx4 {q(HG+4*i)}, v58, {WS}, s{4+i} offen {o.ldflags}' for i in range(4)],
            [HG+4*i+3 for i in range(4)], [36, 38, 40, 42], TAG, sBUD, o.h1sleep,
            slow=(o.h1thr, o.h1slow) if o.h1slow else None, between=between)
    g.stamp(4)
    for i in range(4):
        A(f'v_mov_b32 v{16+i}, v{HG+4*i+2}')
        A(f'v_mov_b32 v{20+i}, v{HG+4*i+2}')
    for i in range(4):
        if i == 3:
            A('v_max_f32 v36, v16, v17')
        A(f'v_permlane16_swap_b32 v{16+i}, v{20+i}')
    A('v_max_f32 v37, v18, v19')
    A('s_nop 0')
    A(f'v_max_f32_dpp v36, v36, v36 row_ror:4 {DPPM}')
    A(f'v_max_f32_dpp v37, v37, v37 row_ror:4 {DPPM}')
    A('s_nop 0')
    A(f'v_max_f32_dpp v36, v36, v36 row_ror:8 {DPPM}')
    A(f'v_max_f32_dpp v37, v37, v37 row_ror:8 {DPPM}')
    A('v_mov_b32 v38, v36')
    A('v_mov_b32 v39, v37')
    A('s_nop 0')
    A('v_permlane32_swap_b32 v36, v38')
    A('v_permlane32_swap_b32 v37, v39')
    A('v_max_f32 v36, v36, v38')
    A('v_max_f32 v37, v37, v39')
    for i in range(4):
        A(f'v_sub_f32 v{40+i}, v{16+i}, v{36+(i>>1)}')
    for i in range(4):
        A(f'v_exp_f32 v{40+i}, v{40+i}')
    A('s_mov_b32 vcc_lo, 0xaaaaaaaa')
    for b in range(2):
        srcs0 = (HG+8*b, HG+8*b+1, 20+2*b)
        srcs1 = (HG+8*b+4, HG+8*b+5, 21+2*b)
        for k in range(3):
            A(f'v_mul_f32 v{44+3*b+k}, v{40+2*b}, v{srcs0[k]}')
        for k in range(3):
            A(f'v_fmac_f32 v{44+3*b+k}, v{41+2*b}, v{srcs1[k]}')
    A('s_mov_b32 vcc_hi, 0xaaaaaaaa')
    for k in range(3):
        A(f'v_permlane32_swap_b32 v{44+k}, v{47+k}')
    for k in range(3):
        A(f'v_add_f32 v{44+k}, v{44+k}, v{47+k}')
    for rr in (4, 8):
        for k in (2, 0, 1) if rr == 8 else (0, 1, 2):
            if rr == 8 and k == 2:
                A('s_nop 1')
            A(f'v_add_f32_dpp v{44+k}, v{44+k}, v{44+k} row_ror:{rr} {DPPM}')
            if rr == 8 and k == 2:
                A('v_rcp_f32 v46, v46')
    A('v_mul_f32 v44, v44, v46')
    A('v_mul_f32 v45, v45, v46')
    A('v_cvt_pk_bf16_f32 v44, v44, v45')
    A('v_mov_b32 v45, v44')
    A('s_nop 1')
    A('v_permlane32_swap_b32 v44, v45')
    A('s_nop 1')
    for nn in range(4):
        A(f'v_mov_b32_dpp v{36+nn}, v45 quad_perm:[{nn},{nn},{nn},{nn}] {DPPM}')
    for nn in range(4):
        A(f'v_cndmask_b32_dpp v{36+nn}, v44, v{36+nn}, vcc quad_perm:[{nn},{nn},{nn},{nn}] {DPPM}')
    for nn in range(4):
        A(f'v_cndmask_b32 v{48+nn}, 0, v{36+nn}, s[48:49]')
    for nn in range(4):
        A(f'v_cndmask_b32 v{52+nn}, 0, v{36+nn}, s[50:51]')
    A('s_waitcnt lgkmcnt(0)')
    seq = []
    for i in range(7):
        seq.append((i, 0))
        if i >= 1:
            seq.append((i-1, 1))
    seq.append((6, 1))
    for n, (i, e) in enumerate(seq):
        A(f'v_mfma_f32_16x16x32_bf16 {q(YD+4*i)}, {q(48+4*e)}, {q(WF+8*i+4*e)}, {"0" if e==0 else q(YD+4*i)}')
    for i in range(7):
        A(f'v_fma_f32 v{YG+4*i}, v{G0}, v{YD+4*i}, v{FP+2*i}')
        A(f'v_fma_f32 v{YG+4*i+1}, v{G0+1}, v{YD+4*i+1}, v{FP+2*i+1}')
        A(f'buffer_store_dwordx4 {q(YG+4*i)}, v56, {WS}, s{45+(i>>2)} offen offset:{(i&3)*1024} {o.stflags}')
    g.stamp(5)
    A('s_cmp_ge_u32 s2, 112')
    A('s_cbranch_scc1 .Lfin')
    for i in range(16):
        A(f'v_not_b32 v{KV+4*i+3}, v{TAG}')
    if o.h2sleep0:
        A(f's_sleep {o.h2sleep0}')
    mk = [8, 10, 12, 14, 20, 22, 24, 26, 28, 30, 32, 34, 36, 38, 40, 42]
    g.apoll('h2', [f'buffer_load_dwordx4 {q(KV+4*i)}, v61, {WS}, s{64+i} offen {o.ldflags}' for i in range(16)],
            [KV+4*i+3 for i in range(16)], mk, TAG, sBUD, o.h2sleep)
    for k in range(4):
        A(f'v_pk_add_f32 v[{36+2*k}:{37+2*k}], {q(KV+8*k,2)}, {q(KV+8*k+4,2)}')
    for k in range(4):
        A(f'v_pk_add_f32 v[{44+2*k}:{45+2*k}], {q(KV+32+8*k,2)}, {q(KV+32+8*k+4,2)}')
    for k in range(4):
        A(f'v_pk_add_f32 v[{36+2*k}:{37+2*k}], v[{36+2*k}:{37+2*k}], v[{44+2*k}:{45+2*k}]')
    A('v_pk_add_f32 v[36:37], v[36:37], v[38:39]')
    A('v_pk_add_f32 v[40:41], v[40:41], v[42:43]')
    A('v_pk_add_f32 v[36:37], v[36:37], v[40:41]')
    A('s_nop 1')
    A('v_permlane32_swap_b32 v36, v37')
    A('v_add_f32 v36, v36, v37')
    A('v_mov_b32 v37, v36')
    A('s_nop 1')
    A('v_permlane16_swap_b32 v36, v37')
    A('v_add_f32 v36, v36, v37')
    for rr in (4, 8):
        A('s_nop 1')
        A(f'v_add_f32_dpp v36, v36, v36 row_ror:{rr} {DPPM}')
    A('v_cvt_pk_bf16_f32 v36, v36, v36')
    A('s_mov_b32 exec_lo, 0xf')
    A('s_mov_b32 exec_hi, 0xf')
    A(f'buffer_store_short v36, v62, s[{sOUT}:{sOUT+3}], s47 offen')
    A('s_cmp_lg_u32 s2, 0')
    A('s_cbranch_scc1 .Lfin')
    A('s_mov_b64 exec, 1')
    A(f'buffer_store_dword v{TAG}, v59, {WS}, 0 offen')
    g.lab('.Lfin')
    if o.diag:
        g.stamp(6)
        A('s_mov_b64 exec, 1')
        A('s_lshl_b32 s4, s2, 7')
        A(f's_add_u32 s4, s4, {STAMP:#x}')
        for k in range(7):
            A(f'v_mov_b32 v14, s{86+2*k}')
            A(f'v_mov_b32 v15, s{87+2*k}')
            A(f'buffer_store_dwordx2 v[14:15], v59, {WS}, s4 offen offset:{8*k}')
            A('s_nop 1')
    g.lab('.Lexit')
    A('s_endpgm')

    ref = open('cdna_kernels/' + NAME + '.s.ref').read().split('\n')
    head = [l for l in ref if l.startswith(';') and '@launch' not in l and 'Override launch' not in l and 'grid=ceil' not in l]
    txt = '\n'.join(head) + '\n'
    txt += f'; @launch grid=(256,1,1) block=(128,1,1) lds={LDS_BYTES}\n'
    txt += '.amdgcn_target "amdgcn-amd-amdhsa--gfx950"\n.text\n'
    txt += '\n'.join(g.L) + '\n'
    txt += f'''.section .rodata,"a"
.p2align 6
.amdhsa_kernel {K}
  .amdhsa_next_free_vgpr 256
  .amdhsa_next_free_sgpr 102
  .amdhsa_accum_offset 256
  .amdhsa_group_segment_fixed_size 0
  .amdhsa_kernarg_size 96
  .amdhsa_user_sgpr_count 2
  .amdhsa_user_sgpr_kernarg_segment_ptr 1
  .amdhsa_system_sgpr_workgroup_id_x 1
.end_amdhsa_kernel
'''
    return txt


def parser():
    p = argparse.ArgumentParser()
    il = lambda x: [int(v) for v in x.split(',') if v]
    p.add_argument('-o', default='cdna_kernels/' + NAME + '.s')
    p.add_argument('--window', type=int, default=20)
    p.add_argument('--gs', type=int, default=2)
    p.add_argument('--unit', type=int, default=8)
    p.add_argument('--idxsh', type=int, default=3)
    p.add_argument('--perm', type=il, default=[0, 2, 1, 3])
    p.add_argument('--qwait', type=int, default=2)
    p.add_argument('--cfirst', type=int, default=14)
    p.add_argument('--wk', type=il, default=[])
    p.add_argument('--w1', type=il, default=[28,28,28,28,28,28,28,24])
    p.add_argument('--icpf', type=int, default=16)
    p.add_argument('--diag', action='store_true')
    p.add_argument('--prog', action='store_true')
    p.add_argument('--kflags', default='nt')
    p.add_argument('--vflags', default='nt')
    p.add_argument('--wqflags', default='nt')
    p.add_argument('--stflags', default='sc1')
    p.add_argument('--ldflags', default='sc1')
    p.add_argument('--lsleep', type=int, default=1)
    p.add_argument('--qsleep', type=int, default=6)
    p.add_argument('--h1sleep', type=int, default=4)
    p.add_argument('--h1thr', type=int, default=16)
    p.add_argument('--h1slow', type=int, default=16)
    p.add_argument('--h2sleep0', type=int, default=8)
    p.add_argument('--h2sleep', type=int, default=4)
    return p


if __name__ == '__main__':
    o = parser().parse_args()
    open(o.o, 'w').write(gen(o))
```

```python
import sys, struct, argparse

NAME = 'gated_mix__gqa_block_cached__dense_activation_silu__decode'

RING = 0
SLOT = 16384
STG = 131072
W1S = STG + 14336
W2S = RING
WOS = RING + SLOT
XS = W1S + 8192
GS = XS + 2048
QS = GS + 1024
FL = QS + 1024
LDS_BYTES = FL + 512

QP = 0x20000
HP = 0x40000
REC = 0x100000
YB = 0x200000
YROW = 7168
WS_BYTES = 0x400000
STAMP = 0x400000
WDONE = 0x20000

def f32(x):
    return '0x%08x' % struct.unpack('<I', struct.pack('<f', x))[0]

LOG2E = 1.4426950408889634
DPPM = 'row_mask:0xf bank_mask:0xf'


class G:
    def __init__(self, o):
        self.L = []
        self.o = o
        self.uid = 0

    def A(self, s):
        self.L.append('    ' + s)

    def lab(self, s):
        self.L.append(s + ':')

    def new(self, p):
        self.uid += 1
        return f'.L{p}_{self.uid}'

    def srd(self, d, ptr, nbytes):
        A = self.A
        A(f's_mov_b32 s{d}, s{ptr}')
        A(f's_mov_b32 s{d+1}, s{ptr+1}')
        A(f's_mov_b32 s{d+2}, {nbytes:#x}')
        A(f's_mov_b32 s{d+3}, 0x20000')

    def stamp(self, k):
        if self.o.diag:
            self.A(f's_memrealtime s[{86+2*k}:{87+2*k}]')
            self.A('s_waitcnt lgkmcnt(0)')

    def apoll(self, name, loads, tagregs, masks, TAG, sBUD, sleep, slow=None, between=None):
        A = self.A
        for ld in loads:
            A(ld)
        if between:
            between()
        self.lab(f'.L{name}_loop')
        if sleep:
            A(f's_sleep {sleep}')
        for t, m in zip(tagregs, masks):
            A(f'v_cmp_ne_u32 s[{m}:{m+1}], v{t}, v{TAG}')
        A(f's_or_b64 vcc, s[{masks[0]}:{masks[0]+1}], s[{masks[1]}:{masks[1]+1}]')
        for m in masks[2:]:
            A(f's_or_b64 vcc, vcc, s[{m}:{m+1}]')
        A(f's_cbranch_scc0 .L{name}_ok')
        if self.o.pairskip and len(loads) > 4:
            for k in range(0, len(loads), 2):
                sk = self.new('sk')
                m0_, m1_ = masks[k], masks[k+1]
                A(f's_or_b64 exec, s[{m0_}:{m0_+1}], s[{m1_}:{m1_+1}]')
                A(f's_cbranch_execz {sk}')
                A(loads[k])
                A(loads[k+1])
                self.lab(sk)
        else:
            for ld, m in zip(loads, masks):
                sk = self.new('sk')
                A(f's_mov_b64 exec, s[{m}:{m+1}]')
                if not self.o.nobr:
                    A(f's_cbranch_execz {sk}')
                A(ld)
                self.lab(sk)
        A('s_mov_b64 exec, -1')
        if slow:
            thr, extra = slow
            sk = self.new('sk')
            A('s_bcnt1_i32_b64 vcc_lo, vcc')
            A(f's_cmp_le_u32 vcc_lo, {thr}')
            A(f's_cbranch_scc1 {sk}')
            A(f's_sleep {extra}')
            self.lab(sk)
        A(f's_sub_u32 s{sBUD}, s{sBUD}, 16')
        A(f's_cbranch_scc0 .L{name}_loop')
        A(f's_mov_b32 s{sBUD}, 0')
        self.lab(f'.L{name}_ok')


def q(b, n=4):
    return f'v[{b}:{b+n-1}]'


def gen(o):
    g = G(o)
    A = g.A
    W = o.window
    K = NAME + '_kernel'
    pX, pK, pV, pWQ, pWO, pW1, pW2, pG, pOUT, pWS = 36, 38, 40, 42, 44, 48, 50, 52, 54, 58

    g.L.append(f'.globl {K}\n.p2align 8\n.type {K},@function\n{K}:')
    A('s_cmp_ge_u32 s2, 256')
    A('s_cbranch_scc1 .Lexit')
    if o.diag:
        A('s_memrealtime s[30:31]')
    A('s_load_dwordx16 s[36:51], s[0:1], 0')
    A('s_load_dwordx8 s[52:59], s[0:1], 64')
    if o.icpf:
        A(f's_cmp_ge_u32 s2, {o.icpf}')
        A('s_cbranch_scc1 .Lnopf')
        A('s_getpc_b64 s[4:5]')
        g.lab('.Lpc')
        A('v_lshlrev_b32 v9, 7, v0')
        A('v_add_u32 v10, 0x4000, v9')
        A('v_min_u32 v10, .Lexit-.Lpc, v10')
        A('global_load_dword v249, v9, s[4:5]')
        A('global_load_dword v248, v10, s[4:5]')
        g.lab('.Lnopf')
    A('v_lshrrev_b32 v1, 6, v0')
    A('v_lshlrev_b32 v8, 2, v0')
    A('v_readfirstlane_b32 s3, v1')
    A(f'v_add_u32 v8, {FL}, v8')
    A('v_mov_b32 v14, 0')
    A('ds_write_b32 v8, v14')
    A('v_and_b32 v1, 63, v0')
    A('s_cmp_lg_u32 s3, 0')
    A('s_cbranch_scc1 .Lcons')

    gs, U, sh = o.gs, o.unit, o.idxsh
    lg = gs.bit_length() - 1
    A(f's_lshr_b32 s17, s2, {sh}')
    A(f's_and_b32 s17, s17, {gs-1}')
    A(f's_lshr_b32 s18, s2, {sh+lg}')
    A(f's_lshl_b32 s18, s18, {sh}')
    if o.rx == 1:
        A('s_lshr_b32 s19, s2, 4')
        A('s_xor_b32 s19, s19, s2')
        A(f's_and_b32 s19, s19, {(1<<sh)-1}')
    elif o.rx == 2:
        A('s_lshr_b32 s19, s2, 4')
        A('s_add_u32 s19, s19, s2')
        A(f's_and_b32 s19, s19, {(1<<sh)-1}')
    elif o.rx == 3:
        A('s_lshr_b32 s19, s2, 5')
        A('s_add_u32 s19, s19, s2')
        A(f's_and_b32 s19, s19, {(1<<sh)-1}')
    else:
        A(f's_and_b32 s19, s2, {(1<<sh)-1}')
    A('s_or_b32 s18, s18, s19')
    A(f's_lshl_b32 s16, s18, {20+lg}')
    A(f's_mul_i32 s17, s17, {U*4096}')
    A('s_add_u32 s16, s16, s17')
    A('v_lshrrev_b32 v3, 5, v1')
    A('v_and_b32 v5, 31, v1')
    A('v_lshlrev_b32 v4, 1, v3')
    A('v_xor_b32 v5, v5, v4')
    A('v_lshlrev_b32 v5, 4, v5')
    A('v_lshl_add_u32 v20, v3, 9, v5')
    for i in range(1, 4):
        A(f'v_xor_b32 v{20+i}, {i*64}, v20')
    A(f'v_mov_b32 v7, {FL+256}')
    A('v_lshlrev_b32 v24, 4, v1')
    j0 = (W - 1) % 16
    lag = (W - 1) // 16 + 1
    A('s_mov_b32 s20, -7')
    A('s_mov_b32 s27, s16')
    A('s_mov_b32 s24, 0')
    A(f's_mov_b32 s25, {1<<22}')
    A('s_lshr_b32 s4, s2, 4')
    A('s_lshl_b32 s4, s4, 8')
    A('s_bfe_u32 s5, s2, 0x20002')
    A('s_lshl_b32 s5, s5, 5')
    A('s_add_u32 s4, s4, s5')
    A('s_and_b32 s5, s2, 3')
    A('s_lshl_b32 s5, s5, 2')
    A('s_add_u32 s4, s4, s5')
    A('s_mul_i32 s4, s4, 896')
    A('s_mul_i32 s6, s2, 7168')
    A('s_waitcnt lgkmcnt(0)')
    g.srd(8, pK, 0x10000000)
    g.srd(60, pWO, 4096 * 896)
    g.srd(64, pW2, 1792 * 896)
    if o.diag:
        g.srd(68, pWS, STAMP + 0x20000)
        A('v_mov_b32 v30, 0')
    A('s_barrier')
    spins = []
    def check(name):
        A('s_cmp_lt_i32 s24, s20')
        A(f's_cbranch_scc1 .Lspin{name}')
        g.lab(f'.Lgo{name}')
        spins.append(name)
    def body(name, wins, first=False):
        for tt in range(8):
            Wd = wins[tt]
            if not first:
                check(f'{name}{tt}')
            for j in range(16):
                if j % 4 == 0:
                    k = tt * 4 + o.perm[j // 4]
                    A(f's_mov_b32 m0, {RING + tt*SLOT + j*1024:#x}')
                    A(f's_add_u32 s23, s16, {((k//U)*gs*U + k % U)*4096:#x}')
                if not (first and tt * 16 + j < Wd):
                    A(f's_waitcnt vmcnt({Wd-1})')
                elif j % 4 == 0:
                    A('s_nop 0')
                A(f'buffer_load_dwordx4 v{20+(j&3)}, s[8:11], s23 offen offset:{(j&3)*1024} {o.kflags} lds')
                if j == (Wd - 1) % 16:
                    if first:
                        v = tt - (Wd - 1) // 16
                        if v > 0:
                            A(f'v_mov_b32 v14, {v}')
                            A('ds_write_b32 v8, v14')
                    else:
                        A(f's_add_u32 s21, s20, {(7 if j <= 9 else 6) - (Wd - 1) // 16}')
                        A('v_mov_b32 v14, s21')
                        A('ds_write_b32 v8, v14')
                if o.prog and j == 0 and tt % 2 == 0:
                    A('s_memrealtime s[86:87]')
                if j == 9:
                    if not first or tt == 7:
                        A('ds_read_b32 v15, v7')
                    A('s_add_u32 s20, s20, 1')
                if j == 13 and tt == 7:
                    if name == 'k':
                        A('s_mov_b32 s16, s27')
                    else:
                        A(f's_add_u32 s16, s16, {16384*gs*8:#x}')
                if j == 14 and (not first or tt == 7 or o.prog):
                    A('s_waitcnt lgkmcnt(0)')
                    if not first or tt == 7:
                        A('v_readfirstlane_b32 s24, v15')
                if o.prog and j == 15 and tt % 2 == 1:
                    A('s_add_u32 s17, s20, 6')
                    A('s_lshr_b32 m0, s17, 1')
                    A('s_nop 0')
                    A('v_writelane_b32 v30, s86, m0')
    A('s_mov_b32 s26, 49')
    body('f', o.w1 or [W] * 8, True)
    g.L.append('.p2align 6')
    g.lab('.Lload')
    body('m', [W] * 8)
    A('s_cmp_lt_i32 s20, s26')
    A('s_cbranch_scc1 .Lload')
    A('s_cmp_gt_i32 s20, 49')
    A('s_cbranch_scc1 .Ldrain')
    A('s_mov_b32 s26, 121')
    body('k', o.wk or [W] * 8)
    A(f's_mov_b32 s8, s{pV}')
    A(f's_mov_b32 s9, s{pV+1}')
    A('s_branch .Lload')
    g.lab('.Ldrain')
    NX = 23
    todo = list(range(128 - lag + 1, 129))
    def flag(c):
        A(f'v_mov_b32 v14, {c}')
        A('ds_write_b32 v8, v14')
        if c == 128 and o.diag:
            A('s_memrealtime s[86:87]')
    A('s_add_u32 s20, s20, 1')
    check('w')
    for e in range(NX):
        if e < 7:
            A(f's_mov_b32 m0, {W2S + e*1024}')
            A(f's_add_u32 s23, s6, {e*1024}')
            srd = 64
        else:
            k = e - 7
            a_, nn, u = k >> 3, (k >> 1) & 3, k & 1
            if k == 0:
                A('s_mov_b32 exec_hi, 0x00ffffff')
            A(f's_mov_b32 m0, {WOS + k*896}')
            A(f's_add_u32 s23, s4, {(128*a_+16*u+nn)*896}')
            srd = 60
        A(f's_waitcnt vmcnt({W-1})')
        while todo and 2048 + e >= 16 * todo[0] - 1 + W:
            flag(todo.pop(0))
        A(f'buffer_load_dwordx4 v24, s[{srd}:{srd+3}], s23 offen nt lds')
    for c in todo:
        A(f's_waitcnt vmcnt({2048 + NX - 16*c})')
        flag(c)
    A('s_waitcnt vmcnt(0)')
    A(f'v_mov_b32 v14, {WDONE + 128:#x}')
    A('ds_write_b32 v8, v14')
    if o.diag:
        A('s_waitcnt lgkmcnt(0)')
        A('v_mov_b32 v16, s86')
        A('v_mov_b32 v17, s87')
        A('v_mov_b32 v18, 0')
        A('v_mov_b32 v19, 0')
        A('s_lshl_b32 s17, s2, 7')
        A(f's_add_u32 s17, s17, {STAMP+64:#x}')
        A('s_mov_b64 exec, 1')
        A('buffer_store_dwordx4 v[16:19], v19, s[68:71], s17 offen')
        A('s_mov_b64 exec, -1')
        A('v_lshlrev_b32 v19, 2, v1')
        A('s_lshl_b32 s17, s2, 8')
        A(f's_add_u32 s17, s17, {STAMP+0x10000:#x}')
        A('buffer_store_dword v30, v19, s[68:71], s17 offen')
    A('s_endpgm')
    for tt in spins:
        g.lab(f'.Lspin{tt}')
        A('ds_read_b32 v15, v7')
        A('s_waitcnt lgkmcnt(0)')
        A('v_readfirstlane_b32 s24, v15')
        A('s_cmp_ge_i32 s24, s20')
        A(f's_cbranch_scc1 .Lgo{tt}')
        A('s_sleep 1')
        A('s_sub_u32 s25, s25, 1')
        A(f's_cbranch_scc0 .Lspin{tt}')
        A('s_mov_b32 s25, 0')
        A(f's_branch .Lgo{tt}')

    sX, sWQ, sWS, sW1, sG, sOUT = 8, 12, 16, 24, 32, 60
    TAG, LNDA, CONA, KA0, VA0, M, NM, LS = 6, 7, 8, 9, 10, 11, 12, 13
    KAC, VAC, O, S, T, P8 = 16, 20, 28, 36, 44, 48
    KV, QF, PV, FP, G0, TL = 64, 128, 160, 192, 206, 208
    HV = 240
    HA = 250
    OMG = 254
    sT, sSLOT, sLND, sC, sNEED, sBUD = 81, 82, 83, 84, 85, 80
    sRAW = 100
    WS = f's[{sWS}:{sWS+3}]'
    g.L.append('.p2align 6')
    g.lab('.Lcons')
    A('v_lshlrev_b32 v56, 4, v1')
    A('v_lshrrev_b32 v58, 3, v1')
    A('v_and_b32 v59, 7, v1')
    A('v_lshlrev_b32 v57, 13, v58')
    A('v_lshl_add_u32 v57, v59, 4, v57')
    A('v_mul_u32_u24 v58, 3584, v58')
    A('v_lshl_add_u32 v58, v59, 4, v58')
    A('v_mov_b32 v59, 0')
    A('v_and_b32 v2, 15, v1')
    A('v_lshrrev_b32 v3, 4, v1')
    A('v_bfe_u32 v4, v1, 2, 2')
    A('v_and_b32 v5, 3, v1')
    A('s_and_b32 s4, s2, 3')
    A(f's_mul_i32 s5, s4, {112*8192}')
    A('s_lshr_b32 s6, s2, 2')
    A('s_lshl_b32 s6, s6, 7')
    A('s_add_u32 s5, s5, s6')
    A('s_and_b32 s20, s2, 7')
    A(f's_mul_i32 s21, s20, {56*3584}')
    A('s_lshr_b32 s22, s2, 3')
    A('s_lshl_b32 s23, s22, 7')
    A('s_add_u32 s21, s21, s23')
    A('s_cmp_lt_u32 s2, 224')
    A('s_cselect_b32 s21, s21, 0x200000')
    A('s_waitcnt lgkmcnt(0)')
    g.srd(sWS, pWS, WS_BYTES + (0x10000 if o.diag else 0))
    g.srd(sX, pX, 1792)
    g.srd(sWQ, pWQ, 448 * 8192)
    if o.cfirst < 0:
        A('s_barrier')
    g.stamp(0)
    if o.diag:
        A('s_mov_b32 s101, s30')
    A(f'buffer_load_dword v{TAG}, v59, {WS}, 0 offen')
    A(f's_mov_b32 m0, {XS}')
    A('s_nop 0')
    A(f'buffer_load_dwordx4 v56, s[{sX}:{sX+3}], 0 offen lds')
    A(f'buffer_load_dwordx4 v56, s[{sX}:{sX+3}], 0 offen offset:1024 lds')
    for t in range(14):
        if o.cfirst == t:
            A('s_barrier')
        A(f's_mov_b32 m0, {STG + t*1024}')
        A(f's_add_u32 s6, s5, {t*65536:#x}')
        A(f'buffer_load_dwordx4 v57, s[{sWQ}:{sWQ+3}], s6 offen {o.wqflags} lds')
    if o.cfirst == 14:
        A('s_barrier')
    g.srd(sW1, pW1, 448 * 3584)
    g.srd(sG, pG, 896)
    A(f's_mov_b32 m0, {GS}')
    g.srd(sOUT, pOUT, 1792)
    A(f'buffer_load_dwordx4 v56, s[{sG}:{sG+3}], 0 offen lds')
    for t in range(8):
        A(f's_mov_b32 m0, {W1S + t*1024}')
        if t < 7:
            A(f's_add_u32 s6, s21, {t*8*3584:#x}')
        else:
            A('s_mov_b32 s6, 0x200000')
        A(f'buffer_load_dwordx4 v58, s[{sW1}:{sW1+3}], s6 offen nt lds')
    if o.cfirst > 14:
        A('s_barrier')
    NW1 = 9
    A('v_and_b32 v58, 1, v2')
    A('v_mul_u32_u24 v60, 896, v58')
    A('v_lshl_add_u32 v60, v3, 4, v60')
    A(f'v_add_u32 v60, {XS}, v60')
    A('v_lshl_add_u32 v61, v3, 3, v4')
    A('v_lshlrev_b32 v61, 7, v61')
    A('v_lshl_add_u32 v61, v5, 3, v61')
    A(f'v_add_u32 v61, {STG}, v61')
    A('v_lshl_add_u32 v63, v3, 2, v4')
    A('v_lshlrev_b32 v63, 7, v63')
    A('v_lshl_add_u32 v63, v5, 3, v63')
    A(f'v_add_u32 v63, {STG+96*128}, v63')
    A('s_mul_i32 s6, s4, 224')
    A('v_add_u32 v57, s6, v60')
    A('v_lshlrev_b32 v55, 3, v3')
    A('v_sub_u32 v55, v57, v55')
    A('s_mul_i32 s6, s20, 112')
    A('v_add_u32 v54, s6, v60')
    A('v_lshlrev_b32 v62, 16, v58')
    A('v_bfe_u32 v14, v2, 1, 2')
    A('v_lshl_add_u32 v62, v14, 6, v62')
    A('v_lshl_add_u32 v62, v3, 4, v62')
    A('v_lshlrev_b32 v53, 7, v14')
    A('v_lshl_add_u32 v53, v58, 5, v53')
    A('v_lshrrev_b32 v14, 1, v3')
    A('v_lshl_add_u32 v53, v14, 6, v53')
    A('v_and_b32 v14, 1, v3')
    A('v_lshl_add_u32 v53, v14, 4, v53')
    A(f'v_bfe_u32 v{HV+4}, v1, 2, 3')
    A(f'v_lshlrev_b32 v{HV+4}, 9, v{HV+4}')
    A(f'v_lshl_add_u32 v{HV+4}, v5, 4, v{HV+4}')
    A('v_and_b32 v14, 7, v2')
    A('v_lshlrev_b32 v14, 1, v14')
    A('v_xor_b32 v14, v14, v3')
    A('v_lshlrev_b32 v14, 4, v14')
    A(f'v_lshl_add_u32 v{KA0}, v2, 9, v14')
    A('v_lshl_add_u32 v14, v3, 2, v4')
    A('v_and_b32 v15, 7, v14')
    A('v_lshlrev_b32 v15, 5, v15')
    A('v_lshl_add_u32 v15, v5, 3, v15')
    A(f'v_lshl_add_u32 v{VA0}, v14, 9, v15')
    A(f'v_mov_b32 v{LNDA}, {FL}')
    for v in range(8):
        qq, u = v >> 1, v & 1
        m16 = (1 << (4*qq+u)) | (1 << (4*qq+u+2))
        m32 = m16 | (m16 << 16)
        A(f's_mov_b32 s{64+2*v}, {m32:#x}')
        A(f's_mov_b32 s{65+2*v}, {m32:#x}')
    A(f's_mov_b32 s{sC}, {f32(0.0625*LOG2E)}')
    A(f's_mov_b32 s{sBUD}, {1<<22}')
    A(f's_mov_b32 s{sLND}, 0')
    A(f's_mov_b32 s{sSLOT}, 0')
    A('s_mov_b32 s7, 1664525')
    A('s_lshr_b32 s5, s2, 5')
    A('s_lshl_b32 s5, s5, 13')
    A('s_lshl_b32 s4, s4, 11')
    A('s_add_u32 s5, s5, s4')
    A('s_bfe_u32 s4, s2, 0x30002')
    A('s_lshl_b32 s4, s4, 8')
    A('s_add_u32 s5, s5, s4')
    A(f's_add_u32 s5, s5, {QP:#x}')
    A('s_lshr_b32 s6, s2, 4')
    A('s_lshl_b32 s6, s6, 13')
    A(f's_add_u32 s6, s6, {QP:#x}')
    A('s_add_u32 s4, s6, 0x1000')
    A('s_lshl_b32 s21, s2, 9')
    A(f's_add_u32 s21, s21, {HP:#x}')
    A('s_lshl_b32 s22, s22, 12')
    A('s_lshl_b32 s20, s20, 6')
    A('s_add_u32 s22, s22, s20')
    A(f's_add_u32 s22, s22, {HP:#x}')
    for c in range(1, 4):
        m16 = (3 << (2*c)) | (3 << (2*c+8))
        A(f's_mov_b32 s{34+2*c}, {m16 | (m16 << 16):#x}')
        A(f's_mov_b32 s{35+2*c}, {m16 | (m16 << 16):#x}')
    for k in range(4):
        A(f's_mov_b32 s{42+k}, {0x07060500 + k:#x}')
    A('s_mov_b32 s46, 0x0c0c0400')
    A('s_mov_b32 s47, 0x04000c0c')

    def publish(D, dst, voff, soff):
        for c in range(1, 4):
            for r in range(4):
                A(f'v_cndmask_b32 v{D+r}, v{D+r}, v{D+4*c+r}, s[{34+2*c}:{35+2*c}]')
        for r in range(4):
            A(f'v_add_u32 v{D+r}, 0x80, v{D+r}')
        A('s_mov_b32 exec_lo, 0x00ff00ff')
        A('s_mov_b32 exec_hi, 0x00ff00ff')
        for r in range(4):
            A(f'v_perm_b32 v{dst+r}, v{D+r}, v{TAG}, s{42+r}')
        A(f'buffer_store_dwordx4 {q(dst)}, v{voff}, {WS}, s{soff} offen {o.stflags}')
        A('s_mov_b64 exec, -1')

    def rbf(r):
        A(f'v_cvt_pk_bf16_f32 v{r}, v{r}, v{r}')
        A(f'v_and_b32 v{r}, 0xffff0000, v{r}')

    XF, AF, QD = 64, 128, 80
    A(f's_waitcnt vmcnt({14+NW1})')
    A(f'v_mul_lo_u32 v{TAG}, v{TAG}, s7')
    for t in range(3):
        A(f'ds_read_b128 {q(XF+4*t)}, v57 offset:{t*64}')
    A(f'ds_read_b64 {q(XF+12,2)}, v55 offset:192')
    A(f'v_add_u32 v{TAG}, 1013904223, v{TAG}')
    def qm(t):
        for c in range(4):
            if t < 3:
                A(f'v_mfma_f32_16x16x32_bf16 {q(QD+4*c)}, {q(AF+16*t+4*c)}, {q(XF+4*t)}, {"0" if t==0 else q(QD+4*c)}')
            else:
                A(f'v_mfma_f32_16x16x16_bf16 {q(QD+4*c)}, {q(AF+48+2*c,2)}, {q(XF+12,2)}, {q(QD+4*c)}')
    for t in range(4):
        A(f's_waitcnt vmcnt({max(0, 10-4*t)+NW1})')
        for c in range(4):
            if t < 3:
                A(f'ds_read_b64_tr_b16 {q(AF+16*t+4*c,2)}, v61 offset:{t*4096+c*32}')
                A(f'ds_read_b64_tr_b16 {q(AF+16*t+4*c+2,2)}, v61 offset:{t*4096+c*32+512}')
            else:
                A(f'ds_read_b64_tr_b16 {q(AF+48+2*c,2)}, v63 offset:{c*32}')
        if t >= 1:
            A(f's_waitcnt lgkmcnt({8 if t < 3 else 4})')
            qm(t-1)
    A('s_waitcnt lgkmcnt(0)')
    qm(3)
    A('s_nop 5')
    publish(QD, T, 62, 5)
    g.stamp(1)
    for i in range(8):
        A(f'v_mov_b32 v{O+i}, 0')
    for i in range(32):
        A(f'v_mov_b32 v{PV+i}, 0')
    A(f'v_mov_b32 v{M}, 0xff7fffff')
    A(f'v_mov_b32 v{LS}, 0')
    A('v_lshlrev_b32 v57, 3, v1')
    A(f'v_add_u32 v57, {QS}, v57')
    A('v_bfe_u32 v58, v2, 1, 1')
    SCA = 245
    A(f'v_lshlrev_b32 v{SCA}, 6, v58')
    A(f'v_lshl_add_u32 v{SCA}, v3, 4, v{SCA}')
    A(f'v_add_u32 v{SCA}, {STG}, v{SCA}')
    A('v_lshlrev_b32 v58, 9, v58')
    A('v_lshl_add_u32 v58, v3, 4, v58')
    A(f'v_add_u32 v58, {QS}, v58')

    def poll_landed():
        d = g.new('pd')
        sp = g.new('ps')
        A(f's_cmp_ge_u32 s{sLND}, s{sNEED}')
        A(f's_cbranch_scc1 {d}')
        g.lab(sp)
        A(f'ds_read_b32 v14, v{LNDA}')
        A('s_waitcnt lgkmcnt(0)')
        A(f'v_readfirstlane_b32 s{sLND}, v14')
        A(f's_cmp_ge_u32 s{sLND}, s{sNEED}')
        A(f's_cbranch_scc1 {d}')
        if o.lsleep:
            A(f's_sleep {o.lsleep}')
        A(f's_sub_u32 s{sBUD}, s{sBUD}, 1')
        A(f's_cbranch_scc0 {sp}')
        A(f's_mov_b32 s{sBUD}, 0')
        g.lab(d)

    hload = f'buffer_load_dwordx4 {q(HV)}, v{HV+4}, {WS}, s22 offen {o.ldflags}'
    def qloads():
        for i in range(8):
            A(f'buffer_load_dwordx4 {q(KV+4*i)}, v56, {WS}, s{6 if i < 4 else 4} offen offset:{(i&3)*1024} {o.ldflags}')
    A('s_waitcnt vmcnt(1)')
    A(f's_mov_b32 s{sNEED}, {o.qwait}')
    poll_landed()
    qloads()
    HD = 104
    for t in range(2):
        A(f'ds_read_b128 {q(96+4*t)}, v54 offset:{t*64}')
    for t in range(2):
        for c in range(4):
            A(f'ds_read_b64_tr_b16 {q(AF+16*t+4*c,2)}, v61 offset:{W1S-STG+t*4096+c*32}')
            A(f'ds_read_b64_tr_b16 {q(AF+16*t+4*c+2,2)}, v61 offset:{W1S-STG+t*4096+c*32+512}')
    A(f'v_add_u32 v52, {GS}, v56')
    A(f'ds_read_b128 {q(TL)}, v52')
    A(f'v_add_u32 v52, {XS}, v56')
    A(f'ds_read_b128 {q(TL+4)}, v52')
    A(f'ds_read_b128 {q(TL+8)}, v52 offset:896')
    A('s_waitcnt lgkmcnt(3)')
    for t in range(2):
        for c in range(4):
            A(f'v_mfma_f32_16x16x32_bf16 {q(HD+4*c)}, {q(AF+16*t+4*c)}, {q(96+4*t)}, {"0" if t==0 else q(HD+4*c)}')
    A('s_nop 5')
    publish(HD, 120, 53, 21)
    A('s_waitcnt lgkmcnt(0)')
    for b in range(2):
        acc = TL + 12 + b
        for d in range(4):
            A(f'v_lshlrev_b32 v{TL+16}, 16, v{TL+d}')
            A(f'v_and_b32 v{TL+17}, 0xffff0000, v{TL+d}')
            A(f'v_lshlrev_b32 v{TL+18}, 16, v{TL+4+4*b+d}')
            A(f'v_and_b32 v{TL+19}, 0xffff0000, v{TL+4+4*b+d}')
            A(f'v_mul_f32 v{TL+16}, v{TL+16}, v{TL+18}')
            A(f'v_mul_f32 v{TL+17}, v{TL+17}, v{TL+19}')
            A(f'v_cvt_pk_bf16_f32 v{TL+18}, v{TL+16}, v{TL+17}')
            A(f'v_lshlrev_b32 v{TL+16}, 16, v{TL+18}')
            A(f'v_and_b32 v{TL+17}, 0xffff0000, v{TL+18}')
            if d == 0:
                A(f'v_add_f32 v{acc}, v{TL+16}, v{TL+17}')
            else:
                A(f'v_add_f32 v{acc}, v{acc}, v{TL+16}')
                A(f'v_add_f32 v{acc}, v{acc}, v{TL+17}')
    Z = TL + 12
    A('s_nop 1')
    A(f'v_permlane32_swap_b32 v{Z}, v{Z+1}')
    A(f'v_add_f32 v{Z}, v{Z}, v{Z+1}')
    A(f'v_mov_b32 v{Z+1}, v{Z}')
    A('s_nop 1')
    A(f'v_permlane16_swap_b32 v{Z}, v{Z+1}')
    A(f'v_add_f32 v{Z}, v{Z}, v{Z+1}')
    for rr in (8, 4, 2, 1):
        A('s_nop 1')
        A(f'v_add_f32_dpp v{Z}, v{Z}, v{Z} row_ror:{rr} {DPPM}')
    rbf(Z)
    A(f'v_mul_f32 v{Z}, {f32(-LOG2E)}, v{Z}')
    A(f'v_exp_f32 v{Z}, v{Z}')
    A('s_nop 0')
    A(f'v_add_f32 v{Z}, 1.0, v{Z}')
    A(f'v_rcp_f32 v{G0}, v{Z}')
    A('s_nop 0')
    rbf(G0)
    A(f'v_sub_f32 v{OMG}, 1.0, v{G0}')
    rbf(OMG)
    A(f'v_mov_b32 v{G0+1}, v{G0}')
    A(f'v_mov_b32 v{OMG+1}, v{OMG}')
    A('s_nop 1')
    A(f'v_permlane32_swap_b32 v{G0}, v{G0+1}')
    A(f'v_permlane32_swap_b32 v{OMG}, v{OMG+1}')
    g.lab('.Lqchk')
    for i in range(8):
        A(f's_waitcnt vmcnt({8-i})')
        A(f'v_perm_b32 v14, v{KV+4*i+1}, v{KV+4*i}, s46')
        A(f'v_perm_b32 v15, v{KV+4*i+3}, v{KV+4*i+2}, s47')
        for r in range(4):
            A(f'v_and_b32 v{KV+4*i+r}, 0xffffff00, v{KV+4*i+r}')
        A(f'v_xor_b32 v14, v14, v{TAG}')
        if i == 0:
            A('v_xor_b32 v36, v14, v15')
        else:
            A('v_xor_b32 v14, v14, v15')
            A('v_or_b32 v36, v36, v14')
        if i >= 2:
            h = i & 1
            A(f'v_pk_add_f32 {q(KV+4*h,2)}, {q(KV+4*h,2)}, {q(KV+4*i,2)}')
            A(f'v_pk_add_f32 {q(KV+4*h+2,2)}, {q(KV+4*h+2,2)}, {q(KV+4*i+2,2)}')
    A('v_cmp_ne_u32 vcc, 0, v36')
    A('s_cbranch_vccz .Lqok')
    A(f's_sleep {o.qsleep}')
    qloads()
    A(hload)
    A(f's_sub_u32 s{sBUD}, s{sBUD}, 64')
    A('s_cbranch_scc0 .Lqchk')
    A(f's_mov_b32 s{sBUD}, 0')
    A('s_waitcnt vmcnt(0)')
    g.lab('.Lqok')
    for h in range(2):
        A(f'v_cvt_pk_bf16_f32 v{T+2*h}, v{KV+4*h}, v{KV+4*h+1}')
        A(f'v_cvt_pk_bf16_f32 v{T+2*h+1}, v{KV+4*h+2}, v{KV+4*h+3}')
    A(f'ds_write_b64 v57, {q(T,2)}')
    A(f'ds_write_b64 v57, {q(T+2,2)} offset:512')
    A(hload)
    A('s_waitcnt lgkmcnt(0)')
    for j in range(8):
        A(f'ds_read_b128 {q(QF+4*j)}, v58 offset:{j*64}')
    g.stamp(2)

    A(f's_mov_b32 s{sNEED}, 1')
    g.L.append('.p2align 6')
    g.lab('.Lktile')
    A(f'v_add_u32 v{KAC}, s{sSLOT}, v{KA0}')
    for i in range(1, 4):
        A(f'v_xor_b32 v{KAC+i}, {i*64}, v{KAC}')
    poll_landed()
    for i in range(16):
        j, hh = i >> 1, i & 1
        A(f'ds_read_b128 {q(KV+4*i)}, v{KAC+(j&3)} offset:{hh*8192+(j>>2)*256}')
    A(f'v_mov_b32 v14, s{sNEED}')
    for i in range(16):
        j, hh = i >> 1, i & 1
        A(f's_waitcnt lgkmcnt({15-i})')
        if i == 15:
            A(f'ds_write_b32 v{CONA}, v14')
        A(f'v_mfma_f32_16x16x32_bf16 {q(S+4*hh)}, {q(KV+4*i)}, {q(QF+4*j)}, {"0" if j==0 else q(S+4*hh)}')
    A(f's_add_u32 s{sNEED}, s{sNEED}, 1')
    A(f's_add_u32 s{sSLOT}, s{sSLOT}, {SLOT:#x}')
    A(f's_and_b32 s{sSLOT}, s{sSLOT}, 0x1ffff')
    A('s_nop 4')
    for i in range(4):
        A(f'v_cvt_pk_bf16_f32 v{T+i}, v{S+2*i}, v{S+2*i+1}')
    A('s_mov_b64 exec, s[64:65]')
    A(f'ds_write_b128 v{SCA}, {q(T)}')
    A('s_mov_b64 exec, -1')
    A(f'v_max3_f32 v14, v{S}, v{S+1}, v{S+2}')
    A(f'v_max3_f32 v15, v{S+3}, v{S+4}, v{S+5}')
    A(f'v_max3_f32 v14, v14, v{S+6}, v{S+7}')
    A(f'v_max3_f32 v{M}, v14, v15, v{M}')
    A(f'v_add_u32 v{SCA}, 128, v{SCA}')
    A(f's_cmp_le_u32 s{sNEED}, 64')
    A('s_cbranch_scc1 .Lktile')
    A(f'v_mov_b32 v15, v{M}')
    A(f'v_subrev_u32 v{SCA}, {64*128}, v{SCA}')
    A('s_nop 0')
    A(f'v_permlane16_swap_b32 v{M}, v15')
    A(f'v_max_f32 v{M}, v{M}, v15')
    A(f'v_mov_b32 v15, v{M}')
    A('s_nop 1')
    A(f'v_permlane32_swap_b32 v{M}, v15')
    A(f'v_max_f32 v{M}, v{M}, v15')
    rbf(M)
    A(f'v_mul_f32 v{NM}, s{sC}, v{M}')

    H = TL
    g.lab('.Lhchk')
    A('s_waitcnt vmcnt(0)')
    A(f'v_perm_b32 v14, v{HV+1}, v{HV}, s46')
    A(f'v_perm_b32 v15, v{HV+3}, v{HV+2}, s47')
    A('v_xor_b32 v14, v14, v15')
    A(f'v_cmp_ne_u32 vcc, v14, v{TAG}')
    A('s_cbranch_vccz .Lhok')
    A(hload)
    A(f's_sub_u32 s{sBUD}, s{sBUD}, 64')
    A('s_cbranch_scc0 .Lhchk')
    A(f's_mov_b32 s{sBUD}, 0')
    A('s_waitcnt vmcnt(0)')
    g.lab('.Lhok')
    for r in range(4):
        A(f'v_and_b32 v{H+r}, 0xffffff00, v{HV+r}')
    for rr in (4, 8):
        for r in range(4):
            A(f'v_add_f32_dpp v{H+r}, v{H+r}, v{H+r} row_ror:{rr} {DPPM}')
    for r in range(4):
        A(f'v_mov_b32 v{H+4+r}, v{H+r}')
    A('s_nop 0')
    for r in range(4):
        A(f'v_permlane16_swap_b32 v{H+r}, v{H+4+r}')
    for r in range(4):
        A(f'v_add_f32 v{H+r}, v{H+r}, v{H+4+r}')
    for r in range(4):
        rbf(H + r)
    for r in range(4):
        A(f'v_mul_f32 v{H+4+r}, {f32(-LOG2E)}, v{H+r}')
    for r in range(4):
        A(f'v_exp_f32 v{H+4+r}, v{H+4+r}')
    A('s_nop 0')
    for r in range(4):
        A(f'v_add_f32 v{H+4+r}, 1.0, v{H+4+r}')
    for r in range(4):
        A(f'v_rcp_f32 v{H+4+r}, v{H+4+r}')
    A('s_nop 0')
    for r in range(4):
        A(f'v_mul_f32 v{H+r}, v{H+r}, v{H+4+r}')
    A(f'v_cvt_pk_bf16_f32 v{H+4}, v{H}, v{H+1}')
    A(f'v_cvt_pk_bf16_f32 v{H+5}, v{H+2}, v{H+3}')
    A('v_and_b32 v14, 1, v2')
    A('v_and_b32 v15, 1, v3')
    A('v_lshlrev_b32 v14, 3, v14')
    A('v_lshl_add_u32 v57, v15, 2, v14')
    A(f'ds_bpermute_b32 v{H+6}, v57, v{H+4}')
    A(f'ds_bpermute_b32 v{H+8}, v57, v{H+5}')
    A('s_mov_b32 s48, 0x00030003')
    A('s_mov_b32 s49, 0x00300030')
    A('s_mov_b32 s50, 0x03000300')
    A('s_mov_b32 s51, 0x30003000')
    A('v_lshl_add_u32 v14, v15, 2, v4')
    A('v_mul_u32_u24 v60, 896, v14')
    A('v_lshrrev_b32 v14, 1, v3')
    A('v_lshl_add_u32 v60, v14, 5, v60')
    A('v_lshl_add_u32 v60, v5, 3, v60')
    A('v_mul_u32_u24 v63, 3584, v15')
    A('v_add_u32 v63, v63, v60')
    A(f'v_add_u32 v63, {WOS}, v63')
    A(f'v_add_u32 v60, {W2S}, v60')
    A('s_waitcnt lgkmcnt(0)')
    A(f'v_cndmask_b32 v{HA}, 0, v{H+6}, s[48:49]')
    A(f'v_cndmask_b32 v{HA+1}, 0, v{H+8}, s[48:49]')
    A(f'v_cndmask_b32 v{HA+2}, 0, v{H+6}, s[50:51]')
    A(f'v_cndmask_b32 v{HA+3}, 0, v{H+8}, s[50:51]')
    RG = TL
    HG = TL + 16
    for i in range(4):
        A(f'v_mov_b32 v{RG+4*i+3}, v{TAG}')
        A(f'v_not_b32 v{HG+4*i+3}, v{TAG}')
    A('v_lshrrev_b32 v57, 2, v1')
    A(f'v_mul_u32_u24 v61, {YROW}, v57')
    A('v_lshlrev_b32 v57, 7, v57')
    A('v_lshl_add_u32 v57, v5, 4, v57')
    A('v_lshl_add_u32 v61, v5, 4, v61')
    A('v_lshrrev_b32 v58, 5, v1')
    A('v_mul_u32_u24 v62, 896, v58')
    A('v_lshl_add_u32 v62, v5, 1, v62')
    A('v_lshl_add_u32 v58, v58, 2, v4')
    A('v_lshlrev_b32 v58, 12, v58')
    A('v_lshl_add_u32 v58, v15, 6, v58')
    A('v_lshl_add_u32 v58, v5, 4, v58')
    A('s_lshr_b32 s4, s2, 5')
    A('s_lshl_b32 s4, s4, 16')
    A('s_and_b32 s5, s2, 31')
    A('s_lshl_b32 s5, s5, 7')
    A('s_add_u32 s4, s4, s5')
    A(f's_add_u32 s4, s4, {REC:#x}')
    A('s_add_u32 s5, s4, 0x8000')
    A('s_add_u32 s6, s4, 0x80000')
    A('s_add_u32 s7, s4, 0x88000')
    A('s_lshl_b32 s44, s2, 12')
    A(f's_add_u32 s44, s44, {REC:#x}')
    A(f's_mul_i32 s45, s2, {YROW}')
    A(f's_add_u32 s45, s45, {YB:#x}')
    A('s_add_u32 s46, s45, 0x1000')
    A('s_lshl_b32 s47, s2, 3')

    g.L.append('.p2align 6')
    g.lab('.Lvtile')
    A(f'ds_read_b128 {q(T)}, v{SCA}')
    A(f'v_add_u32 v{SCA}, 128, v{SCA}')
    A(f'v_add_u32 v{VAC}, s{sSLOT}, v{VA0}')
    for i in range(1, 8):
        A(f'v_xor_b32 v{VAC+i}, {i*32}, v{VAC}')
    A('s_waitcnt lgkmcnt(0)')
    for i in range(4):
        A(f'v_lshlrev_b32 v{S+2*i}, 16, v{T+i}')
        A(f'v_and_b32 v{S+2*i+1}, 0xffff0000, v{T+i}')
    for i in range(8):
        A(f'v_fma_f32 v{P8+i}, v{S+i}, s{sC}, -v{NM}')
    for i in range(8):
        A(f'v_exp_f32 v{P8+i}, v{P8+i}')
    A('s_nop 0')
    for i in range(4):
        A(f'v_cvt_pk_bf16_f32 v{T+i}, v{P8+2*i}, v{P8+2*i+1}')
    A(f'v_add_f32 v{LS}, v{LS}, v{P8}')
    A(f'v_add_f32 v{P8+1}, v{P8+1}, v{P8+2}')
    A(f'v_add_f32 v{P8+3}, v{P8+3}, v{P8+4}')
    A(f'v_add_f32 v{P8+5}, v{P8+5}, v{P8+6}')
    A(f'v_add_f32 v{LS}, v{LS}, v{P8+7}')
    A(f'v_add_f32 v{P8+1}, v{P8+1}, v{P8+3}')
    A(f'v_add_f32 v{LS}, v{LS}, v{P8+5}')
    A(f'v_add_f32 v{LS}, v{LS}, v{P8+1}')
    for v in range(8):
        A(f's_mov_b64 exec, s[{64+2*v}:{65+2*v}]')
        A(f'v_mov_b64 {q(PV+4*v,2)}, {q(T,2)}')
        A(f'v_mov_b64 {q(PV+4*v+2,2)}, {q(T+2,2)}')
    A('s_mov_b64 exec, -1')
    poll_landed()
    order = [(i & 1) * 8 + (i >> 1) for i in range(16)]
    def vread(i):
        m = order[i]
        for kh in range(2):
            A(f'ds_read_b64_tr_b16 {q(KV+4*i+2*kh,2)}, v{VAC+(m&7)} offset:{kh*8192+(m>>3)*256}')
    PRE = 7
    for i in range(PRE):
        vread(i)
    A(f'v_mov_b32 v14, s{sNEED}')
    for i in range(16):
        issued = min(16, i + PRE)
        A(f's_waitcnt lgkmcnt({2*(issued-i-1)})')
        m = order[i]
        a = m >> 3
        if i == 15:
            A(f'ds_write_b32 v{CONA}, v14')
        A(f'v_mfma_f32_16x16x32_bf16 {q(O+4*a)}, {q(PV+4*(m&7))}, {q(KV+4*i)}, {q(O+4*a)}')
        if i + PRE < 16:
            vread(i + PRE)
    A(f's_add_u32 s{sNEED}, s{sNEED}, 1')
    A(f's_add_u32 s{sSLOT}, s{sSLOT}, {SLOT:#x}')
    A(f's_and_b32 s{sSLOT}, s{sSLOT}, 0x1ffff')
    A(f's_cmp_le_u32 s{sNEED}, 128')
    A('s_cbranch_scc1 .Lvtile')

    g.stamp(3)
    A(f'v_mov_b32 v15, v{LS}')
    for h in range(2):
        A(f'v_mov_b32_dpp v{RG+8*h+2}, v{NM} quad_perm:[{2*h},{2*h},{2*h},{2*h}] {DPPM}')
    A(f'v_permlane16_swap_b32 v{LS}, v15')
    A(f'v_add_f32 v{LS}, v{LS}, v15')
    A(f'v_mov_b32 v15, v{LS}')
    for h in range(2):
        A(f'v_mov_b64 {q(RG+8*h,2)}, {q(O+2*h,2)}')
    A(f'v_permlane32_swap_b32 v{LS}, v15')
    A(f'v_add_f32 v{LS}, v{LS}, v15')
    for h in range(2):
        A(f'buffer_store_dwordx4 {q(RG+8*h)}, v57, {WS}, s44 offen offset:{h*2048} {o.stflags}')
    for h in range(2):
        r = RG + 8*h + 4
        A(f'v_mov_b32_dpp v{r+2}, v{LS} quad_perm:[{2*h},{2*h},{2*h},{2*h}] {DPPM}')
        A(f'v_mov_b64 {q(r,2)}, {q(O+4+2*h,2)}')
        A(f'buffer_store_dwordx4 {q(r)}, v57, {WS}, s44 offen offset:{h*2048+64} {o.stflags}')
    WF = KV
    YD = QF
    YG = PV
    def between():
        g.lab('.Lwwait')
        A(f'ds_read_b32 v14, v{LNDA}')
        A('s_waitcnt lgkmcnt(0)')
        A(f'v_readfirstlane_b32 s{sRAW}, v14')
        A(f's_cmp_ge_u32 s{sRAW}, {WDONE:#x}')
        A('s_cbranch_scc1 .Lwok')
        A('s_sleep 1')
        A(f's_sub_u32 s{sBUD}, s{sBUD}, 1')
        A('s_cbranch_scc0 .Lwwait')
        A(f's_mov_b32 s{sBUD}, 0')
        g.lab('.Lwok')
        W2F = PV
        for i in range(14):
            A(f'ds_read_b64_tr_b16 {q(W2F+2*i,2)}, v60 offset:{i*64}')
        A('s_waitcnt lgkmcnt(0)')
        for i in range(7):
            A(f'v_mfma_f32_16x16x16_bf16 {q(YD+4*i)}, {q(HA,2)}, {q(W2F+4*i,2)}, 0')
        for i in range(7):
            A(f'v_mfma_f32_16x16x16_bf16 {q(YD+4*i)}, {q(HA+2,2)}, {q(W2F+4*i+2,2)}, {q(YD+4*i)}')
        for i in range(14):
            A(f'ds_read_b64_tr_b16 {q(WF+4*i,2)}, v63 offset:{i*64}')
            A(f'ds_read_b64_tr_b16 {q(WF+4*i+2,2)}, v63 offset:{i*64+3584}')
        for i in range(7):
            A(f'v_mul_f32 v{FP+2*i}, v{OMG}, v{YD+4*i}')
            A(f'v_mul_f32 v{FP+2*i+1}, v{OMG+1}, v{YD+4*i+1}')
        for i in range(7):
            A(f'v_mov_b32 v{YG+4*i+3}, v{TAG}')
        A('s_lshl_b32 s64, s2, 6')
        A(f's_add_u32 s64, s64, {YB:#x}')
        for i in range(1, 16):
            A(f's_add_u32 s{64+i}, s64, {i*16*YROW:#x}')
    g.apoll('h1', [f'buffer_load_dwordx4 {q(HG+4*i)}, v58, {WS}, s{4+i} offen {o.ldflags}' for i in range(4)],
            [HG+4*i+3 for i in range(4)], [36, 38, 40, 42], TAG, sBUD, o.h1sleep,
            slow=(o.h1thr, o.h1slow) if o.h1slow else None, between=between)
    g.stamp(4)
    for i in range(4):
        A(f'v_mov_b32 v{16+i}, v{HG+4*i+2}')
        A(f'v_mov_b32 v{20+i}, v{HG+4*i+2}')
    for i in range(4):
        if i == 3:
            A('v_max_f32 v36, v16, v17')
        A(f'v_permlane16_swap_b32 v{16+i}, v{20+i}')
    A('v_max_f32 v37, v18, v19')
    A('s_nop 0')
    A(f'v_max_f32_dpp v36, v36, v36 row_ror:4 {DPPM}')
    A(f'v_max_f32_dpp v37, v37, v37 row_ror:4 {DPPM}')
    A('s_nop 0')
    A(f'v_max_f32_dpp v36, v36, v36 row_ror:8 {DPPM}')
    A(f'v_max_f32_dpp v37, v37, v37 row_ror:8 {DPPM}')
    A('v_mov_b32 v38, v36')
    A('v_mov_b32 v39, v37')
    A('s_nop 0')
    A('v_permlane32_swap_b32 v36, v38')
    A('v_permlane32_swap_b32 v37, v39')
    A('v_max_f32 v36, v36, v38')
    A('v_max_f32 v37, v37, v39')
    for i in range(4):
        A(f'v_sub_f32 v{40+i}, v{16+i}, v{36+(i>>1)}')
    for i in range(4):
        A(f'v_exp_f32 v{40+i}, v{40+i}')
    A('s_mov_b32 vcc_lo, 0xaaaaaaaa')
    for b in range(2):
        srcs0 = (HG+8*b, HG+8*b+1, 20+2*b)
        srcs1 = (HG+8*b+4, HG+8*b+5, 21+2*b)
        for k in range(3):
            A(f'v_mul_f32 v{44+3*b+k}, v{40+2*b}, v{srcs0[k]}')
        for k in range(3):
            A(f'v_fmac_f32 v{44+3*b+k}, v{41+2*b}, v{srcs1[k]}')
    A('s_mov_b32 vcc_hi, 0xaaaaaaaa')
    for k in range(3):
        A(f'v_permlane32_swap_b32 v{44+k}, v{47+k}')
    for k in range(3):
        A(f'v_add_f32 v{44+k}, v{44+k}, v{47+k}')
    for rr in (4, 8):
        for k in (2, 0, 1) if rr == 8 else (0, 1, 2):
            if rr == 8 and k == 2:
                A('s_nop 1')
            A(f'v_add_f32_dpp v{44+k}, v{44+k}, v{44+k} row_ror:{rr} {DPPM}')
            if rr == 8 and k == 2:
                A('v_rcp_f32 v46, v46')
    A('v_mul_f32 v44, v44, v46')
    A('v_mul_f32 v45, v45, v46')
    A('v_cvt_pk_bf16_f32 v44, v44, v45')
    A('v_mov_b32 v45, v44')
    A('s_nop 1')
    A('v_permlane32_swap_b32 v44, v45')
    A('s_nop 1')
    for nn in range(4):
        A(f'v_mov_b32_dpp v{36+nn}, v45 quad_perm:[{nn},{nn},{nn},{nn}] {DPPM}')
    for nn in range(4):
        A(f'v_cndmask_b32_dpp v{36+nn}, v44, v{36+nn}, vcc quad_perm:[{nn},{nn},{nn},{nn}] {DPPM}')
    for nn in range(4):
        A(f'v_cndmask_b32 v{48+nn}, 0, v{36+nn}, s[48:49]')
    for nn in range(4):
        A(f'v_cndmask_b32 v{52+nn}, 0, v{36+nn}, s[50:51]')
    A('s_waitcnt lgkmcnt(0)')
    seq = []
    for i in range(7):
        seq.append((i, 0))
        if i >= 1:
            seq.append((i-1, 1))
    seq.append((6, 1))
    for n, (i, e) in enumerate(seq):
        A(f'v_mfma_f32_16x16x32_bf16 {q(YD+4*i)}, {q(48+4*e)}, {q(WF+8*i+4*e)}, {"0" if e==0 else q(YD+4*i)}')
    for i in range(7):
        A(f'v_fma_f32 v{YG+4*i}, v{G0}, v{YD+4*i}, v{FP+2*i}')
        A(f'v_fma_f32 v{YG+4*i+1}, v{G0+1}, v{YD+4*i+1}, v{FP+2*i+1}')
        A(f'buffer_store_dwordx4 {q(YG+4*i)}, v56, {WS}, s{45+(i>>2)} offen offset:{(i&3)*1024} {o.stflags}')
    g.stamp(5)
    A('s_cmp_ge_u32 s2, 112')
    A('s_cbranch_scc1 .Lfin')
    for i in range(16):
        A(f'v_not_b32 v{KV+4*i+3}, v{TAG}')
    if o.h2sleep0:
        A(f's_sleep {o.h2sleep0}')
    mk = [8, 10, 12, 14, 20, 22, 24, 26, 28, 30, 32, 34, 36, 38, 40, 42]
    g.apoll('h2', [f'buffer_load_dwordx4 {q(KV+4*i)}, v61, {WS}, s{64+i} offen {o.ldflags}' for i in range(16)],
            [KV+4*i+3 for i in range(16)], mk, TAG, sBUD, o.h2sleep)
    for k in range(4):
        A(f'v_pk_add_f32 v[{36+2*k}:{37+2*k}], {q(KV+8*k,2)}, {q(KV+8*k+4,2)}')
    for k in range(4):
        A(f'v_pk_add_f32 v[{44+2*k}:{45+2*k}], {q(KV+32+8*k,2)}, {q(KV+32+8*k+4,2)}')
    for k in range(4):
        A(f'v_pk_add_f32 v[{36+2*k}:{37+2*k}], v[{36+2*k}:{37+2*k}], v[{44+2*k}:{45+2*k}]')
    A('v_pk_add_f32 v[36:37], v[36:37], v[38:39]')
    A('v_pk_add_f32 v[40:41], v[40:41], v[42:43]')
    A('v_pk_add_f32 v[36:37], v[36:37], v[40:41]')
    A('s_nop 1')
    A('v_permlane32_swap_b32 v36, v37')
    A('v_add_f32 v36, v36, v37')
    A('v_mov_b32 v37, v36')
    A('s_nop 1')
    A('v_permlane16_swap_b32 v36, v37')
    A('v_add_f32 v36, v36, v37')
    for rr in (4, 8):
        A('s_nop 1')
        A(f'v_add_f32_dpp v36, v36, v36 row_ror:{rr} {DPPM}')
    A('v_cvt_pk_bf16_f32 v36, v36, v36')
    A('s_mov_b32 exec_lo, 0xf')
    A('s_mov_b32 exec_hi, 0xf')
    A(f'buffer_store_short v36, v62, s[{sOUT}:{sOUT+3}], s47 offen')
    A('s_cmp_lg_u32 s2, 0')
    A('s_cbranch_scc1 .Lfin')
    A('s_mov_b64 exec, 1')
    A(f'buffer_store_dword v{TAG}, v59, {WS}, 0 offen')
    g.lab('.Lfin')
    if o.diag:
        g.stamp(6)
        A('s_mov_b64 exec, 1')
        A('s_lshl_b32 s4, s2, 7')
        A(f's_add_u32 s4, s4, {STAMP:#x}')
        for k in range(7):
            A(f'v_mov_b32 v14, s{86+2*k}')
            A(f'v_mov_b32 v15, s{87+2*k}')
            A(f'buffer_store_dwordx2 v[14:15], v59, {WS}, s4 offen offset:{8*k}')
            A('s_nop 1')
        A('v_mov_b32 v14, s101')
        A('v_mov_b32 v15, s87')
        A(f'buffer_store_dwordx2 v[14:15], v59, {WS}, s4 offen offset:56')
    g.lab('.Lexit')
    A('s_endpgm')

    ref = open('cdna_kernels/' + NAME + '.s.ref').read().split('\n')
    head = [l for l in ref if l.startswith(';') and '@launch' not in l and 'Override launch' not in l and 'grid=ceil' not in l]
    txt = '\n'.join(head) + '\n'
    txt += f'; @launch grid=(256,1,1) block=(128,1,1) lds={LDS_BYTES}\n'
    txt += '.amdgcn_target "amdgcn-amd-amdhsa--gfx950"\n.text\n'
    txt += '\n'.join(g.L) + '\n'
    txt += f'''.section .rodata,"a"
.p2align 6
.amdhsa_kernel {K}
  .amdhsa_next_free_vgpr 256
  .amdhsa_next_free_sgpr 102
  .amdhsa_accum_offset 256
  .amdhsa_group_segment_fixed_size 0
  .amdhsa_kernarg_size 96
  .amdhsa_user_sgpr_count 2
  .amdhsa_user_sgpr_kernarg_segment_ptr 1
  .amdhsa_system_sgpr_workgroup_id_x 1
.end_amdhsa_kernel
'''
    return txt


def parser():
    p = argparse.ArgumentParser()
    il = lambda x: [int(v) for v in x.split(',') if v]
    p.add_argument('-o', default='cdna_kernels/' + NAME + '.s')
    p.add_argument('--window', type=int, default=20)
    p.add_argument('--gs', type=int, default=2)
    p.add_argument('--unit', type=int, default=8)
    p.add_argument('--idxsh', type=int, default=3)
    p.add_argument('--perm', type=il, default=[0, 2, 1, 3])
    p.add_argument('--qwait', type=int, default=2)
    p.add_argument('--cfirst', type=int, default=15)
    p.add_argument('--wk', type=il, default=[24,24,28,28,32,32,32,32])
    p.add_argument('--w1', type=il, default=[28,28,28,28,28,28,28,24])
    p.add_argument('--icpf', type=int, default=16)
    p.add_argument('--rx', type=int, default=0)
    p.add_argument('--nobr', action='store_true')
    p.add_argument('--pairskip', type=int, default=1)
    p.add_argument('--diag', action='store_true')
    p.add_argument('--prog', action='store_true')
    p.add_argument('--kflags', default='nt')
    p.add_argument('--vflags', default='nt')
    p.add_argument('--wqflags', default='nt')
    p.add_argument('--stflags', default='sc1')
    p.add_argument('--ldflags', default='sc1')
    p.add_argument('--lsleep', type=int, default=1)
    p.add_argument('--qsleep', type=int, default=6)
    p.add_argument('--h1sleep', type=int, default=0)
    p.add_argument('--h1thr', type=int, default=16)
    p.add_argument('--h1slow', type=int, default=16)
    p.add_argument('--h2sleep0', type=int, default=8)
    p.add_argument('--h2sleep', type=int, default=0)
    return p


if __name__ == '__main__':
    o = parser().parse_args()
    open(o.o, 'w').write(gen(o))
```

```python
import sys,re
NAME='gated_mix__gqa_block_cached__dense_activation_silu__decode'
src,dst,off,mode=sys.argv[1],sys.argv[2],int(sys.argv[3]),sys.argv[4]
s=open(src).read()
m=re.search(r'; @launch (grid=.*)',s)
s=s.replace(m.group(0),f'; @launch kernel={NAME}_kernel {m.group(1)}\n; @launch kernel=rep_kernel grid=(1,1,1) block=(64,1,1) lds=0')
D='row_mask:0xf bank_mask:0xf'
op={'max':'v_max_u32','avg':'v_add_u32','zero':'v_max_u32'}[mode]
L=[]
A=L.append
A('''.text
.globl rep_kernel
.p2align 8
.type rep_kernel,@function
rep_kernel:
    s_cmp_lg_u32 s2, 0
    s_cbranch_scc1 .Lrep_end
    s_load_dwordx2 s[4:5], s[0:1], 88
    v_lshlrev_b32 v1, 7, v0
    s_waitcnt lgkmcnt(0)
    s_mov_b32 s8, s4
    s_mov_b32 s9, s5
    s_mov_b32 s10, 0x500000
    s_mov_b32 s11, 0x20000''')
for i in range(4):
    A(f'    s_mov_b32 s12, {0x400000+i*8192:#x}')
    A(f'    buffer_load_dword v{2+i}, v1, s[8:11], s12 offen offset:56')
    A(f'    buffer_load_dword v{6+i}, v1, s[8:11], s12 offen offset:{off}')
A('    s_waitcnt vmcnt(0)')
A('    v_min_u32 v2, v2, v3\n    v_min_u32 v4, v4, v5\n    v_min_u32 v2, v2, v4')
def red(r,o):
    for rr in (1,2,4,8):
        A('    s_nop 1'); A(f'    {o}_dpp v{r}, v{r}, v{r} row_ror:{rr} {D}')
    for sw in ('v_permlane16_swap_b32','v_permlane32_swap_b32'):
        A(f'    v_mov_b32 v12, v{r}'); A('    s_nop 1'); A(f'    {sw} v{r}, v12'); A(f'    {o} v{r}, v{r}, v12')
red(2,'v_min_u32')
for i in range(4): A(f'    v_sub_u32 v{6+i}, v{6+i}, v2')
A(f'    {op} v6, v6, v7\n    {op} v8, v8, v9\n    {op} v6, v6, v8')
red(6,op)
A('    s_nop 1\n    v_readfirstlane_b32 s14, v6')
A({'max':'    s_lshl_b32 s14, s14, 3','avg':'    s_lshr_b32 s14, s14, 5','zero':'    s_mov_b32 s14, 0'}[mode])
A('''    s_min_u32 s14, s14, 200000
    s_memrealtime s[16:17]
    s_waitcnt lgkmcnt(0)
.Lrep_loop:
    s_memrealtime s[18:19]
    s_waitcnt lgkmcnt(0)
    s_sub_u32 s20, s18, s16
    s_cmp_lt_u32 s20, s14
    s_cbranch_scc1 .Lrep_loop
.Lrep_end:
    s_endpgm
.section .rodata,"a"
.p2align 6
.amdhsa_kernel rep_kernel
  .amdhsa_next_free_vgpr 16
  .amdhsa_next_free_sgpr 32
  .amdhsa_accum_offset 16
  .amdhsa_group_segment_fixed_size 0
  .amdhsa_kernarg_size 96
  .amdhsa_user_sgpr_count 2
  .amdhsa_user_sgpr_kernarg_segment_ptr 1
  .amdhsa_system_sgpr_workgroup_id_x 1
.end_amdhsa_kernel''')
open(dst,'w').write(s+'\n'.join(L)+'\n')
```

```python
import sys,re
NAME='gated_mix__gqa_block_cached__dense_activation_silu__decode'
src,dst,off,mode=sys.argv[1],sys.argv[2],int(sys.argv[3]),sys.argv[4]
ref=int(sys.argv[5]) if len(sys.argv)>5 else 56
rop='v_max_u32' if mode=='dmax' else 'v_min_u32'
s=open(src).read()
m=re.search(r'; @launch (grid=.*)',s)
s=s.replace(m.group(0),f'; @launch kernel={NAME}_kernel {m.group(1)}\n; @launch kernel=rep_kernel grid=(1,1,1) block=(64,1,1) lds=0')
D='row_mask:0xf bank_mask:0xf'
op={'max':'v_max_u32','avg':'v_add_u32','zero':'v_max_u32','dmax':'v_max_i32'}[mode]
L=[]
A=L.append
A('''.text
.globl rep_kernel
.p2align 8
.type rep_kernel,@function
rep_kernel:
    s_cmp_lg_u32 s2, 0
    s_cbranch_scc1 .Lrep_end
    s_load_dwordx2 s[4:5], s[0:1], 88
    v_lshlrev_b32 v1, 7, v0
    s_waitcnt lgkmcnt(0)
    s_mov_b32 s8, s4
    s_mov_b32 s9, s5
    s_mov_b32 s10, 0x500000
    s_mov_b32 s11, 0x20000''')
for i in range(4):
    A(f'    s_mov_b32 s12, {0x400000+i*8192:#x}')
    A(f'    buffer_load_dword v{2+i}, v1, s[8:11], s12 offen offset:{ref}')
    A(f'    buffer_load_dword v{6+i}, v1, s[8:11], s12 offen offset:{off}')
A('    s_waitcnt vmcnt(0)')
A(f'    {rop} v2, v2, v3\n    {rop} v4, v4, v5\n    {rop} v2, v2, v4')
def red(r,o):
    for rr in (1,2,4,8):
        A('    s_nop 1'); A(f'    {o}_dpp v{r}, v{r}, v{r} row_ror:{rr} {D}')
    for sw in ('v_permlane16_swap_b32','v_permlane32_swap_b32'):
        A(f'    v_mov_b32 v12, v{r}'); A('    s_nop 1'); A(f'    {sw} v{r}, v12'); A(f'    {o} v{r}, v{r}, v12')
red(2,rop)
for i in range(4): A(f'    v_sub_u32 v{6+i}, v{6+i}, v2')
A(f'    {op} v6, v6, v7\n    {op} v8, v8, v9\n    {op} v6, v6, v8')
red(6,op)
A('    s_nop 1\n    v_readfirstlane_b32 s14, v6')
A({'max':'    s_lshl_b32 s14, s14, 3','avg':'    s_lshr_b32 s14, s14, 5','zero':'    s_mov_b32 s14, 0','dmax':'    s_lshl_b32 s14, s14, 5'}[mode])
A('''    s_min_u32 s14, s14, 200000
    s_memrealtime s[16:17]
    s_waitcnt lgkmcnt(0)
.Lrep_loop:
    s_memrealtime s[18:19]
    s_waitcnt lgkmcnt(0)
    s_sub_u32 s20, s18, s16
    s_cmp_lt_u32 s20, s14
    s_cbranch_scc1 .Lrep_loop
.Lrep_end:
    s_endpgm
.section .rodata,"a"
.p2align 6
.amdhsa_kernel rep_kernel
  .amdhsa_next_free_vgpr 16
  .amdhsa_next_free_sgpr 32
  .amdhsa_accum_offset 16
  .amdhsa_group_segment_fixed_size 0
  .amdhsa_kernarg_size 96
  .amdhsa_user_sgpr_count 2
  .amdhsa_user_sgpr_kernarg_segment_ptr 1
  .amdhsa_system_sgpr_workgroup_id_x 1
.end_amdhsa_kernel''')
open(dst,'w').write(s+'\n'.join(L)+'\n')
```

```python
import sys, struct, argparse

NAME = 'gated_mix__gqa_block_cached__dense_activation_silu__decode'

RING = 0
SLOT = 16384
NSL = 9
STG = RING + 8 * SLOT
W1S = RING + 7 * SLOT
W2S = RING + (128 % NSL) * SLOT
WOS = RING + (129 % NSL) * SLOT
SCB = RING + NSL * SLOT
XS = SCB + 8192
GS = XS + 2048
QS = GS + 1024
FL = QS + 1024
LDS_BYTES = FL + 512

QP = 0x20000
HP = 0x40000
FLG = 0x500000
REC = 0x100000
YB = 0x200000
YROW = 7168
WS_BYTES = 0x600000
STAMP = 0x400000
WDONE = 0x20000

def f32(x):
    return '0x%08x' % struct.unpack('<I', struct.pack('<f', x))[0]

LOG2E = 1.4426950408889634
DPPM = 'row_mask:0xf bank_mask:0xf'


class G:
    def __init__(self, o):
        self.L = []
        self.o = o
        self.uid = 0

    def A(self, s):
        self.L.append('    ' + s)

    def lab(self, s):
        self.L.append(s + ':')

    def new(self, p):
        self.uid += 1
        return f'.L{p}_{self.uid}'

    def srd(self, d, ptr, nbytes):
        A = self.A
        A(f's_mov_b32 s{d}, s{ptr}')
        A(f's_mov_b32 s{d+1}, s{ptr+1}')
        A(f's_mov_b32 s{d+2}, {nbytes:#x}')
        A(f's_mov_b32 s{d+3}, 0x20000')

    def stamp(self, k):
        if self.o.diag:
            self.A(f's_memrealtime s[{86+2*k}:{87+2*k}]')
            self.A('s_waitcnt lgkmcnt(0)')

    def apoll(self, name, loads, tagregs, masks, TAG, sBUD, sleep, slow=None, between=None):
        A = self.A
        for ld in loads:
            A(ld)
        if between:
            between()
        self.lab(f'.L{name}_loop')
        if sleep:
            A(f's_sleep {sleep}')
        for t, m in zip(tagregs, masks):
            A(f'v_cmp_ne_u32 s[{m}:{m+1}], v{t}, v{TAG}')
        A(f's_or_b64 vcc, s[{masks[0]}:{masks[0]+1}], s[{masks[1]}:{masks[1]+1}]')
        for m in masks[2:]:
            A(f's_or_b64 vcc, vcc, s[{m}:{m+1}]')
        A(f's_cbranch_scc0 .L{name}_ok')
        if self.o.pairskip and len(loads) > 4:
            for k in range(0, len(loads), 2):
                sk = self.new('sk')
                m0_, m1_ = masks[k], masks[k+1]
                A(f's_or_b64 exec, s[{m0_}:{m0_+1}], s[{m1_}:{m1_+1}]')
                A(f's_cbranch_execz {sk}')
                A(loads[k])
                A(loads[k+1])
                self.lab(sk)
        else:
            for ld, m in zip(loads, masks):
                sk = self.new('sk')
                A(f's_mov_b64 exec, s[{m}:{m+1}]')
                if not self.o.nobr:
                    A(f's_cbranch_execz {sk}')
                A(ld)
                self.lab(sk)
        A('s_mov_b64 exec, -1')
        if slow:
            thr, extra = slow
            sk = self.new('sk')
            A('s_bcnt1_i32_b64 vcc_lo, vcc')
            A(f's_cmp_le_u32 vcc_lo, {thr}')
            A(f's_cbranch_scc1 {sk}')
            A(f's_sleep {extra}')
            self.lab(sk)
        A(f's_sub_u32 s{sBUD}, s{sBUD}, 16')
        A(f's_cbranch_scc0 .L{name}_loop')
        A(f's_mov_b32 s{sBUD}, 0')
        self.lab(f'.L{name}_ok')


def q(b, n=4):
    return f'v[{b}:{b+n-1}]'


def gen(o):
    g = G(o)
    A = g.A
    W = o.window
    K = NAME + '_kernel'
    pX, pK, pV, pWQ, pWO, pW1, pW2, pG, pOUT, pWS = 36, 38, 40, 42, 44, 48, 50, 52, 54, 58

    g.L.append(f'.globl {K}\n.p2align 8\n.type {K},@function\n{K}:')
    A('s_cmp_ge_u32 s2, 256')
    A('s_cbranch_scc1 .Lexit')
    if o.diag:
        A('s_memrealtime s[30:31]')
    A('s_load_dwordx16 s[36:51], s[0:1], 0')
    A('s_load_dwordx8 s[52:59], s[0:1], 64')
    if o.icpf:
        A(f's_cmp_ge_u32 s2, {o.icpf}')
        A('s_cbranch_scc1 .Lnopf')
        A('s_getpc_b64 s[4:5]')
        g.lab('.Lpc')
        A('v_lshlrev_b32 v9, 7, v0')
        A('v_add_u32 v10, 0x4000, v9')
        A('v_min_u32 v10, .Lexit-.Lpc, v10')
        A('global_load_dword v249, v9, s[4:5]')
        A('global_load_dword v248, v10, s[4:5]')
        if len(o.wins) > 2:
            A('v_add_u32 v10, 0x8000, v9')
            A('v_min_u32 v10, .Lexit-.Lpc, v10')
            A('global_load_dword v247, v10, s[4:5]')
        g.lab('.Lnopf')
    A('v_lshrrev_b32 v1, 6, v0')
    A('v_lshlrev_b32 v8, 2, v0')
    A('v_readfirstlane_b32 s3, v1')
    A(f'v_add_u32 v8, {FL}, v8')
    A('v_mov_b32 v14, 0')
    A('ds_write_b32 v8, v14')
    A('v_and_b32 v1, 63, v0')
    A('s_cmp_lg_u32 s3, 0')
    A('s_cbranch_scc1 .Lcons')

    gs, U, sh = o.gs, o.unit, o.idxsh
    lg = gs.bit_length() - 1
    A(f's_lshr_b32 s17, s2, {sh}')
    A(f's_and_b32 s17, s17, {gs-1}')
    A(f's_lshr_b32 s18, s2, {sh+lg}')
    A(f's_lshl_b32 s18, s18, {sh}')
    if o.rx == 1:
        A('s_lshr_b32 s19, s2, 4')
        A('s_xor_b32 s19, s19, s2')
        A(f's_and_b32 s19, s19, {(1<<sh)-1}')
    elif o.rx == 2:
        A('s_lshr_b32 s19, s2, 4')
        A('s_add_u32 s19, s19, s2')
        A(f's_and_b32 s19, s19, {(1<<sh)-1}')
    elif o.rx == 3:
        A('s_lshr_b32 s19, s2, 5')
        A('s_add_u32 s19, s19, s2')
        A(f's_and_b32 s19, s19, {(1<<sh)-1}')
    else:
        A(f's_and_b32 s19, s2, {(1<<sh)-1}')
    A('s_or_b32 s18, s18, s19')
    A(f's_lshl_b32 s16, s18, {20+lg}')
    A(f's_mul_i32 s17, s17, {U*4096}')
    A('s_add_u32 s16, s16, s17')
    A('v_lshrrev_b32 v3, 5, v1')
    A('v_and_b32 v5, 31, v1')
    A('v_lshlrev_b32 v4, 1, v3')
    A('v_xor_b32 v5, v5, v4')
    A('v_lshlrev_b32 v5, 4, v5')
    A('v_lshl_add_u32 v20, v3, 9, v5')
    for i in range(1, 4):
        A(f'v_xor_b32 v{20+i}, {i*64}, v20')
    A(f'v_mov_b32 v7, {FL+256}')
    A('v_lshlrev_b32 v24, 4, v1')
    j0 = (W - 1) % 16
    lag = (W - 1) // 16 + 1
    A('s_mov_b32 s20, -7')
    A('s_mov_b32 s22, 0')
    A('s_mov_b32 s27, s16')
    A('s_mov_b32 s24, 0')
    A(f's_mov_b32 s25, {1<<22}')
    A('s_lshr_b32 s4, s2, 4')
    A('s_lshl_b32 s4, s4, 8')
    A('s_bfe_u32 s5, s2, 0x20002')
    A('s_lshl_b32 s5, s5, 5')
    A('s_add_u32 s4, s4, s5')
    A('s_and_b32 s5, s2, 3')
    A('s_lshl_b32 s5, s5, 2')
    A('s_add_u32 s4, s4, s5')
    A('s_mul_i32 s4, s4, 896')
    A('s_mul_i32 s6, s2, 7168')
    A('s_waitcnt lgkmcnt(0)')
    g.srd(8, pK, 0x10000000)
    g.srd(60, pWO, 4096 * 896)
    g.srd(64, pW2, 1792 * 896)
    if o.diag:
        g.srd(68, pWS, STAMP + 0x20000)
        A('v_mov_b32 v30, 0')
    A('s_barrier')
    spins = []
    def check(name):
        A('s_cmp_lt_i32 s24, s20')
        A(f's_cbranch_scc1 .Lspin{name}')
        g.lab(f'.Lgo{name}')
        spins.append(name)
    def body(name, wins, first=False):
        for tt in range(8):
            Wd = wins[tt]
            if not first:
                check(f'{name}{tt}')
            elif tt == 7:
                A('s_cmp_lt_i32 s24, 1')
                A('s_cbranch_scc1 .Lspinf')
                g.lab('.Lgof')
            for j in range(16):
                if j % 4 == 0:
                    k = tt * 4 + o.perm[j // 4]
                    A(f's_add_u32 m0, s22, {RING + j*1024:#x}')
                    A(f's_add_u32 s23, s16, {((k//U)*gs*U + k % U)*4096:#x}')
                if not (first and tt * 16 + j < Wd):
                    A(f's_waitcnt vmcnt({Wd-1})')
                elif j % 4 == 0:
                    A('s_nop 0')
                A(f'buffer_load_dwordx4 v{20+(j&3)}, s[8:11], s23 offen offset:{(j&3)*1024} {o.kflags} lds')
                if j == (Wd - 1) % 16:
                    if first:
                        v = tt - (Wd - 1) // 16
                        if v > 0:
                            A(f'v_mov_b32 v14, {v}')
                            A('ds_write_b32 v8, v14')
                    else:
                        A(f's_add_u32 s21, s20, {(7 if j <= 9 else 6) - (Wd - 1) // 16}')
                        A('v_mov_b32 v14, s21')
                        A('ds_write_b32 v8, v14')
                if o.prog and j == 0 and tt % 2 == 0:
                    A('s_memrealtime s[86:87]')
                if j == 12:
                    A(f's_add_u32 s22, s22, {SLOT:#x}')
                    A(f's_cmp_eq_u32 s22, {NSL*SLOT:#x}')
                    A('s_cselect_b32 s22, 0, s22')
                if j == 9:
                    if not first or tt >= 6:
                        A('ds_read_b32 v15, v7')
                    A('s_add_u32 s20, s20, 1')
                if j == 13 and tt == 7:
                    if name == 'k':
                        A('s_mov_b32 s16, s27')
                    else:
                        A(f's_add_u32 s16, s16, {16384*gs*8:#x}')
                        if not o.wk:
                            A('s_cmp_eq_u32 s20, 57')
                            A('s_cselect_b32 s16, s27, s16')
                if j == 14 and (not first or tt >= 6 or o.prog):
                    A('s_waitcnt lgkmcnt(0)')
                    if not first or tt >= 6:
                        A('v_readfirstlane_b32 s19, v15')
                        A('s_and_b32 s24, s19, 0xffff')
                if o.prog and j == 15 and tt % 2 == 1:
                    A('s_add_u32 s17, s20, 6')
                    A('s_lshr_b32 m0, s17, 1')
                    A('s_nop 0')
                    A('v_writelane_b32 v30, s86, m0')
    A(f's_mov_b32 s26, {49 if o.wk else 57}')
    body('f', o.w1 or [W] * 8, True)
    wins = [W] + o.wins
    if o.c0:
        A(f's_branch .Lload{o.c0}')
    for i, Wd in enumerate(wins):
        g.L.append('.p2align 6')
        g.lab(f'.Lload{i}')
        body(f'm{i}_', [Wd] * 8)
        A('s_cmp_ge_i32 s20, s26')
        A('s_cbranch_scc1 .Lturn')
        if i + 1 == len(wins):
            g.lab('.Lsel')
        for k in range(len(wins) - 1):
            A(f's_cmp_lt_u32 s19, {(k + 1) << 16:#x}')
            A(f's_cbranch_scc1 .Lload{k}')
        A(f's_branch .Lload{len(wins)-1}')
    g.lab('.Lturn')
    A('s_cmp_gt_i32 s20, 57')
    A('s_cbranch_scc1 .Ldrain')
    A('s_mov_b32 s26, 121')
    if o.wk:
        body('k', o.wk)
    A(f's_mov_b32 s8, s{pV}')
    A(f's_mov_b32 s9, s{pV+1}')
    A('s_branch .Lsel')
    g.lab('.Ldrain')
    NX = 23
    W = o.wd or W
    todo = list(range(128 - lag + 1, 129))
    def flag(c):
        A(f'v_mov_b32 v14, {c}')
        A('ds_write_b32 v8, v14')
        if c == 128 and o.diag:
            A('s_memrealtime s[86:87]')
    A('s_add_u32 s20, s20, 1')
    check('w')
    for e in range(NX):
        if e < 7:
            A(f's_mov_b32 m0, {W2S + e*1024}')
            A(f's_add_u32 s23, s6, {e*1024}')
            srd = 64
        else:
            k = e - 7
            a_, nn, u = k >> 3, (k >> 1) & 3, k & 1
            if k == 0:
                A('s_mov_b32 exec_hi, 0x00ffffff')
            A(f's_mov_b32 m0, {WOS + k*896}')
            A(f's_add_u32 s23, s4, {(128*a_+16*u+nn)*896}')
            srd = 60
        A(f's_waitcnt vmcnt({W-1})')
        while todo and 2048 + e >= 16 * todo[0] - 1 + W:
            flag(todo.pop(0))
        A(f'buffer_load_dwordx4 v24, s[{srd}:{srd+3}], s23 offen nt lds')
    for c in todo:
        A(f's_waitcnt vmcnt({2048 + NX - 16*c})')
        flag(c)
    A('s_waitcnt vmcnt(0)')
    A(f'v_mov_b32 v14, {WDONE + 128:#x}')
    A('ds_write_b32 v8, v14')
    if o.diag:
        A('s_waitcnt lgkmcnt(0)')
        A('v_mov_b32 v16, s86')
        A('v_mov_b32 v17, s87')
        A('v_mov_b32 v18, 0')
        A('v_mov_b32 v19, 0')
        A('s_lshl_b32 s17, s2, 7')
        A(f's_add_u32 s17, s17, {STAMP+64:#x}')
        A('s_mov_b64 exec, 1')
        A('buffer_store_dwordx4 v[16:19], v19, s[68:71], s17 offen')
        A('s_mov_b64 exec, -1')
        A('v_lshlrev_b32 v19, 2, v1')
        A('s_lshl_b32 s17, s2, 8')
        A(f's_add_u32 s17, s17, {STAMP+0x10000:#x}')
        A('buffer_store_dword v30, v19, s[68:71], s17 offen')
    A('s_endpgm')
    for tt in spins + ['f']:
        g.lab(f'.Lspin{tt}')
        A('ds_read_b32 v15, v7')
        A('s_waitcnt lgkmcnt(0)')
        A('v_readfirstlane_b32 s24, v15')
        A('s_and_b32 s24, s24, 0xffff')
        A('s_cmp_ge_i32 s24, 1' if tt == 'f' else 's_cmp_ge_i32 s24, s20')
        A(f's_cbranch_scc1 .Lgo{tt}')
        A('s_sleep 1')
        A('s_sub_u32 s25, s25, 1')
        A(f's_cbranch_scc0 .Lspin{tt}')
        A('s_mov_b32 s25, 0')
        A(f's_branch .Lgo{tt}')

    sX, sWQ, sWS, sW1, sG, sOUT = 8, 12, 16, 24, 32, 60
    TAG, LNDA, CONA, KA0, VA0, M, NM, LS = 6, 7, 8, 9, 10, 11, 12, 13
    KAC, VAC, O, S, T, P8 = 16, 20, 28, 36, 44, 48
    KV, QF, PV, FP, G0, TL = 64, 128, 160, 192, 206, 208
    HV = 240
    HA = 250
    OMG = 254
    sT, sSLOT, sLND, sC, sNEED, sBUD = 81, 82, 83, 84, 85, 80
    sRAW = 100
    WS = f's[{sWS}:{sWS+3}]'
    g.L.append('.p2align 6')
    g.lab('.Lcons')
    A('v_lshlrev_b32 v56, 4, v1')
    A('v_lshrrev_b32 v58, 3, v1')
    A('v_and_b32 v59, 7, v1')
    A('v_lshlrev_b32 v57, 13, v58')
    A('v_lshl_add_u32 v57, v59, 4, v57')
    A('v_mul_u32_u24 v58, 3584, v58')
    A('v_lshl_add_u32 v58, v59, 4, v58')
    A('v_mov_b32 v59, 0')
    A('v_and_b32 v2, 15, v1')
    A('v_lshrrev_b32 v3, 4, v1')
    A('v_bfe_u32 v4, v1, 2, 2')
    A('v_and_b32 v5, 3, v1')
    A('s_and_b32 s4, s2, 3')
    A(f's_mul_i32 s5, s4, {112*8192}')
    A('s_lshr_b32 s6, s2, 2')
    A('s_lshl_b32 s6, s6, 7')
    A('s_add_u32 s5, s5, s6')
    A('s_and_b32 s20, s2, 7')
    A(f's_mul_i32 s21, s20, {56*3584}')
    A('s_lshr_b32 s22, s2, 3')
    A('s_lshl_b32 s23, s22, 7')
    A('s_add_u32 s21, s21, s23')
    A('s_cmp_lt_u32 s2, 224')
    A('s_cselect_b32 s21, s21, 0x200000')
    A('s_waitcnt lgkmcnt(0)')
    g.srd(sWS, pWS, WS_BYTES)
    g.srd(sX, pX, 1792)
    g.srd(sWQ, pWQ, 448 * 8192)
    if o.cfirst < 0:
        A('s_barrier')
    g.stamp(0)
    if o.diag:
        A('s_mov_b32 s101, s30')
    A(f'buffer_load_dword v{TAG}, v59, {WS}, 0 offen')
    A(f's_mov_b32 m0, {XS}')
    A('s_nop 0')
    A(f'buffer_load_dwordx4 v56, s[{sX}:{sX+3}], 0 offen lds')
    A(f'buffer_load_dwordx4 v56, s[{sX}:{sX+3}], 0 offen offset:1024 lds')
    for t in range(14):
        if o.cfirst == t:
            A('s_barrier')
        A(f's_mov_b32 m0, {STG + t*1024}')
        A(f's_add_u32 s6, s5, {t*65536:#x}')
        A(f'buffer_load_dwordx4 v57, s[{sWQ}:{sWQ+3}], s6 offen {o.wqflags} lds')
    if o.cfirst == 14:
        A('s_barrier')
    g.srd(sW1, pW1, 448 * 3584)
    g.srd(sG, pG, 896)
    A(f's_mov_b32 m0, {GS}')
    g.srd(sOUT, pOUT, 1792)
    A(f'buffer_load_dwordx4 v56, s[{sG}:{sG+3}], 0 offen lds')
    for t in range(8):
        A(f's_mov_b32 m0, {W1S + t*1024}')
        if t < 7:
            A(f's_add_u32 s6, s21, {t*8*3584:#x}')
        else:
            A('s_mov_b32 s6, 0x200000')
        A(f'buffer_load_dwordx4 v58, s[{sW1}:{sW1+3}], s6 offen nt lds')
    if o.cfirst > 14:
        A('s_barrier')
    NW1 = 9
    A('v_and_b32 v58, 1, v2')
    A('v_mul_u32_u24 v60, 896, v58')
    A('v_lshl_add_u32 v60, v3, 4, v60')
    A(f'v_add_u32 v60, {XS}, v60')
    A('v_lshl_add_u32 v61, v3, 3, v4')
    A('v_lshlrev_b32 v61, 7, v61')
    A('v_lshl_add_u32 v61, v5, 3, v61')
    A(f'v_add_u32 v51, {W1S}, v61')
    A(f'v_add_u32 v61, {STG}, v61')
    A('v_lshl_add_u32 v63, v3, 2, v4')
    A('v_lshlrev_b32 v63, 7, v63')
    A('v_lshl_add_u32 v63, v5, 3, v63')
    A(f'v_add_u32 v63, {STG+96*128}, v63')
    A('s_mul_i32 s6, s4, 224')
    A('v_add_u32 v57, s6, v60')
    A('v_lshlrev_b32 v55, 3, v3')
    A('v_sub_u32 v55, v57, v55')
    A('s_mul_i32 s6, s20, 112')
    A('v_add_u32 v54, s6, v60')
    A('v_lshlrev_b32 v62, 16, v58')
    A('v_bfe_u32 v14, v2, 1, 2')
    A('v_lshl_add_u32 v62, v14, 6, v62')
    A('v_lshl_add_u32 v62, v3, 4, v62')
    A('v_lshlrev_b32 v53, 7, v14')
    A('v_lshl_add_u32 v53, v58, 5, v53')
    A('v_lshrrev_b32 v14, 1, v3')
    A('v_lshl_add_u32 v53, v14, 6, v53')
    A('v_and_b32 v14, 1, v3')
    A('v_lshl_add_u32 v53, v14, 4, v53')
    A(f'v_bfe_u32 v{HV+4}, v1, 2, 3')
    A(f'v_lshlrev_b32 v{HV+4}, 9, v{HV+4}')
    A(f'v_lshl_add_u32 v{HV+4}, v5, 4, v{HV+4}')
    A('v_and_b32 v14, 7, v2')
    A('v_lshlrev_b32 v14, 1, v14')
    A('v_xor_b32 v14, v14, v3')
    A('v_lshlrev_b32 v14, 4, v14')
    A(f'v_lshl_add_u32 v{KA0}, v2, 9, v14')
    A('v_lshl_add_u32 v14, v3, 2, v4')
    A('v_and_b32 v15, 7, v14')
    A('v_lshlrev_b32 v15, 5, v15')
    A('v_lshl_add_u32 v15, v5, 3, v15')
    A(f'v_lshl_add_u32 v{VA0}, v14, 9, v15')
    A(f'v_mov_b32 v{LNDA}, {FL}')
    for v in range(8):
        qq, u = v >> 1, v & 1
        m16 = (1 << (4*qq+u)) | (1 << (4*qq+u+2))
        m32 = m16 | (m16 << 16)
        A(f's_mov_b32 s{64+2*v}, {m32:#x}')
        A(f's_mov_b32 s{65+2*v}, {m32:#x}')
    A(f's_mov_b32 s{sC}, {f32(0.0625*LOG2E)}')
    A(f's_mov_b32 s{sBUD}, {1<<22}')
    A(f's_mov_b32 s{sLND}, 0')
    A(f's_mov_b32 s{sSLOT}, 0')
    A('s_mov_b32 s7, 1664525')
    A('s_lshr_b32 s5, s2, 5')
    A('s_lshl_b32 s5, s5, 13')
    A('s_lshl_b32 s4, s4, 11')
    A('s_add_u32 s5, s5, s4')
    A('s_bfe_u32 s4, s2, 0x30002')
    A('s_lshl_b32 s4, s4, 8')
    A('s_add_u32 s5, s5, s4')
    A(f's_add_u32 s5, s5, {QP:#x}')
    A('s_lshr_b32 s6, s2, 4')
    A('s_lshl_b32 s6, s6, 13')
    A(f's_add_u32 s6, s6, {QP:#x}')
    A('s_add_u32 s4, s6, 0x1000')
    A('s_lshl_b32 s21, s2, 9')
    A(f's_add_u32 s21, s21, {HP:#x}')
    A('s_lshl_b32 s22, s22, 12')
    A('s_lshl_b32 s20, s20, 6')
    A('s_add_u32 s22, s22, s20')
    A(f's_add_u32 s22, s22, {HP:#x}')
    for c in range(1, 4):
        m16 = (3 << (2*c)) | (3 << (2*c+8))
        A(f's_mov_b32 s{34+2*c}, {m16 | (m16 << 16):#x}')
        A(f's_mov_b32 s{35+2*c}, {m16 | (m16 << 16):#x}')
    for k in range(4):
        A(f's_mov_b32 s{42+k}, {0x07060500 + k:#x}')
    A('s_mov_b32 s46, 0x0c0c0400')
    A('s_mov_b32 s47, 0x04000c0c')

    def publish(D, dst, voff, soff):
        for c in range(1, 4):
            for r in range(4):
                A(f'v_cndmask_b32 v{D+r}, v{D+r}, v{D+4*c+r}, s[{34+2*c}:{35+2*c}]')
        for r in range(4):
            A(f'v_add_u32 v{D+r}, 0x80, v{D+r}')
        A('s_mov_b32 exec_lo, 0x00ff00ff')
        A('s_mov_b32 exec_hi, 0x00ff00ff')
        for r in range(4):
            A(f'v_perm_b32 v{dst+r}, v{D+r}, v{TAG}, s{42+r}')
        A(f'buffer_store_dwordx4 {q(dst)}, v{voff}, {WS}, s{soff} offen {o.stflags}')
        A('s_mov_b64 exec, -1')

    def rbf(r):
        A(f'v_cvt_pk_bf16_f32 v{r}, v{r}, v{r}')
        A(f'v_and_b32 v{r}, 0xffff0000, v{r}')

    XF, AF, QD = 64, 128, 80
    A(f's_waitcnt vmcnt({14+NW1})')
    A(f'v_mul_lo_u32 v{TAG}, v{TAG}, s7')
    for t in range(3):
        A(f'ds_read_b128 {q(XF+4*t)}, v57 offset:{t*64}')
    A(f'ds_read_b64 {q(XF+12,2)}, v55 offset:192')
    A(f'v_add_u32 v{TAG}, 1013904223, v{TAG}')
    def qm(t):
        for c in range(4):
            if t < 3:
                A(f'v_mfma_f32_16x16x32_bf16 {q(QD+4*c)}, {q(AF+16*t+4*c)}, {q(XF+4*t)}, {"0" if t==0 else q(QD+4*c)}')
            else:
                A(f'v_mfma_f32_16x16x16_bf16 {q(QD+4*c)}, {q(AF+48+2*c,2)}, {q(XF+12,2)}, {q(QD+4*c)}')
    for t in range(4):
        A(f's_waitcnt vmcnt({max(0, 10-4*t)+NW1})')
        for c in range(4):
            if t < 3:
                A(f'ds_read_b64_tr_b16 {q(AF+16*t+4*c,2)}, v61 offset:{t*4096+c*32}')
                A(f'ds_read_b64_tr_b16 {q(AF+16*t+4*c+2,2)}, v61 offset:{t*4096+c*32+512}')
            else:
                A(f'ds_read_b64_tr_b16 {q(AF+48+2*c,2)}, v63 offset:{c*32}')
        if t >= 1:
            A(f's_waitcnt lgkmcnt({8 if t < 3 else 4})')
            qm(t-1)
    A('s_waitcnt lgkmcnt(0)')
    qm(3)
    A('s_nop 5')
    publish(QD, T, 62, 5)
    g.stamp(1)
    for i in range(8):
        A(f'v_mov_b32 v{O+i}, 0')
    for i in range(32):
        A(f'v_mov_b32 v{PV+i}, 0')
    A(f'v_mov_b32 v{M}, 0xff7fffff')
    A(f'v_mov_b32 v{LS}, 0')
    A('v_lshlrev_b32 v57, 3, v1')
    A(f'v_add_u32 v57, {QS}, v57')
    A('v_bfe_u32 v58, v2, 1, 1')
    SCA = 245
    A(f'v_lshlrev_b32 v{SCA}, 6, v58')
    A(f'v_lshl_add_u32 v{SCA}, v3, 4, v{SCA}')
    A(f'v_add_u32 v{SCA}, {SCB}, v{SCA}')
    A('v_lshlrev_b32 v58, 9, v58')
    A('v_lshl_add_u32 v58, v3, 4, v58')
    A(f'v_add_u32 v58, {QS}, v58')

    def poll_landed():
        d = g.new('pd')
        sp = g.new('ps')
        A(f's_cmp_ge_u32 s{sLND}, s{sNEED}')
        A(f's_cbranch_scc1 {d}')
        g.lab(sp)
        A(f'ds_read_b32 v14, v{LNDA}')
        A('s_waitcnt lgkmcnt(0)')
        A(f'v_readfirstlane_b32 s{sLND}, v14')
        A(f's_cmp_ge_u32 s{sLND}, s{sNEED}')
        A(f's_cbranch_scc1 {d}')
        if o.lsleep:
            A(f's_sleep {o.lsleep}')
        A(f's_sub_u32 s{sBUD}, s{sBUD}, 1')
        A(f's_cbranch_scc0 {sp}')
        A(f's_mov_b32 s{sBUD}, 0')
        g.lab(d)

    hload = f'buffer_load_dwordx4 {q(HV)}, v{HV+4}, {WS}, s22 offen {o.ldflags}'
    def qloads():
        for i in range(8):
            A(f'buffer_load_dwordx4 {q(KV+4*i)}, v56, {WS}, s{6 if i < 4 else 4} offen offset:{(i&3)*1024} {o.ldflags}')
    A('s_waitcnt vmcnt(1)')
    A(f's_mov_b32 s{sNEED}, {o.qwait}')
    poll_landed()
    qloads()
    HD = 104
    for t in range(2):
        A(f'ds_read_b128 {q(96+4*t)}, v54 offset:{t*64}')
    for t in range(2):
        for c in range(4):
            A(f'ds_read_b64_tr_b16 {q(AF+16*t+4*c,2)}, v51 offset:{t*4096+c*32}')
            A(f'ds_read_b64_tr_b16 {q(AF+16*t+4*c+2,2)}, v51 offset:{t*4096+c*32+512}')
    A(f'v_add_u32 v52, {GS}, v56')
    A(f'ds_read_b128 {q(TL)}, v52')
    A(f'v_add_u32 v52, {XS}, v56')
    A(f'ds_read_b128 {q(TL+4)}, v52')
    A(f'ds_read_b128 {q(TL+8)}, v52 offset:896')
    A(f'v_mov_b32 v14, {(o.c0 << 16) + 1:#x}')
    A('s_waitcnt lgkmcnt(3)')
    A(f'ds_write_b32 v{CONA}, v14')
    for t in range(2):
        for c in range(4):
            A(f'v_mfma_f32_16x16x32_bf16 {q(HD+4*c)}, {q(AF+16*t+4*c)}, {q(96+4*t)}, {"0" if t==0 else q(HD+4*c)}')
    A('s_nop 5')
    publish(HD, 120, 53, 21)
    A('s_waitcnt lgkmcnt(0)')
    for b in range(2):
        acc = TL + 12 + b
        for d in range(4):
            A(f'v_lshlrev_b32 v{TL+16}, 16, v{TL+d}')
            A(f'v_and_b32 v{TL+17}, 0xffff0000, v{TL+d}')
            A(f'v_lshlrev_b32 v{TL+18}, 16, v{TL+4+4*b+d}')
            A(f'v_and_b32 v{TL+19}, 0xffff0000, v{TL+4+4*b+d}')
            A(f'v_mul_f32 v{TL+16}, v{TL+16}, v{TL+18}')
            A(f'v_mul_f32 v{TL+17}, v{TL+17}, v{TL+19}')
            A(f'v_cvt_pk_bf16_f32 v{TL+18}, v{TL+16}, v{TL+17}')
            A(f'v_lshlrev_b32 v{TL+16}, 16, v{TL+18}')
            A(f'v_and_b32 v{TL+17}, 0xffff0000, v{TL+18}')
            if d == 0:
                A(f'v_add_f32 v{acc}, v{TL+16}, v{TL+17}')
            else:
                A(f'v_add_f32 v{acc}, v{acc}, v{TL+16}')
                A(f'v_add_f32 v{acc}, v{acc}, v{TL+17}')
    Z = TL + 12
    A('s_nop 1')
    A(f'v_permlane32_swap_b32 v{Z}, v{Z+1}')
    A(f'v_add_f32 v{Z}, v{Z}, v{Z+1}')
    A(f'v_mov_b32 v{Z+1}, v{Z}')
    A('s_nop 1')
    A(f'v_permlane16_swap_b32 v{Z}, v{Z+1}')
    A(f'v_add_f32 v{Z}, v{Z}, v{Z+1}')
    for rr in (8, 4, 2, 1):
        A('s_nop 1')
        A(f'v_add_f32_dpp v{Z}, v{Z}, v{Z} row_ror:{rr} {DPPM}')
    rbf(Z)
    A(f'v_mul_f32 v{Z}, {f32(-LOG2E)}, v{Z}')
    A(f'v_exp_f32 v{Z}, v{Z}')
    A('s_nop 0')
    A(f'v_add_f32 v{Z}, 1.0, v{Z}')
    A(f'v_rcp_f32 v{G0}, v{Z}')
    A('s_nop 0')
    rbf(G0)
    A(f'v_sub_f32 v{OMG}, 1.0, v{G0}')
    rbf(OMG)
    A(f'v_mov_b32 v{G0+1}, v{G0}')
    A(f'v_mov_b32 v{OMG+1}, v{OMG}')
    A('s_nop 1')
    A(f'v_permlane32_swap_b32 v{G0}, v{G0+1}')
    A(f'v_permlane32_swap_b32 v{OMG}, v{OMG+1}')
    g.lab('.Lqchk')
    for i in range(8):
        A(f's_waitcnt vmcnt({8-i})')
        A(f'v_perm_b32 v14, v{KV+4*i+1}, v{KV+4*i}, s46')
        A(f'v_perm_b32 v15, v{KV+4*i+3}, v{KV+4*i+2}, s47')
        for r in range(4):
            A(f'v_and_b32 v{KV+4*i+r}, 0xffffff00, v{KV+4*i+r}')
        A(f'v_xor_b32 v14, v14, v{TAG}')
        if i == 0:
            A('v_xor_b32 v36, v14, v15')
        else:
            A('v_xor_b32 v14, v14, v15')
            A('v_or_b32 v36, v36, v14')
        if i >= 2:
            h = i & 1
            A(f'v_pk_add_f32 {q(KV+4*h,2)}, {q(KV+4*h,2)}, {q(KV+4*i,2)}')
            A(f'v_pk_add_f32 {q(KV+4*h+2,2)}, {q(KV+4*h+2,2)}, {q(KV+4*i+2,2)}')
    A('v_cmp_ne_u32 vcc, 0, v36')
    A('s_cbranch_vccz .Lqok')
    A(f's_sleep {o.qsleep}')
    qloads()
    A(hload)
    A(f's_sub_u32 s{sBUD}, s{sBUD}, 64')
    A('s_cbranch_scc0 .Lqchk')
    A(f's_mov_b32 s{sBUD}, 0')
    A('s_waitcnt vmcnt(0)')
    g.lab('.Lqok')
    for h in range(2):
        A(f'v_cvt_pk_bf16_f32 v{T+2*h}, v{KV+4*h}, v{KV+4*h+1}')
        A(f'v_cvt_pk_bf16_f32 v{T+2*h+1}, v{KV+4*h+2}, v{KV+4*h+3}')
    A(f'ds_write_b64 v57, {q(T,2)}')
    A(f'ds_write_b64 v57, {q(T+2,2)} offset:512')
    A(hload)
    A('s_waitcnt lgkmcnt(0)')
    for j in range(8):
        A(f'ds_read_b128 {q(QF+4*j)}, v58 offset:{j*64}')
    g.stamp(2)

    ctl = len(wins) > 1 or o.ctlonly
    sCODE, sTAG, sFO = 23, 20, 21
    A(f's_mov_b32 s{sCODE}, {o.c0 << 16:#x}')
    if ctl:
        A(f'v_readfirstlane_b32 s{sTAG}, v{TAG}')
        if o.diag:
            A('v_mov_b32 v246, 0')
        for i in range(1, 8):
            A(f's_add_u32 s{7+i}, s2, {i}')
            A(f's_and_b32 s{7+i}, s{7+i}, 7')
            A(f's_lshl_b32 s{7+i}, s{7+i}, 8')
        A('s_lshr_b32 s15, s2, 4')
        A('s_lshl_b32 s15, s15, 12')
        A(f's_add_u32 s15, s15, {FLG:#x}')
        A(f's_add_u32 s52, s{pWS}, s15')
        A(f's_addc_u32 s53, s{pWS+1}, 0')
        A('s_add_u32 s54, s52, 0x800')
        A('s_addc_u32 s55, s53, 0')
        A(f's_lshl_b32 s{sFO}, s2, 8')
        A(f's_add_u32 s{sFO}, s{sFO}, {FLG:#x}')
    DST = [24, 25, 26, 27, 28, 29, 30, 31, 32, 33, 34, 35, 56, 57]
    def control(back):
        A(f's_and_b32 s15, s{sNEED}, {o.cp-1}')
        A(f's_cmp_lg_u32 s15, {o.cpo}')
        A(f's_cbranch_scc1 {back}')
        A(f's_cmp_lt_u32 s{sNEED}, {o.cpbeg}')
        A(f's_cbranch_scc1 {back}')
        for i in range(14):
            A(f's_load_dword s{DST[i]}, s[{52+2*(i&1)}:{53+2*(i&1)}], s{8+(i>>1)}')
        A('s_mov_b64 exec, 1')
        A(f'buffer_store_dword v{TAG}, v59, {WS}, s{sFO} offen {o.stflags}')
        A('s_mov_b64 exec, -1')
        A(f's_add_u32 s{sFO}, s{sFO}, 0x10000')
        A('s_mov_b32 s15, 0')
        A('s_waitcnt lgkmcnt(0)')
        A('s_add_u32 s52, s52, 0x10000')
        A('s_addc_u32 s53, s53, 0')
        A('s_add_u32 s54, s54, 0x10000')
        A('s_addc_u32 s55, s55, 0')
        for i in range(14):
            A(f's_cmp_eq_u32 s{DST[i]}, s{sTAG}')
            A('s_addc_u32 s15, s15, 0')
        if o.diag:
            A(f's_lshr_b32 m0, s{sNEED}, 1')
            A('s_add_u32 s24, s15, 1')
            A('v_writelane_b32 v246, s24, m0')
        A(f's_mov_b32 s{sCODE}, 0')
        for k, thr in enumerate(o.thr[:len(wins)-1]):
            A(f's_cmp_ge_u32 s15, {thr}')
            A(f's_cselect_b32 s{sCODE}, {(k+1) << 16:#x}, s{sCODE}')
        A(f's_branch {back}')
    A(f's_mov_b32 s{sNEED}, 1')
    g.L.append('.p2align 6')
    g.lab('.Lktile')
    A(f'v_add_u32 v{KAC}, s{sSLOT}, v{KA0}')
    for i in range(1, 4):
        A(f'v_xor_b32 v{KAC+i}, {i*64}, v{KAC}')
    poll_landed()
    for i in range(16):
        j, hh = i >> 1, i & 1
        A(f'ds_read_b128 {q(KV+4*i)}, v{KAC+(j&3)} offset:{hh*8192+(j>>2)*256}')
    A(f's_add_u32 s{sNEED}, s{sNEED}, 1')
    A(f's_or_b32 s15, s{sNEED}, s{sCODE}')
    A('v_mov_b32 v14, s15')
    for i in range(16):
        j, hh = i >> 1, i & 1
        A(f's_waitcnt lgkmcnt({15-i})')
        if i == 15:
            A(f'ds_write_b32 v{CONA}, v14')
        A(f'v_mfma_f32_16x16x32_bf16 {q(S+4*hh)}, {q(KV+4*i)}, {q(QF+4*j)}, {"0" if j==0 else q(S+4*hh)}')
    A(f's_add_u32 s{sSLOT}, s{sSLOT}, {SLOT:#x}')
    A(f's_cmp_eq_u32 s{sSLOT}, {NSL*SLOT:#x}')
    A(f's_cselect_b32 s{sSLOT}, 0, s{sSLOT}')
    A('s_nop 4')
    for i in range(4):
        A(f'v_cvt_pk_bf16_f32 v{T+i}, v{S+2*i}, v{S+2*i+1}')
    A('s_mov_b64 exec, s[64:65]')
    A(f'ds_write_b128 v{SCA}, {q(T)}')
    A('s_mov_b64 exec, -1')
    A(f'v_max3_f32 v14, v{S}, v{S+1}, v{S+2}')
    A(f'v_max3_f32 v15, v{S+3}, v{S+4}, v{S+5}')
    A(f'v_max3_f32 v14, v14, v{S+6}, v{S+7}')
    A(f'v_max3_f32 v{M}, v14, v15, v{M}')
    A(f'v_add_u32 v{SCA}, 128, v{SCA}')
    if ctl:
        A(f's_cmp_gt_u32 s{sNEED}, 64')
        A('s_cbranch_scc1 .Lkdone')
        control('.Lktile')
        g.lab('.Lkdone')
    else:
        A(f's_cmp_le_u32 s{sNEED}, 64')
        A('s_cbranch_scc1 .Lktile')
    A(f'v_mov_b32 v15, v{M}')
    A(f'v_subrev_u32 v{SCA}, {64*128}, v{SCA}')
    A('s_nop 0')
    A(f'v_permlane16_swap_b32 v{M}, v15')
    A(f'v_max_f32 v{M}, v{M}, v15')
    A(f'v_mov_b32 v15, v{M}')
    A('s_nop 1')
    A(f'v_permlane32_swap_b32 v{M}, v15')
    A(f'v_max_f32 v{M}, v{M}, v15')
    rbf(M)
    A(f'v_mul_f32 v{NM}, s{sC}, v{M}')

    H = TL
    g.lab('.Lhchk')
    A('s_waitcnt vmcnt(0)')
    A(f'v_perm_b32 v14, v{HV+1}, v{HV}, s46')
    A(f'v_perm_b32 v15, v{HV+3}, v{HV+2}, s47')
    A('v_xor_b32 v14, v14, v15')
    A(f'v_cmp_ne_u32 vcc, v14, v{TAG}')
    A('s_cbranch_vccz .Lhok')
    A(hload)
    A(f's_sub_u32 s{sBUD}, s{sBUD}, 64')
    A('s_cbranch_scc0 .Lhchk')
    A(f's_mov_b32 s{sBUD}, 0')
    A('s_waitcnt vmcnt(0)')
    g.lab('.Lhok')
    for r in range(4):
        A(f'v_and_b32 v{H+r}, 0xffffff00, v{HV+r}')
    for rr in (4, 8):
        for r in range(4):
            A(f'v_add_f32_dpp v{H+r}, v{H+r}, v{H+r} row_ror:{rr} {DPPM}')
    for r in range(4):
        A(f'v_mov_b32 v{H+4+r}, v{H+r}')
    A('s_nop 0')
    for r in range(4):
        A(f'v_permlane16_swap_b32 v{H+r}, v{H+4+r}')
    for r in range(4):
        A(f'v_add_f32 v{H+r}, v{H+r}, v{H+4+r}')
    for r in range(4):
        rbf(H + r)
    for r in range(4):
        A(f'v_mul_f32 v{H+4+r}, {f32(-LOG2E)}, v{H+r}')
    for r in range(4):
        A(f'v_exp_f32 v{H+4+r}, v{H+4+r}')
    A('s_nop 0')
    for r in range(4):
        A(f'v_add_f32 v{H+4+r}, 1.0, v{H+4+r}')
    for r in range(4):
        A(f'v_rcp_f32 v{H+4+r}, v{H+4+r}')
    A('s_nop 0')
    for r in range(4):
        A(f'v_mul_f32 v{H+r}, v{H+r}, v{H+4+r}')
    A(f'v_cvt_pk_bf16_f32 v{H+4}, v{H}, v{H+1}')
    A(f'v_cvt_pk_bf16_f32 v{H+5}, v{H+2}, v{H+3}')
    A('v_and_b32 v14, 1, v2')
    A('v_and_b32 v15, 1, v3')
    A('v_lshlrev_b32 v14, 3, v14')
    A('v_lshl_add_u32 v57, v15, 2, v14')
    A(f'ds_bpermute_b32 v{H+6}, v57, v{H+4}')
    A(f'ds_bpermute_b32 v{H+8}, v57, v{H+5}')
    A('s_mov_b32 s48, 0x00030003')
    A('s_mov_b32 s49, 0x00300030')
    A('s_mov_b32 s50, 0x03000300')
    A('s_mov_b32 s51, 0x30003000')
    A('v_lshl_add_u32 v14, v15, 2, v4')
    A('v_mul_u32_u24 v60, 896, v14')
    A('v_lshrrev_b32 v14, 1, v3')
    A('v_lshl_add_u32 v60, v14, 5, v60')
    A('v_lshl_add_u32 v60, v5, 3, v60')
    A('v_mul_u32_u24 v63, 3584, v15')
    A('v_add_u32 v63, v63, v60')
    A(f'v_add_u32 v63, {WOS}, v63')
    A(f'v_add_u32 v60, {W2S}, v60')
    A('s_waitcnt lgkmcnt(0)')
    A(f'v_cndmask_b32 v{HA}, 0, v{H+6}, s[48:49]')
    A(f'v_cndmask_b32 v{HA+1}, 0, v{H+8}, s[48:49]')
    A(f'v_cndmask_b32 v{HA+2}, 0, v{H+6}, s[50:51]')
    A(f'v_cndmask_b32 v{HA+3}, 0, v{H+8}, s[50:51]')
    RG = TL
    HG = TL + 16
    for i in range(4):
        A(f'v_mov_b32 v{RG+4*i+3}, v{TAG}')
        A(f'v_not_b32 v{HG+4*i+3}, v{TAG}')
    A('v_lshrrev_b32 v57, 2, v1')
    A(f'v_mul_u32_u24 v61, {YROW}, v57')
    A('v_lshlrev_b32 v57, 7, v57')
    A('v_lshl_add_u32 v57, v5, 4, v57')
    A('v_lshl_add_u32 v61, v5, 4, v61')
    A('v_lshrrev_b32 v58, 5, v1')
    A('v_mul_u32_u24 v62, 896, v58')
    A('v_lshl_add_u32 v62, v5, 1, v62')
    A('v_lshl_add_u32 v58, v58, 2, v4')
    A('v_lshlrev_b32 v58, 12, v58')
    A('v_lshl_add_u32 v58, v15, 6, v58')
    A('v_lshl_add_u32 v58, v5, 4, v58')
    A('s_lshr_b32 s4, s2, 5')
    A('s_lshl_b32 s4, s4, 16')
    A('s_and_b32 s5, s2, 31')
    A('s_lshl_b32 s5, s5, 7')
    A('s_add_u32 s4, s4, s5')
    A(f's_add_u32 s4, s4, {REC:#x}')
    A('s_add_u32 s5, s4, 0x8000')
    A('s_add_u32 s6, s4, 0x80000')
    A('s_add_u32 s7, s4, 0x88000')
    A('s_lshl_b32 s44, s2, 12')
    A(f's_add_u32 s44, s44, {REC:#x}')
    A(f's_mul_i32 s45, s2, {YROW}')
    A(f's_add_u32 s45, s45, {YB:#x}')
    A('s_add_u32 s46, s45, 0x1000')
    A('s_lshl_b32 s47, s2, 3')

    g.L.append('.p2align 6')
    g.lab('.Lvtile')
    A(f'ds_read_b128 {q(T)}, v{SCA}')
    A(f'v_add_u32 v{SCA}, 128, v{SCA}')
    A(f'v_add_u32 v{VAC}, s{sSLOT}, v{VA0}')
    for i in range(1, 8):
        A(f'v_xor_b32 v{VAC+i}, {i*32}, v{VAC}')
    A('s_waitcnt lgkmcnt(0)')
    for i in range(4):
        A(f'v_lshlrev_b32 v{S+2*i}, 16, v{T+i}')
        A(f'v_and_b32 v{S+2*i+1}, 0xffff0000, v{T+i}')
    for i in range(8):
        A(f'v_fma_f32 v{P8+i}, v{S+i}, s{sC}, -v{NM}')
    for i in range(8):
        A(f'v_exp_f32 v{P8+i}, v{P8+i}')
    A('s_nop 0')
    for i in range(4):
        A(f'v_cvt_pk_bf16_f32 v{T+i}, v{P8+2*i}, v{P8+2*i+1}')
    A(f'v_add_f32 v{LS}, v{LS}, v{P8}')
    A(f'v_add_f32 v{P8+1}, v{P8+1}, v{P8+2}')
    A(f'v_add_f32 v{P8+3}, v{P8+3}, v{P8+4}')
    A(f'v_add_f32 v{P8+5}, v{P8+5}, v{P8+6}')
    A(f'v_add_f32 v{LS}, v{LS}, v{P8+7}')
    A(f'v_add_f32 v{P8+1}, v{P8+1}, v{P8+3}')
    A(f'v_add_f32 v{LS}, v{LS}, v{P8+5}')
    A(f'v_add_f32 v{LS}, v{LS}, v{P8+1}')
    for v in range(8):
        A(f's_mov_b64 exec, s[{64+2*v}:{65+2*v}]')
        A(f'v_mov_b64 {q(PV+4*v,2)}, {q(T,2)}')
        A(f'v_mov_b64 {q(PV+4*v+2,2)}, {q(T+2,2)}')
    A('s_mov_b64 exec, -1')
    poll_landed()
    order = [(i & 1) * 8 + (i >> 1) for i in range(16)]
    def vread(i):
        m = order[i]
        for kh in range(2):
            A(f'ds_read_b64_tr_b16 {q(KV+4*i+2*kh,2)}, v{VAC+(m&7)} offset:{kh*8192+(m>>3)*256}')
    PRE = 7
    for i in range(PRE):
        vread(i)
    A(f's_add_u32 s{sNEED}, s{sNEED}, 1')
    A(f's_or_b32 s15, s{sNEED}, s{sCODE}')
    A('v_mov_b32 v14, s15')
    for i in range(16):
        issued = min(16, i + PRE)
        A(f's_waitcnt lgkmcnt({2*(issued-i-1)})')
        m = order[i]
        a = m >> 3
        if i == 15:
            A(f'ds_write_b32 v{CONA}, v14')
        A(f'v_mfma_f32_16x16x32_bf16 {q(O+4*a)}, {q(PV+4*(m&7))}, {q(KV+4*i)}, {q(O+4*a)}')
        if i + PRE < 16:
            vread(i + PRE)
    A(f's_add_u32 s{sSLOT}, s{sSLOT}, {SLOT:#x}')
    A(f's_cmp_eq_u32 s{sSLOT}, {NSL*SLOT:#x}')
    A(f's_cselect_b32 s{sSLOT}, 0, s{sSLOT}')
    if ctl:
        A(f's_cmp_gt_u32 s{sNEED}, {o.cpend}')
        A('s_cbranch_scc1 .Lvlast')
        control('.Lvtile')
        g.lab('.Lvlast')
    A(f's_cmp_le_u32 s{sNEED}, 128')
    A('s_cbranch_scc1 .Lvtile')

    g.stamp(3)
    A(f'v_mov_b32 v15, v{LS}')
    for h in range(2):
        A(f'v_mov_b32_dpp v{RG+8*h+2}, v{NM} quad_perm:[{2*h},{2*h},{2*h},{2*h}] {DPPM}')
    A(f'v_permlane16_swap_b32 v{LS}, v15')
    A(f'v_add_f32 v{LS}, v{LS}, v15')
    A(f'v_mov_b32 v15, v{LS}')
    for h in range(2):
        A(f'v_mov_b64 {q(RG+8*h,2)}, {q(O+2*h,2)}')
    A(f'v_permlane32_swap_b32 v{LS}, v15')
    A(f'v_add_f32 v{LS}, v{LS}, v15')
    for h in range(2):
        A(f'buffer_store_dwordx4 {q(RG+8*h)}, v57, {WS}, s44 offen offset:{h*2048} {o.stflags}')
    for h in range(2):
        r = RG + 8*h + 4
        A(f'v_mov_b32_dpp v{r+2}, v{LS} quad_perm:[{2*h},{2*h},{2*h},{2*h}] {DPPM}')
        A(f'v_mov_b64 {q(r,2)}, {q(O+4+2*h,2)}')
        A(f'buffer_store_dwordx4 {q(r)}, v57, {WS}, s44 offen offset:{h*2048+64} {o.stflags}')
    WF = KV
    YD = QF
    YG = PV
    def between():
        g.lab('.Lwwait')
        A(f'ds_read_b32 v14, v{LNDA}')
        A('s_waitcnt lgkmcnt(0)')
        A(f'v_readfirstlane_b32 s{sRAW}, v14')
        A(f's_cmp_ge_u32 s{sRAW}, {WDONE:#x}')
        A('s_cbranch_scc1 .Lwok')
        A('s_sleep 1')
        A(f's_sub_u32 s{sBUD}, s{sBUD}, 1')
        A('s_cbranch_scc0 .Lwwait')
        A(f's_mov_b32 s{sBUD}, 0')
        g.lab('.Lwok')
        W2F = PV
        for i in range(14):
            A(f'ds_read_b64_tr_b16 {q(W2F+2*i,2)}, v60 offset:{i*64}')
        A('s_waitcnt lgkmcnt(0)')
        for i in range(7):
            A(f'v_mfma_f32_16x16x16_bf16 {q(YD+4*i)}, {q(HA,2)}, {q(W2F+4*i,2)}, 0')
        for i in range(7):
            A(f'v_mfma_f32_16x16x16_bf16 {q(YD+4*i)}, {q(HA+2,2)}, {q(W2F+4*i+2,2)}, {q(YD+4*i)}')
        for i in range(14):
            A(f'ds_read_b64_tr_b16 {q(WF+4*i,2)}, v63 offset:{i*64}')
            A(f'ds_read_b64_tr_b16 {q(WF+4*i+2,2)}, v63 offset:{i*64+3584}')
        for i in range(7):
            A(f'v_mul_f32 v{FP+2*i}, v{OMG}, v{YD+4*i}')
            A(f'v_mul_f32 v{FP+2*i+1}, v{OMG+1}, v{YD+4*i+1}')
        for i in range(7):
            A(f'v_mov_b32 v{YG+4*i+3}, v{TAG}')
        A('s_lshl_b32 s64, s2, 6')
        A(f's_add_u32 s64, s64, {YB:#x}')
        for i in range(1, 16):
            A(f's_add_u32 s{64+i}, s64, {i*16*YROW:#x}')
    g.apoll('h1', [f'buffer_load_dwordx4 {q(HG+4*i)}, v58, {WS}, s{4+i} offen {o.ldflags}' for i in range(4)],
            [HG+4*i+3 for i in range(4)], [36, 38, 40, 42], TAG, sBUD, o.h1sleep,
            slow=(o.h1thr, o.h1slow) if o.h1slow else None, between=between)
    g.stamp(4)
    for i in range(4):
        A(f'v_mov_b32 v{16+i}, v{HG+4*i+2}')
        A(f'v_mov_b32 v{20+i}, v{HG+4*i+2}')
    for i in range(4):
        if i == 3:
            A('v_max_f32 v36, v16, v17')
        A(f'v_permlane16_swap_b32 v{16+i}, v{20+i}')
    A('v_max_f32 v37, v18, v19')
    A('s_nop 0')
    A(f'v_max_f32_dpp v36, v36, v36 row_ror:4 {DPPM}')
    A(f'v_max_f32_dpp v37, v37, v37 row_ror:4 {DPPM}')
    A('s_nop 0')
    A(f'v_max_f32_dpp v36, v36, v36 row_ror:8 {DPPM}')
    A(f'v_max_f32_dpp v37, v37, v37 row_ror:8 {DPPM}')
    A('v_mov_b32 v38, v36')
    A('v_mov_b32 v39, v37')
    A('s_nop 0')
    A('v_permlane32_swap_b32 v36, v38')
    A('v_permlane32_swap_b32 v37, v39')
    A('v_max_f32 v36, v36, v38')
    A('v_max_f32 v37, v37, v39')
    for i in range(4):
        A(f'v_sub_f32 v{40+i}, v{16+i}, v{36+(i>>1)}')
    for i in range(4):
        A(f'v_exp_f32 v{40+i}, v{40+i}')
    A('s_mov_b32 vcc_lo, 0xaaaaaaaa')
    for b in range(2):
        srcs0 = (HG+8*b, HG+8*b+1, 20+2*b)
        srcs1 = (HG+8*b+4, HG+8*b+5, 21+2*b)
        for k in range(3):
            A(f'v_mul_f32 v{44+3*b+k}, v{40+2*b}, v{srcs0[k]}')
        for k in range(3):
            A(f'v_fmac_f32 v{44+3*b+k}, v{41+2*b}, v{srcs1[k]}')
    A('s_mov_b32 vcc_hi, 0xaaaaaaaa')
    for k in range(3):
        A(f'v_permlane32_swap_b32 v{44+k}, v{47+k}')
    for k in range(3):
        A(f'v_add_f32 v{44+k}, v{44+k}, v{47+k}')
    for rr in (4, 8):
        for k in (2, 0, 1) if rr == 8 else (0, 1, 2):
            if rr == 8 and k == 2:
                A('s_nop 1')
            A(f'v_add_f32_dpp v{44+k}, v{44+k}, v{44+k} row_ror:{rr} {DPPM}')
            if rr == 8 and k == 2:
                A('v_rcp_f32 v46, v46')
    A('v_mul_f32 v44, v44, v46')
    A('v_mul_f32 v45, v45, v46')
    A('v_cvt_pk_bf16_f32 v44, v44, v45')
    A('v_mov_b32 v45, v44')
    A('s_nop 1')
    A('v_permlane32_swap_b32 v44, v45')
    A('s_nop 1')
    for nn in range(4):
        A(f'v_mov_b32_dpp v{36+nn}, v45 quad_perm:[{nn},{nn},{nn},{nn}] {DPPM}')
    for nn in range(4):
        A(f'v_cndmask_b32_dpp v{36+nn}, v44, v{36+nn}, vcc quad_perm:[{nn},{nn},{nn},{nn}] {DPPM}')
    for nn in range(4):
        A(f'v_cndmask_b32 v{48+nn}, 0, v{36+nn}, s[48:49]')
    for nn in range(4):
        A(f'v_cndmask_b32 v{52+nn}, 0, v{36+nn}, s[50:51]')
    A('s_waitcnt lgkmcnt(0)')
    seq = []
    for i in range(7):
        seq.append((i, 0))
        if i >= 1:
            seq.append((i-1, 1))
    seq.append((6, 1))
    for n, (i, e) in enumerate(seq):
        A(f'v_mfma_f32_16x16x32_bf16 {q(YD+4*i)}, {q(48+4*e)}, {q(WF+8*i+4*e)}, {"0" if e==0 else q(YD+4*i)}')
    for i in range(7):
        A(f'v_fma_f32 v{YG+4*i}, v{G0}, v{YD+4*i}, v{FP+2*i}')
        A(f'v_fma_f32 v{YG+4*i+1}, v{G0+1}, v{YD+4*i+1}, v{FP+2*i+1}')
        A(f'buffer_store_dwordx4 {q(YG+4*i)}, v56, {WS}, s{45+(i>>2)} offen offset:{(i&3)*1024} {o.stflags}')
    g.stamp(5)
    A('s_cmp_ge_u32 s2, 112')
    A('s_cbranch_scc1 .Lfin')
    for i in range(16):
        A(f'v_not_b32 v{KV+4*i+3}, v{TAG}')
    if o.h2sleep0:
        A(f's_sleep {o.h2sleep0}')
    mk = [8, 10, 12, 14, 20, 22, 24, 26, 28, 30, 32, 34, 36, 38, 40, 42]
    g.apoll('h2', [f'buffer_load_dwordx4 {q(KV+4*i)}, v61, {WS}, s{64+i} offen {o.ldflags}' for i in range(16)],
            [KV+4*i+3 for i in range(16)], mk, TAG, sBUD, o.h2sleep)
    for k in range(4):
        A(f'v_pk_add_f32 v[{36+2*k}:{37+2*k}], {q(KV+8*k,2)}, {q(KV+8*k+4,2)}')
    for k in range(4):
        A(f'v_pk_add_f32 v[{44+2*k}:{45+2*k}], {q(KV+32+8*k,2)}, {q(KV+32+8*k+4,2)}')
    for k in range(4):
        A(f'v_pk_add_f32 v[{36+2*k}:{37+2*k}], v[{36+2*k}:{37+2*k}], v[{44+2*k}:{45+2*k}]')
    A('v_pk_add_f32 v[36:37], v[36:37], v[38:39]')
    A('v_pk_add_f32 v[40:41], v[40:41], v[42:43]')
    A('v_pk_add_f32 v[36:37], v[36:37], v[40:41]')
    A('s_nop 1')
    A('v_permlane32_swap_b32 v36, v37')
    A('v_add_f32 v36, v36, v37')
    A('v_mov_b32 v37, v36')
    A('s_nop 1')
    A('v_permlane16_swap_b32 v36, v37')
    A('v_add_f32 v36, v36, v37')
    for rr in (4, 8):
        A('s_nop 1')
        A(f'v_add_f32_dpp v36, v36, v36 row_ror:{rr} {DPPM}')
    A('v_cvt_pk_bf16_f32 v36, v36, v36')
    A('s_mov_b32 exec_lo, 0xf')
    A('s_mov_b32 exec_hi, 0xf')
    A(f'buffer_store_short v36, v62, s[{sOUT}:{sOUT+3}], s47 offen')
    A('s_cmp_lg_u32 s2, 0')
    A('s_cbranch_scc1 .Lfin')
    A('s_mov_b64 exec, 1')
    A(f'buffer_store_dword v{TAG}, v59, {WS}, 0 offen')
    g.lab('.Lfin')
    if o.diag:
        g.stamp(6)
        A('s_mov_b64 exec, 1')
        A('s_lshl_b32 s4, s2, 7')
        A(f's_add_u32 s4, s4, {STAMP:#x}')
        for k in range(7):
            A(f'v_mov_b32 v14, s{86+2*k}')
            A(f'v_mov_b32 v15, s{87+2*k}')
            A(f'buffer_store_dwordx2 v[14:15], v59, {WS}, s4 offen offset:{8*k}')
            A('s_nop 1')
        A('v_mov_b32 v14, s101')
        A('v_mov_b32 v15, s87')
        A(f'buffer_store_dwordx2 v[14:15], v59, {WS}, s4 offen offset:56')
        if ctl:
            A('s_mov_b64 exec, -1')
            A('v_lshlrev_b32 v14, 2, v1')
            A('s_lshl_b32 s4, s2, 8')
            A(f's_add_u32 s4, s4, {STAMP+0x20000:#x}')
            A(f'buffer_store_dword v246, v14, {WS}, s4 offen')
    g.lab('.Lexit')
    A('s_endpgm')

    ref = open('cdna_kernels/' + NAME + '.s.ref').read().split('\n')
    head = [l for l in ref if l.startswith(';') and '@launch' not in l and 'Override launch' not in l and 'grid=ceil' not in l]
    txt = '\n'.join(head) + '\n'
    txt += f'; @launch grid=(256,1,1) block=(128,1,1) lds={LDS_BYTES}\n'
    txt += '.amdgcn_target "amdgcn-amd-amdhsa--gfx950"\n.text\n'
    txt += '\n'.join(g.L) + '\n'
    txt += f'''.section .rodata,"a"
.p2align 6
.amdhsa_kernel {K}
  .amdhsa_next_free_vgpr 256
  .amdhsa_next_free_sgpr 102
  .amdhsa_accum_offset 256
  .amdhsa_group_segment_fixed_size 0
  .amdhsa_kernarg_size 96
  .amdhsa_user_sgpr_count 2
  .amdhsa_user_sgpr_kernarg_segment_ptr 1
  .amdhsa_system_sgpr_workgroup_id_x 1
.end_amdhsa_kernel
'''
    return txt


def parser():
    p = argparse.ArgumentParser()
    il = lambda x: [int(v) for v in x.split(',') if v]
    p.add_argument('-o', default='cdna_kernels/' + NAME + '.s')
    p.add_argument('--window', type=int, default=21)
    p.add_argument('--gs', type=int, default=2)
    p.add_argument('--unit', type=int, default=8)
    p.add_argument('--idxsh', type=int, default=3)
    p.add_argument('--perm', type=il, default=[0, 2, 1, 3])
    p.add_argument('--qwait', type=int, default=2)
    p.add_argument('--cfirst', type=int, default=15)
    p.add_argument('--wk', type=il, default=[])
    p.add_argument('--w1', type=il, default=[28,28,28,28,28,28,28,24])
    p.add_argument('--icpf', type=int, default=16)
    p.add_argument('--wins', type=il, default=[])
    p.add_argument('--thr', type=il, default=[])
    p.add_argument('--c0', type=int, default=0)
    p.add_argument('--wd', type=int, default=0)
    p.add_argument('--ctlonly', action='store_true')
    p.add_argument('--cp', type=int, default=16)
    p.add_argument('--cpo', type=int, default=12)
    p.add_argument('--cpend', type=int, default=118)
    p.add_argument('--cpbeg', type=int, default=12)
    p.add_argument('--rx', type=int, default=1)
    p.add_argument('--nobr', action='store_true')
    p.add_argument('--pairskip', type=int, default=1)
    p.add_argument('--diag', action='store_true')
    p.add_argument('--prog', action='store_true')
    p.add_argument('--kflags', default='nt')
    p.add_argument('--vflags', default='nt')
    p.add_argument('--wqflags', default='nt')
    p.add_argument('--stflags', default='sc1')
    p.add_argument('--ldflags', default='sc1')
    p.add_argument('--lsleep', type=int, default=1)
    p.add_argument('--qsleep', type=int, default=6)
    p.add_argument('--h1sleep', type=int, default=0)
    p.add_argument('--h1thr', type=int, default=16)
    p.add_argument('--h1slow', type=int, default=16)
    p.add_argument('--h2sleep0', type=int, default=8)
    p.add_argument('--h2sleep', type=int, default=0)
    return p


if __name__ == '__main__':
    o = parser().parse_args()
    open(o.o, 'w').write(gen(o))
```

```python
import sys, struct, argparse

NAME = 'gated_mix__gqa_block_cached__dense_activation_silu__decode'

RING = 0
SLOT = 16384
NSL = 9
STG = RING + 8 * SLOT
W1S = RING + 7 * SLOT
W2S = RING + (128 % NSL) * SLOT
WOS = RING + (129 % NSL) * SLOT
SCB = RING + NSL * SLOT
XS = SCB + 8192
GS = XS + 2048
QS = GS + 1024
FL = QS + 1024
LDS_BYTES = FL + 512

QP = 0x20000
HP = 0x40000
FLG = 0x500000
REC = 0x100000
YB = 0x200000
YROW = 7168
WS_BYTES = 0x600000
STAMP = 0x400000
WDONE = 0x20000

def f32(x):
    return '0x%08x' % struct.unpack('<I', struct.pack('<f', x))[0]

LOG2E = 1.4426950408889634
DPPM = 'row_mask:0xf bank_mask:0xf'


class G:
    def __init__(self, o):
        self.L = []
        self.o = o
        self.uid = 0

    def A(self, s):
        self.L.append('    ' + s)

    def lab(self, s):
        self.L.append(s + ':')

    def new(self, p):
        self.uid += 1
        return f'.L{p}_{self.uid}'

    def srd(self, d, ptr, nbytes):
        A = self.A
        A(f's_mov_b32 s{d}, s{ptr}')
        A(f's_mov_b32 s{d+1}, s{ptr+1}')
        A(f's_mov_b32 s{d+2}, {nbytes:#x}')
        A(f's_mov_b32 s{d+3}, 0x20000')

    def stamp(self, k):
        if self.o.diag:
            self.A(f's_memrealtime s[{86+2*k}:{87+2*k}]')
            self.A('s_waitcnt lgkmcnt(0)')

    def apoll(self, name, loads, tagregs, masks, TAG, sBUD, sleep, slow=None, between=None):
        A = self.A
        for ld in loads:
            A(ld)
        if between:
            between()
        self.lab(f'.L{name}_loop')
        if sleep:
            A(f's_sleep {sleep}')
        for t, m in zip(tagregs, masks):
            A(f'v_cmp_ne_u32 s[{m}:{m+1}], v{t}, v{TAG}')
        A(f's_or_b64 vcc, s[{masks[0]}:{masks[0]+1}], s[{masks[1]}:{masks[1]+1}]')
        for m in masks[2:]:
            A(f's_or_b64 vcc, vcc, s[{m}:{m+1}]')
        A(f's_cbranch_scc0 .L{name}_ok')
        if self.o.pairskip and len(loads) > 4:
            for k in range(0, len(loads), 2):
                sk = self.new('sk')
                m0_, m1_ = masks[k], masks[k+1]
                A(f's_or_b64 exec, s[{m0_}:{m0_+1}], s[{m1_}:{m1_+1}]')
                A(f's_cbranch_execz {sk}')
                A(loads[k])
                A(loads[k+1])
                self.lab(sk)
        else:
            for ld, m in zip(loads, masks):
                sk = self.new('sk')
                A(f's_mov_b64 exec, s[{m}:{m+1}]')
                if not self.o.nobr:
                    A(f's_cbranch_execz {sk}')
                A(ld)
                self.lab(sk)
        A('s_mov_b64 exec, -1')
        if slow:
            thr, extra = slow
            sk = self.new('sk')
            A('s_bcnt1_i32_b64 vcc_lo, vcc')
            A(f's_cmp_le_u32 vcc_lo, {thr}')
            A(f's_cbranch_scc1 {sk}')
            A(f's_sleep {extra}')
            self.lab(sk)
        A(f's_sub_u32 s{sBUD}, s{sBUD}, 16')
        A(f's_cbranch_scc0 .L{name}_loop')
        A(f's_mov_b32 s{sBUD}, 0')
        self.lab(f'.L{name}_ok')


def q(b, n=4):
    return f'v[{b}:{b+n-1}]'


def gen(o):
    g = G(o)
    A = g.A
    W = o.window
    K = NAME + '_kernel'
    pX, pK, pV, pWQ, pWO, pW1, pW2, pG, pOUT, pWS = 36, 38, 40, 42, 44, 48, 50, 52, 54, 58

    g.L.append(f'.globl {K}\n.p2align 8\n.type {K},@function\n{K}:')
    A('s_cmp_ge_u32 s2, 256')
    A('s_cbranch_scc1 .Lexit')
    if o.diag:
        A('s_memrealtime s[30:31]')
    A('s_load_dwordx16 s[36:51], s[0:1], 0')
    A('s_load_dwordx8 s[52:59], s[0:1], 64')
    if o.icpf:
        A(f's_cmp_ge_u32 s2, {o.icpf}')
        A('s_cbranch_scc1 .Lnopf')
        A('s_getpc_b64 s[4:5]')
        g.lab('.Lpc')
        A('v_lshlrev_b32 v9, 7, v0')
        A('v_add_u32 v10, 0x4000, v9')
        A('v_min_u32 v10, .Lexit-.Lpc, v10')
        A('global_load_dword v249, v9, s[4:5]')
        A('global_load_dword v248, v10, s[4:5]')
        if len(o.wins) > 2:
            A('v_add_u32 v10, 0x8000, v9')
            A('v_min_u32 v10, .Lexit-.Lpc, v10')
            A('global_load_dword v247, v10, s[4:5]')
        g.lab('.Lnopf')
    A('v_lshrrev_b32 v1, 6, v0')
    A('v_lshlrev_b32 v8, 2, v0')
    A('v_readfirstlane_b32 s3, v1')
    A(f'v_add_u32 v8, {FL}, v8')
    A('v_mov_b32 v14, 0')
    A('ds_write_b32 v8, v14')
    A('v_and_b32 v1, 63, v0')
    A('s_cmp_lg_u32 s3, 0')
    A('s_cbranch_scc1 .Lcons')

    gs, U, sh = o.gs, o.unit, o.idxsh
    lg = gs.bit_length() - 1
    A(f's_lshr_b32 s17, s2, {sh}')
    A(f's_and_b32 s17, s17, {gs-1}')
    A(f's_lshr_b32 s18, s2, {sh+lg}')
    A(f's_lshl_b32 s18, s18, {sh}')
    if o.rx == 1:
        A('s_lshr_b32 s19, s2, 4')
        A('s_xor_b32 s19, s19, s2')
        A(f's_and_b32 s19, s19, {(1<<sh)-1}')
    elif o.rx == 2:
        A('s_lshr_b32 s19, s2, 4')
        A('s_add_u32 s19, s19, s2')
        A(f's_and_b32 s19, s19, {(1<<sh)-1}')
    elif o.rx == 3:
        A('s_lshr_b32 s19, s2, 5')
        A('s_add_u32 s19, s19, s2')
        A(f's_and_b32 s19, s19, {(1<<sh)-1}')
    else:
        A(f's_and_b32 s19, s2, {(1<<sh)-1}')
    A('s_or_b32 s18, s18, s19')
    A(f's_lshl_b32 s16, s18, {20+lg}')
    A(f's_mul_i32 s17, s17, {U*4096}')
    A('s_add_u32 s16, s16, s17')
    A('v_lshrrev_b32 v3, 5, v1')
    A('v_and_b32 v5, 31, v1')
    A('v_lshlrev_b32 v4, 1, v3')
    A('v_xor_b32 v5, v5, v4')
    A('v_lshlrev_b32 v5, 4, v5')
    A('v_lshl_add_u32 v20, v3, 9, v5')
    for i in range(1, 4):
        A(f'v_xor_b32 v{20+i}, {i*64}, v20')
    A(f'v_mov_b32 v7, {FL+256}')
    A('v_lshlrev_b32 v24, 4, v1')
    j0 = (W - 1) % 16
    lag = (W - 1) // 16 + 1
    A('s_mov_b32 s20, -7')
    A('s_mov_b32 s22, 0')
    A('s_mov_b32 s27, s16')
    A('s_mov_b32 s24, 0')
    A(f's_mov_b32 s25, {1<<22}')
    A('s_lshr_b32 s4, s2, 3')
    A('s_lshl_b32 s4, s4, 7')
    A('s_bfe_u32 s5, s2, 0x20001')
    A('s_lshl_b32 s5, s5, 5')
    A('s_add_u32 s4, s4, s5')
    A('s_and_b32 s5, s2, 1')
    A('s_lshl_b32 s5, s5, 3')
    A('s_add_u32 s4, s4, s5')
    A('s_mul_i32 s4, s4, 896')
    A('s_mul_i32 s6, s2, 7168')
    A('s_waitcnt lgkmcnt(0)')
    g.srd(8, pK, 0x10000000)
    g.srd(60, pWO, 4096 * 896)
    g.srd(64, pW2, 1792 * 896)
    if o.diag:
        g.srd(68, pWS, STAMP + 0x20000)
        A('v_mov_b32 v30, 0')
    A('s_barrier')
    spins = []
    def check(name):
        A('s_cmp_lt_i32 s24, s20')
        A(f's_cbranch_scc1 .Lspin{name}')
        g.lab(f'.Lgo{name}')
        spins.append(name)
    def body(name, wins, first=False):
        for tt in range(8):
            Wd = wins[tt]
            if not first:
                check(f'{name}{tt}')
            elif tt == 7:
                A('s_cmp_lt_i32 s24, 1')
                A('s_cbranch_scc1 .Lspinf')
                g.lab('.Lgof')
            for j in range(16):
                if j % 4 == 0:
                    k = tt * 4 + o.perm[j // 4]
                    A(f's_add_u32 m0, s22, {RING + j*1024:#x}')
                    A(f's_add_u32 s23, s16, {((k//U)*gs*U + k % U)*4096:#x}')
                if not (first and tt * 16 + j < Wd):
                    A(f's_waitcnt vmcnt({Wd-1})')
                elif j % 4 == 0:
                    A('s_nop 0')
                A(f'buffer_load_dwordx4 v{20+(j&3)}, s[8:11], s23 offen offset:{(j&3)*1024} {o.kflags} lds')
                if j == (Wd - 1) % 16:
                    if first:
                        v = tt - (Wd - 1) // 16
                        if v > 0:
                            A(f'v_mov_b32 v14, {v}')
                            A('ds_write_b32 v8, v14')
                    else:
                        A(f's_add_u32 s21, s20, {(7 if j <= 9 else 6) - (Wd - 1) // 16}')
                        A('v_mov_b32 v14, s21')
                        A('ds_write_b32 v8, v14')
                if o.prog and j == 0 and tt % 2 == 0:
                    A('s_memrealtime s[86:87]')
                if j == 12:
                    A(f's_add_u32 s22, s22, {SLOT:#x}')
                    A(f's_cmp_eq_u32 s22, {NSL*SLOT:#x}')
                    A('s_cselect_b32 s22, 0, s22')
                if j == 9:
                    if not first or tt >= 6:
                        A('ds_read_b32 v15, v7')
                    A('s_add_u32 s20, s20, 1')
                if j == 13 and tt == 7:
                    if name == 'k':
                        A('s_mov_b32 s16, s27')
                    else:
                        A(f's_add_u32 s16, s16, {16384*gs*8:#x}')
                        if not o.wk:
                            A('s_cmp_eq_u32 s20, 57')
                            A('s_cselect_b32 s16, s27, s16')
                if j == 14 and (not first or tt >= 6 or o.prog):
                    A('s_waitcnt lgkmcnt(0)')
                    if not first or tt >= 6:
                        A('v_readfirstlane_b32 s19, v15')
                        A('s_and_b32 s24, s19, 0xffff')
                if o.prog and j == 15 and tt % 2 == 1:
                    A('s_add_u32 s17, s20, 6')
                    A('s_lshr_b32 m0, s17, 1')
                    A('s_nop 0')
                    A('v_writelane_b32 v30, s86, m0')
    A(f's_mov_b32 s26, {49 if o.wk else 57}')
    body('f', o.w1 or [W] * 8, True)
    wins = [W] + o.wins
    if o.c0:
        A(f's_branch .Lload{o.c0}')
    for i, Wd in enumerate(wins):
        g.L.append('.p2align 6')
        g.lab(f'.Lload{i}')
        body(f'm{i}_', [Wd] * 8)
        A('s_cmp_ge_i32 s20, s26')
        A('s_cbranch_scc1 .Lturn')
        if i + 1 == len(wins):
            g.lab('.Lsel')
        for k in range(len(wins) - 1):
            A(f's_cmp_lt_u32 s19, {(k + 1) << 16:#x}')
            A(f's_cbranch_scc1 .Lload{k}')
        A(f's_branch .Lload{len(wins)-1}')
    g.lab('.Lturn')
    A('s_cmp_gt_i32 s20, 57')
    A('s_cbranch_scc1 .Ldrain')
    A('s_mov_b32 s26, 121')
    if o.wk:
        body('k', o.wk)
    A(f's_mov_b32 s8, s{pV}')
    A(f's_mov_b32 s9, s{pV+1}')
    A('s_branch .Lsel')
    g.lab('.Ldrain')
    NX = 23
    W = o.wd or W
    todo = list(range(128 - lag + 1, 129))
    def flag(c):
        A(f'v_mov_b32 v14, {c}')
        A('ds_write_b32 v8, v14')
        if c == 128 and o.diag:
            A('s_memrealtime s[86:87]')
    A('s_add_u32 s20, s20, 1')
    check('w')
    for e in range(NX):
        if e < 7:
            A(f's_mov_b32 m0, {W2S + e*1024}')
            A(f's_add_u32 s23, s6, {e*1024}')
            srd = 64
        else:
            k = e - 7
            a_, nn, u = k >> 3, (k >> 1) & 3, k & 1
            if k == 0:
                A('s_mov_b32 exec_hi, 0x00ffffff')
            A(f's_mov_b32 m0, {WOS + k*896}')
            A(f's_add_u32 s23, s4, {(4*a_+16*u+nn)*896}')
            srd = 60
        A(f's_waitcnt vmcnt({W-1})')
        while todo and 2048 + e >= 16 * todo[0] - 1 + W:
            flag(todo.pop(0))
        A(f'buffer_load_dwordx4 v24, s[{srd}:{srd+3}], s23 offen nt lds')
    for c in todo:
        A(f's_waitcnt vmcnt({2048 + NX - 16*c})')
        flag(c)
    A('s_waitcnt vmcnt(0)')
    A(f'v_mov_b32 v14, {WDONE + 128:#x}')
    A('ds_write_b32 v8, v14')
    if o.diag:
        A('s_waitcnt lgkmcnt(0)')
        A('v_mov_b32 v16, s86')
        A('v_mov_b32 v17, s87')
        A('v_mov_b32 v18, 0')
        A('v_mov_b32 v19, 0')
        A('s_lshl_b32 s17, s2, 7')
        A(f's_add_u32 s17, s17, {STAMP+64:#x}')
        A('s_mov_b64 exec, 1')
        A('buffer_store_dwordx4 v[16:19], v19, s[68:71], s17 offen')
        A('s_mov_b64 exec, -1')
        A('v_lshlrev_b32 v19, 2, v1')
        A('s_lshl_b32 s17, s2, 8')
        A(f's_add_u32 s17, s17, {STAMP+0x10000:#x}')
        A('buffer_store_dword v30, v19, s[68:71], s17 offen')
    A('s_endpgm')
    for tt in spins + ['f']:
        g.lab(f'.Lspin{tt}')
        A('ds_read_b32 v15, v7')
        A('s_waitcnt lgkmcnt(0)')
        A('v_readfirstlane_b32 s24, v15')
        A('s_and_b32 s24, s24, 0xffff')
        A('s_cmp_ge_i32 s24, 1' if tt == 'f' else 's_cmp_ge_i32 s24, s20')
        A(f's_cbranch_scc1 .Lgo{tt}')
        A('s_sleep 1')
        A('s_sub_u32 s25, s25, 1')
        A(f's_cbranch_scc0 .Lspin{tt}')
        A('s_mov_b32 s25, 0')
        A(f's_branch .Lgo{tt}')

    sX, sWQ, sWS, sW1, sG, sOUT = 8, 12, 16, 24, 32, 60
    TAG, LNDA, CONA, KA0, VA0, M, NM, LS = 6, 7, 8, 9, 10, 11, 12, 13
    KAC, VAC, O, S, T, P8 = 16, 20, 28, 36, 44, 48
    KV, QF, PV, FP, G0, TL = 64, 128, 160, 192, 206, 208
    HV = 240
    HA = 250
    OMG = 254
    sT, sSLOT, sLND, sC, sNEED, sBUD = 81, 82, 83, 84, 85, 80
    sRAW = 100
    WS = f's[{sWS}:{sWS+3}]'
    g.L.append('.p2align 6')
    g.lab('.Lcons')
    A('v_lshlrev_b32 v56, 4, v1')
    A('v_lshrrev_b32 v58, 3, v1')
    A('v_and_b32 v59, 7, v1')
    A('v_lshlrev_b32 v57, 13, v58')
    A('v_lshl_add_u32 v57, v59, 4, v57')
    A('v_mul_u32_u24 v58, 3584, v58')
    A('v_lshl_add_u32 v58, v59, 4, v58')
    A('v_mov_b32 v59, 0')
    A('v_and_b32 v2, 15, v1')
    A('v_lshrrev_b32 v3, 4, v1')
    A('v_bfe_u32 v4, v1, 2, 2')
    A('v_and_b32 v5, 3, v1')
    A('s_and_b32 s4, s2, 3')
    A(f's_mul_i32 s5, s4, {112*8192}')
    A('s_lshr_b32 s6, s2, 2')
    A('s_lshl_b32 s6, s6, 7')
    A('s_add_u32 s5, s5, s6')
    A('s_and_b32 s20, s2, 7')
    A(f's_mul_i32 s21, s20, {56*3584}')
    A('s_lshr_b32 s22, s2, 3')
    A('s_lshl_b32 s23, s22, 7')
    A('s_add_u32 s21, s21, s23')
    A('s_cmp_lt_u32 s2, 224')
    A('s_cselect_b32 s21, s21, 0x200000')
    A('s_waitcnt lgkmcnt(0)')
    g.srd(sWS, pWS, WS_BYTES)
    g.srd(sX, pX, 1792)
    g.srd(sWQ, pWQ, 448 * 8192)
    if o.cfirst < 0:
        A('s_barrier')
    g.stamp(0)
    if o.diag:
        A('s_mov_b32 s101, s30')
    A(f'buffer_load_dword v{TAG}, v59, {WS}, 0 offen')
    A(f's_mov_b32 m0, {XS}')
    A('s_nop 0')
    A(f'buffer_load_dwordx4 v56, s[{sX}:{sX+3}], 0 offen lds')
    A(f'buffer_load_dwordx4 v56, s[{sX}:{sX+3}], 0 offen offset:1024 lds')
    for t in range(14):
        if o.cfirst == t:
            A('s_barrier')
        A(f's_mov_b32 m0, {STG + t*1024}')
        A(f's_add_u32 s6, s5, {t*65536:#x}')
        A(f'buffer_load_dwordx4 v57, s[{sWQ}:{sWQ+3}], s6 offen {o.wqflags} lds')
    if o.cfirst == 14:
        A('s_barrier')
    g.srd(sW1, pW1, 448 * 3584)
    g.srd(sG, pG, 896)
    A(f's_mov_b32 m0, {GS}')
    g.srd(sOUT, pOUT, 1792)
    A(f'buffer_load_dwordx4 v56, s[{sG}:{sG+3}], 0 offen lds')
    for t in range(8):
        A(f's_mov_b32 m0, {W1S + t*1024}')
        if t < 7:
            A(f's_add_u32 s6, s21, {t*8*3584:#x}')
        else:
            A('s_mov_b32 s6, 0x200000')
        A(f'buffer_load_dwordx4 v58, s[{sW1}:{sW1+3}], s6 offen nt lds')
    if o.cfirst > 14:
        A('s_barrier')
    NW1 = 9
    A('v_and_b32 v58, 1, v2')
    A('v_mul_u32_u24 v60, 896, v58')
    A('v_lshl_add_u32 v60, v3, 4, v60')
    A(f'v_add_u32 v60, {XS}, v60')
    A('v_lshl_add_u32 v61, v3, 3, v4')
    A('v_lshlrev_b32 v61, 7, v61')
    A('v_lshl_add_u32 v61, v5, 3, v61')
    A(f'v_add_u32 v51, {W1S}, v61')
    A(f'v_add_u32 v61, {STG}, v61')
    A('v_lshl_add_u32 v63, v3, 2, v4')
    A('v_lshlrev_b32 v63, 7, v63')
    A('v_lshl_add_u32 v63, v5, 3, v63')
    A(f'v_add_u32 v63, {STG+96*128}, v63')
    A('s_mul_i32 s6, s4, 224')
    A('v_add_u32 v57, s6, v60')
    A('v_lshlrev_b32 v55, 3, v3')
    A('v_sub_u32 v55, v57, v55')
    A('s_mul_i32 s6, s20, 112')
    A('v_add_u32 v54, s6, v60')
    A('v_lshlrev_b32 v62, 16, v58')
    A('v_bfe_u32 v14, v2, 1, 2')
    A('v_lshl_add_u32 v62, v14, 6, v62')
    A('v_lshl_add_u32 v62, v3, 4, v62')
    A('v_lshlrev_b32 v53, 7, v14')
    A('v_lshl_add_u32 v53, v58, 5, v53')
    A('v_lshrrev_b32 v14, 1, v3')
    A('v_lshl_add_u32 v53, v14, 6, v53')
    A('v_and_b32 v14, 1, v3')
    A('v_lshl_add_u32 v53, v14, 4, v53')
    A(f'v_bfe_u32 v{HV+4}, v1, 2, 3')
    A(f'v_lshlrev_b32 v{HV+4}, 9, v{HV+4}')
    A(f'v_lshl_add_u32 v{HV+4}, v5, 4, v{HV+4}')
    A('v_and_b32 v14, 7, v2')
    A('v_lshlrev_b32 v14, 1, v14')
    A('v_xor_b32 v14, v14, v3')
    A('v_lshlrev_b32 v14, 4, v14')
    A(f'v_lshl_add_u32 v{KA0}, v2, 9, v14')
    A('v_lshl_add_u32 v14, v3, 2, v4')
    A('v_and_b32 v15, 7, v14')
    A('v_lshlrev_b32 v15, 5, v15')
    A('v_lshl_add_u32 v15, v5, 3, v15')
    A(f'v_lshl_add_u32 v{VA0}, v14, 9, v15')
    A(f'v_mov_b32 v{LNDA}, {FL}')
    for v in range(8):
        qq, u = v >> 1, v & 1
        m16 = (1 << (4*qq+u)) | (1 << (4*qq+u+2))
        m32 = m16 | (m16 << 16)
        A(f's_mov_b32 s{64+2*v}, {m32:#x}')
        A(f's_mov_b32 s{65+2*v}, {m32:#x}')
    A(f's_mov_b32 s{sC}, {f32(0.0625*LOG2E)}')
    A(f's_mov_b32 s{sBUD}, {1<<22}')
    A(f's_mov_b32 s{sLND}, 0')
    A(f's_mov_b32 s{sSLOT}, 0')
    A('s_mov_b32 s7, 1664525')
    A('s_lshr_b32 s5, s2, 5')
    A('s_lshl_b32 s5, s5, 13')
    A('s_lshl_b32 s4, s4, 11')
    A('s_add_u32 s5, s5, s4')
    A('s_bfe_u32 s4, s2, 0x30002')
    A('s_lshl_b32 s4, s4, 8')
    A('s_add_u32 s5, s5, s4')
    A(f's_add_u32 s5, s5, {QP:#x}')
    A('s_lshr_b32 s6, s2, 4')
    A('s_lshl_b32 s6, s6, 13')
    A(f's_add_u32 s6, s6, {QP:#x}')
    A('s_add_u32 s4, s6, 0x1000')
    A('s_lshl_b32 s21, s2, 9')
    A(f's_add_u32 s21, s21, {HP:#x}')
    A('s_lshl_b32 s22, s22, 12')
    A('s_lshl_b32 s20, s20, 6')
    A('s_add_u32 s22, s22, s20')
    A(f's_add_u32 s22, s22, {HP:#x}')
    for c in range(1, 4):
        m16 = (3 << (2*c)) | (3 << (2*c+8))
        A(f's_mov_b32 s{34+2*c}, {m16 | (m16 << 16):#x}')
        A(f's_mov_b32 s{35+2*c}, {m16 | (m16 << 16):#x}')
    for k in range(4):
        A(f's_mov_b32 s{42+k}, {0x07060500 + k:#x}')
    A('s_mov_b32 s46, 0x0c0c0400')
    A('s_mov_b32 s47, 0x04000c0c')

    def publish(D, dst, voff, soff):
        for c in range(1, 4):
            for r in range(4):
                A(f'v_cndmask_b32 v{D+r}, v{D+r}, v{D+4*c+r}, s[{34+2*c}:{35+2*c}]')
        for r in range(4):
            A(f'v_add_u32 v{D+r}, 0x80, v{D+r}')
        A('s_mov_b32 exec_lo, 0x00ff00ff')
        A('s_mov_b32 exec_hi, 0x00ff00ff')
        for r in range(4):
            A(f'v_perm_b32 v{dst+r}, v{D+r}, v{TAG}, s{42+r}')
        A(f'buffer_store_dwordx4 {q(dst)}, v{voff}, {WS}, s{soff} offen {o.stflags}')
        A('s_mov_b64 exec, -1')

    def rbf(r):
        A(f'v_cvt_pk_bf16_f32 v{r}, v{r}, v{r}')
        A(f'v_and_b32 v{r}, 0xffff0000, v{r}')

    XF, AF, QD = 64, 128, 80
    A(f's_waitcnt vmcnt({14+NW1})')
    A(f'v_mul_lo_u32 v{TAG}, v{TAG}, s7')
    for t in range(3):
        A(f'ds_read_b128 {q(XF+4*t)}, v57 offset:{t*64}')
    A(f'ds_read_b64 {q(XF+12,2)}, v55 offset:192')
    A(f'v_add_u32 v{TAG}, 1013904223, v{TAG}')
    def qm(t):
        for c in range(4):
            if t < 3:
                A(f'v_mfma_f32_16x16x32_bf16 {q(QD+4*c)}, {q(AF+16*t+4*c)}, {q(XF+4*t)}, {"0" if t==0 else q(QD+4*c)}')
            else:
                A(f'v_mfma_f32_16x16x16_bf16 {q(QD+4*c)}, {q(AF+48+2*c,2)}, {q(XF+12,2)}, {q(QD+4*c)}')
    for t in range(4):
        A(f's_waitcnt vmcnt({max(0, 10-4*t)+NW1})')
        for c in range(4):
            if t < 3:
                A(f'ds_read_b64_tr_b16 {q(AF+16*t+4*c,2)}, v61 offset:{t*4096+c*32}')
                A(f'ds_read_b64_tr_b16 {q(AF+16*t+4*c+2,2)}, v61 offset:{t*4096+c*32+512}')
            else:
                A(f'ds_read_b64_tr_b16 {q(AF+48+2*c,2)}, v63 offset:{c*32}')
        if t >= 1:
            A(f's_waitcnt lgkmcnt({8 if t < 3 else 4})')
            qm(t-1)
    A('s_waitcnt lgkmcnt(0)')
    qm(3)
    A('s_nop 5')
    publish(QD, T, 62, 5)
    g.stamp(1)
    for i in range(8):
        A(f'v_mov_b32 v{O+i}, 0')
    for i in range(32):
        A(f'v_mov_b32 v{PV+i}, 0')
    A(f'v_mov_b32 v{M}, 0xff7fffff')
    A(f'v_mov_b32 v{LS}, 0')
    A('v_lshlrev_b32 v57, 3, v1')
    A(f'v_add_u32 v57, {QS}, v57')
    A('v_bfe_u32 v58, v2, 1, 1')
    SCA = 245
    A(f'v_lshlrev_b32 v{SCA}, 6, v58')
    A(f'v_lshl_add_u32 v{SCA}, v3, 4, v{SCA}')
    A(f'v_add_u32 v{SCA}, {SCB}, v{SCA}')
    A('v_lshlrev_b32 v58, 9, v58')
    A('v_lshl_add_u32 v58, v3, 4, v58')
    A(f'v_add_u32 v58, {QS}, v58')

    def poll_landed():
        d = g.new('pd')
        sp = g.new('ps')
        A(f's_cmp_ge_u32 s{sLND}, s{sNEED}')
        A(f's_cbranch_scc1 {d}')
        g.lab(sp)
        A(f'ds_read_b32 v14, v{LNDA}')
        A('s_waitcnt lgkmcnt(0)')
        A(f'v_readfirstlane_b32 s{sLND}, v14')
        A(f's_cmp_ge_u32 s{sLND}, s{sNEED}')
        A(f's_cbranch_scc1 {d}')
        if o.lsleep:
            A(f's_sleep {o.lsleep}')
        A(f's_sub_u32 s{sBUD}, s{sBUD}, 1')
        A(f's_cbranch_scc0 {sp}')
        A(f's_mov_b32 s{sBUD}, 0')
        g.lab(d)

    hload = f'buffer_load_dwordx4 {q(HV)}, v{HV+4}, {WS}, s22 offen {o.ldflags}'
    def qloads():
        for i in range(8):
            A(f'buffer_load_dwordx4 {q(KV+4*i)}, v56, {WS}, s{6 if i < 4 else 4} offen offset:{(i&3)*1024} {o.ldflags}')
    A('s_waitcnt vmcnt(1)')
    A(f's_mov_b32 s{sNEED}, {o.qwait}')
    poll_landed()
    qloads()
    HD = 104
    for t in range(2):
        A(f'ds_read_b128 {q(96+4*t)}, v54 offset:{t*64}')
    for t in range(2):
        for c in range(4):
            A(f'ds_read_b64_tr_b16 {q(AF+16*t+4*c,2)}, v51 offset:{t*4096+c*32}')
            A(f'ds_read_b64_tr_b16 {q(AF+16*t+4*c+2,2)}, v51 offset:{t*4096+c*32+512}')
    A(f'v_add_u32 v52, {GS}, v56')
    A(f'ds_read_b128 {q(TL)}, v52')
    A(f'v_add_u32 v52, {XS}, v56')
    A(f'ds_read_b128 {q(TL+4)}, v52')
    A(f'ds_read_b128 {q(TL+8)}, v52 offset:896')
    A(f'v_mov_b32 v14, {(o.c0 << 16) + 1:#x}')
    A('s_waitcnt lgkmcnt(3)')
    A(f'ds_write_b32 v{CONA}, v14')
    for t in range(2):
        for c in range(4):
            A(f'v_mfma_f32_16x16x32_bf16 {q(HD+4*c)}, {q(AF+16*t+4*c)}, {q(96+4*t)}, {"0" if t==0 else q(HD+4*c)}')
    A('s_nop 5')
    publish(HD, 120, 53, 21)
    A('s_waitcnt lgkmcnt(0)')
    for b in range(2):
        acc = TL + 12 + b
        for d in range(4):
            A(f'v_lshlrev_b32 v{TL+16}, 16, v{TL+d}')
            A(f'v_and_b32 v{TL+17}, 0xffff0000, v{TL+d}')
            A(f'v_lshlrev_b32 v{TL+18}, 16, v{TL+4+4*b+d}')
            A(f'v_and_b32 v{TL+19}, 0xffff0000, v{TL+4+4*b+d}')
            A(f'v_mul_f32 v{TL+16}, v{TL+16}, v{TL+18}')
            A(f'v_mul_f32 v{TL+17}, v{TL+17}, v{TL+19}')
            A(f'v_cvt_pk_bf16_f32 v{TL+18}, v{TL+16}, v{TL+17}')
            A(f'v_lshlrev_b32 v{TL+16}, 16, v{TL+18}')
            A(f'v_and_b32 v{TL+17}, 0xffff0000, v{TL+18}')
            if d == 0:
                A(f'v_add_f32 v{acc}, v{TL+16}, v{TL+17}')
            else:
                A(f'v_add_f32 v{acc}, v{acc}, v{TL+16}')
                A(f'v_add_f32 v{acc}, v{acc}, v{TL+17}')
    Z = TL + 12
    A('s_nop 1')
    A(f'v_permlane32_swap_b32 v{Z}, v{Z+1}')
    A(f'v_add_f32 v{Z}, v{Z}, v{Z+1}')
    A(f'v_mov_b32 v{Z+1}, v{Z}')
    A('s_nop 1')
    A(f'v_permlane16_swap_b32 v{Z}, v{Z+1}')
    A(f'v_add_f32 v{Z}, v{Z}, v{Z+1}')
    for rr in (8, 4, 2, 1):
        A('s_nop 1')
        A(f'v_add_f32_dpp v{Z}, v{Z}, v{Z} row_ror:{rr} {DPPM}')
    rbf(Z)
    A(f'v_mul_f32 v{Z}, {f32(-LOG2E)}, v{Z}')
    A(f'v_exp_f32 v{Z}, v{Z}')
    A('s_nop 0')
    A(f'v_add_f32 v{Z}, 1.0, v{Z}')
    A(f'v_rcp_f32 v{G0}, v{Z}')
    A('s_nop 0')
    rbf(G0)
    A(f'v_sub_f32 v{OMG}, 1.0, v{G0}')
    rbf(OMG)
    A(f'v_mov_b32 v{G0+1}, v{G0}')
    A(f'v_mov_b32 v{OMG+1}, v{OMG}')
    A('s_nop 1')
    A(f'v_permlane32_swap_b32 v{G0}, v{G0+1}')
    A(f'v_permlane32_swap_b32 v{OMG}, v{OMG+1}')
    g.lab('.Lqchk')
    for i in range(8):
        A(f's_waitcnt vmcnt({8-i})')
        A(f'v_perm_b32 v14, v{KV+4*i+1}, v{KV+4*i}, s46')
        A(f'v_perm_b32 v15, v{KV+4*i+3}, v{KV+4*i+2}, s47')
        for r in range(4):
            A(f'v_and_b32 v{KV+4*i+r}, 0xffffff00, v{KV+4*i+r}')
        A(f'v_xor_b32 v14, v14, v{TAG}')
        if i == 0:
            A('v_xor_b32 v36, v14, v15')
        else:
            A('v_xor_b32 v14, v14, v15')
            A('v_or_b32 v36, v36, v14')
        if i >= 2:
            h = i & 1
            A(f'v_pk_add_f32 {q(KV+4*h,2)}, {q(KV+4*h,2)}, {q(KV+4*i,2)}')
            A(f'v_pk_add_f32 {q(KV+4*h+2,2)}, {q(KV+4*h+2,2)}, {q(KV+4*i+2,2)}')
    A('v_cmp_ne_u32 vcc, 0, v36')
    A('s_cbranch_vccz .Lqok')
    A(f's_sleep {o.qsleep}')
    qloads()
    A(hload)
    A(f's_sub_u32 s{sBUD}, s{sBUD}, 64')
    A('s_cbranch_scc0 .Lqchk')
    A(f's_mov_b32 s{sBUD}, 0')
    A('s_waitcnt vmcnt(0)')
    g.lab('.Lqok')
    for h in range(2):
        A(f'v_cvt_pk_bf16_f32 v{T+2*h}, v{KV+4*h}, v{KV+4*h+1}')
        A(f'v_cvt_pk_bf16_f32 v{T+2*h+1}, v{KV+4*h+2}, v{KV+4*h+3}')
    A(f'ds_write_b64 v57, {q(T,2)}')
    A(f'ds_write_b64 v57, {q(T+2,2)} offset:512')
    A(hload)
    A('s_waitcnt lgkmcnt(0)')
    for j in range(8):
        A(f'ds_read_b128 {q(QF+4*j)}, v58 offset:{j*64}')
    g.stamp(2)

    ctl = len(wins) > 1 or o.ctlonly
    sCODE, sTAG, sFO = 23, 20, 21
    A(f's_mov_b32 s{sCODE}, {o.c0 << 16:#x}')
    if ctl:
        A(f'v_readfirstlane_b32 s{sTAG}, v{TAG}')
        if o.diag:
            A('v_mov_b32 v246, 0')
        for i in range(1, 8):
            A(f's_add_u32 s{7+i}, s2, {i}')
            A(f's_and_b32 s{7+i}, s{7+i}, 7')
            A(f's_lshl_b32 s{7+i}, s{7+i}, 8')
        A('s_lshr_b32 s15, s2, 4')
        A('s_lshl_b32 s15, s15, 12')
        A(f's_add_u32 s15, s15, {FLG:#x}')
        A(f's_add_u32 s52, s{pWS}, s15')
        A(f's_addc_u32 s53, s{pWS+1}, 0')
        A('s_add_u32 s54, s52, 0x800')
        A('s_addc_u32 s55, s53, 0')
        assert len(o.cps) <= 16
        cm = sum(1 << c for c in o.cps)
        for i in range(4):
            A(f's_mov_b32 s{36+i}, {(cm >> (32*i)) & 0xffffffff:#x}')
        A(f's_lshl_b32 s{sFO}, s2, 8')
        A(f's_add_u32 s{sFO}, s{sFO}, {FLG:#x}')
    DST = [24, 25, 26, 27, 28, 29, 30, 31, 32, 33, 34, 35, 56, 57]
    def control(back):
        half = 0 if back == '.Lktile' else 1
        mask = sum(1 << (c - 64 * half) for c in o.cps if 64 * half <= c < 64 * half + 64)
        A(f's_bitcmp0_b64 s[{36+2*half}:{37+2*half}], s{sNEED}')
        A(f's_cbranch_scc1 {back}')
        for i in range(o.np):
            if o.np == 14:
                A(f's_load_dword s{DST[i]}, s[{52+2*(i&1)}:{53+2*(i&1)}], s{8+(i>>1)}')
            else:
                A(f's_load_dword s{DST[i]}, s[52:53], s{8+i}')
        if o.np == 7:
            sk = g.new('sk')
            A('s_bitcmp1_b32 s2, 3')
            A(f's_cbranch_scc1 {sk}')
        A('s_mov_b64 exec, 1')
        A(f'buffer_store_dword v{TAG}, v59, {WS}, s{sFO} offen {o.stflags}')
        A('s_mov_b64 exec, -1')
        if o.np == 7:
            g.lab(sk)
        A(f's_add_u32 s{sFO}, s{sFO}, 0x10000')
        A('s_mov_b32 s15, 0')
        A('s_waitcnt lgkmcnt(0)')
        A('s_add_u32 s52, s52, 0x10000')
        A('s_addc_u32 s53, s53, 0')
        A('s_add_u32 s54, s54, 0x10000')
        A('s_addc_u32 s55, s55, 0')
        for i in range(o.np):
            A(f's_cmp_eq_u32 s{DST[i]}, s{sTAG}')
            A('s_addc_u32 s15, s15, 0')
        if o.diag:
            A(f's_lshr_b32 m0, s{sNEED}, 1')
            A('s_add_u32 s24, s15, 1')
            A('v_writelane_b32 v246, s24, m0')
        A(f's_mov_b32 s{sCODE}, 0')
        if half and o.thr2:
            sk = g.new('sk')
            A(f's_cmp_lt_u32 s{sNEED}, {o.late}')
            A(f's_cbranch_scc1 {sk}')
            for k, thr in enumerate(o.thr2[:len(wins)-1]):
                A(f's_cmp_ge_u32 s15, {thr}')
                A(f's_cselect_b32 s{sCODE}, {(k+1) << 16:#x}, s{sCODE}')
            A(f's_branch {back}')
            g.lab(sk)
        for k, thr in enumerate(o.thr[:len(wins)-1]):
            A(f's_cmp_ge_u32 s15, {thr}')
            A(f's_cselect_b32 s{sCODE}, {(k+1) << 16:#x}, s{sCODE}')
        A(f's_branch {back}')
    A(f's_mov_b32 s{sNEED}, 1')
    g.L.append('.p2align 6')
    g.lab('.Lktile')
    A(f'v_add_u32 v{KAC}, s{sSLOT}, v{KA0}')
    for i in range(1, 4):
        A(f'v_xor_b32 v{KAC+i}, {i*64}, v{KAC}')
    poll_landed()
    for i in range(16):
        j, hh = i >> 1, i & 1
        A(f'ds_read_b128 {q(KV+4*i)}, v{KAC+(j&3)} offset:{hh*8192+(j>>2)*256}')
    A(f's_add_u32 s{sNEED}, s{sNEED}, 1')
    A(f's_or_b32 s15, s{sNEED}, s{sCODE}')
    A('v_mov_b32 v14, s15')
    for i in range(16):
        j, hh = i >> 1, i & 1
        A(f's_waitcnt lgkmcnt({15-i})')
        if i == 15:
            A(f'ds_write_b32 v{CONA}, v14')
        A(f'v_mfma_f32_16x16x32_bf16 {q(S+4*hh)}, {q(KV+4*i)}, {q(QF+4*j)}, {"0" if j==0 else q(S+4*hh)}')
    A(f's_add_u32 s{sSLOT}, s{sSLOT}, {SLOT:#x}')
    A(f's_cmp_eq_u32 s{sSLOT}, {NSL*SLOT:#x}')
    A(f's_cselect_b32 s{sSLOT}, 0, s{sSLOT}')
    A('s_nop 4')
    for i in range(4):
        A(f'v_cvt_pk_bf16_f32 v{T+i}, v{S+2*i}, v{S+2*i+1}')
    A('s_mov_b64 exec, s[64:65]')
    A(f'ds_write_b128 v{SCA}, {q(T)}')
    A('s_mov_b64 exec, -1')
    A(f'v_max3_f32 v14, v{S}, v{S+1}, v{S+2}')
    A(f'v_max3_f32 v15, v{S+3}, v{S+4}, v{S+5}')
    A(f'v_max3_f32 v14, v14, v{S+6}, v{S+7}')
    A(f'v_max3_f32 v{M}, v14, v15, v{M}')
    A(f'v_add_u32 v{SCA}, 128, v{SCA}')
    if ctl:
        A(f's_cmp_gt_u32 s{sNEED}, 64')
        A('s_cbranch_scc1 .Lkdone')
        control('.Lktile')
        g.lab('.Lkdone')
    else:
        A(f's_cmp_le_u32 s{sNEED}, 64')
        A('s_cbranch_scc1 .Lktile')
    A(f'v_mov_b32 v15, v{M}')
    A(f'v_subrev_u32 v{SCA}, {64*128}, v{SCA}')
    A('s_nop 0')
    A(f'v_permlane16_swap_b32 v{M}, v15')
    A(f'v_max_f32 v{M}, v{M}, v15')
    A(f'v_mov_b32 v15, v{M}')
    A('s_nop 1')
    A(f'v_permlane32_swap_b32 v{M}, v15')
    A(f'v_max_f32 v{M}, v{M}, v15')
    rbf(M)
    A(f'v_mul_f32 v{NM}, s{sC}, v{M}')

    H = TL
    g.lab('.Lhchk')
    A('s_waitcnt vmcnt(0)')
    A(f'v_perm_b32 v14, v{HV+1}, v{HV}, s46')
    A(f'v_perm_b32 v15, v{HV+3}, v{HV+2}, s47')
    A('v_xor_b32 v14, v14, v15')
    A(f'v_cmp_ne_u32 vcc, v14, v{TAG}')
    A('s_cbranch_vccz .Lhok')
    A(hload)
    A(f's_sub_u32 s{sBUD}, s{sBUD}, 64')
    A('s_cbranch_scc0 .Lhchk')
    A(f's_mov_b32 s{sBUD}, 0')
    A('s_waitcnt vmcnt(0)')
    g.lab('.Lhok')
    for r in range(4):
        A(f'v_and_b32 v{H+r}, 0xffffff00, v{HV+r}')
    for rr in (4, 8):
        for r in range(4):
            A(f'v_add_f32_dpp v{H+r}, v{H+r}, v{H+r} row_ror:{rr} {DPPM}')
    for r in range(4):
        A(f'v_mov_b32 v{H+4+r}, v{H+r}')
    A('s_nop 0')
    for r in range(4):
        A(f'v_permlane16_swap_b32 v{H+r}, v{H+4+r}')
    for r in range(4):
        A(f'v_add_f32 v{H+r}, v{H+r}, v{H+4+r}')
    for r in range(4):
        rbf(H + r)
    for r in range(4):
        A(f'v_mul_f32 v{H+4+r}, {f32(-LOG2E)}, v{H+r}')
    for r in range(4):
        A(f'v_exp_f32 v{H+4+r}, v{H+4+r}')
    A('s_nop 0')
    for r in range(4):
        A(f'v_add_f32 v{H+4+r}, 1.0, v{H+4+r}')
    for r in range(4):
        A(f'v_rcp_f32 v{H+4+r}, v{H+4+r}')
    A('s_nop 0')
    for r in range(4):
        A(f'v_mul_f32 v{H+r}, v{H+r}, v{H+4+r}')
    A(f'v_cvt_pk_bf16_f32 v{H+4}, v{H}, v{H+1}')
    A(f'v_cvt_pk_bf16_f32 v{H+5}, v{H+2}, v{H+3}')
    A('v_and_b32 v14, 1, v2')
    A('v_and_b32 v15, 1, v3')
    A('v_lshlrev_b32 v14, 3, v14')
    A('v_lshl_add_u32 v57, v15, 2, v14')
    A(f'ds_bpermute_b32 v{H+6}, v57, v{H+4}')
    A(f'ds_bpermute_b32 v{H+8}, v57, v{H+5}')
    A('s_mov_b32 s48, 0x00030003')
    A('s_mov_b32 s49, 0x00300030')
    A('s_mov_b32 s50, 0x03000300')
    A('s_mov_b32 s51, 0x30003000')
    A('v_lshl_add_u32 v14, v15, 2, v4')
    A('v_mul_u32_u24 v60, 896, v14')
    A('v_lshrrev_b32 v14, 1, v3')
    A('v_lshl_add_u32 v60, v14, 5, v60')
    A('v_lshl_add_u32 v60, v5, 3, v60')
    A('v_mul_u32_u24 v63, 3584, v15')
    A('v_add_u32 v63, v63, v60')
    A(f'v_add_u32 v63, {WOS}, v63')
    A(f'v_add_u32 v60, {W2S}, v60')
    A('s_waitcnt lgkmcnt(0)')
    A(f'v_cndmask_b32 v{HA}, 0, v{H+6}, s[48:49]')
    A(f'v_cndmask_b32 v{HA+1}, 0, v{H+8}, s[48:49]')
    A(f'v_cndmask_b32 v{HA+2}, 0, v{H+6}, s[50:51]')
    A(f'v_cndmask_b32 v{HA+3}, 0, v{H+8}, s[50:51]')
    RG = TL
    HG = TL + 16
    for i in range(4):
        A(f'v_mov_b32 v{RG+4*i+3}, v{TAG}')
        A(f'v_not_b32 v{HG+4*i+3}, v{TAG}')
    A('v_lshrrev_b32 v57, 2, v1')
    A(f'v_mul_u32_u24 v61, {YROW}, v57')
    A('v_lshlrev_b32 v57, 7, v57')
    A('v_lshl_add_u32 v57, v5, 4, v57')
    A('v_lshl_add_u32 v61, v5, 4, v61')
    A('v_lshrrev_b32 v58, 5, v1')
    A('v_mul_u32_u24 v62, 896, v58')
    A('v_lshl_add_u32 v62, v5, 1, v62')
    A('v_lshl_add_u32 v58, v58, 2, v4')
    A('v_lshlrev_b32 v58, 12, v58')
    A('v_lshl_add_u32 v58, v15, 6, v58')
    A('v_lshl_add_u32 v58, v5, 4, v58')
    A('s_lshr_b32 s4, s2, 5')
    A('s_lshl_b32 s4, s4, 16')
    A('s_and_b32 s5, s2, 31')
    A('s_lshl_b32 s5, s5, 7')
    A('s_add_u32 s4, s4, s5')
    A(f's_add_u32 s4, s4, {REC:#x}')
    A('s_add_u32 s5, s4, 0x8000')
    A('s_add_u32 s6, s4, 0x80000')
    A('s_add_u32 s7, s4, 0x88000')
    A('s_lshl_b32 s44, s2, 12')
    A(f's_add_u32 s44, s44, {REC:#x}')
    A(f's_mul_i32 s45, s2, {YROW}')
    A(f's_add_u32 s45, s45, {YB:#x}')
    A('s_add_u32 s46, s45, 0x1000')
    if o.rpair:
        A('s_andn2_b32 s47, s2, 15')
        A('s_and_b32 s43, s2, 7')
        A('s_lshl_b32 s43, s43, 1')
        A('s_or_b32 s47, s47, s43')
        A('s_bfe_u32 s43, s2, 0x10003')
        A('s_or_b32 s47, s47, s43')
        A('s_lshl_b32 s47, s47, 3')
    else:
        A('s_lshl_b32 s47, s2, 3')

    g.L.append('.p2align 6')
    g.lab('.Lvtile')
    A(f'ds_read_b128 {q(T)}, v{SCA}')
    A(f'v_add_u32 v{SCA}, 128, v{SCA}')
    A(f'v_add_u32 v{VAC}, s{sSLOT}, v{VA0}')
    for i in range(1, 8):
        A(f'v_xor_b32 v{VAC+i}, {i*32}, v{VAC}')
    A('s_waitcnt lgkmcnt(0)')
    for i in range(4):
        A(f'v_lshlrev_b32 v{S+2*i}, 16, v{T+i}')
        A(f'v_and_b32 v{S+2*i+1}, 0xffff0000, v{T+i}')
    for i in range(8):
        A(f'v_fma_f32 v{P8+i}, v{S+i}, s{sC}, -v{NM}')
    for i in range(8):
        A(f'v_exp_f32 v{P8+i}, v{P8+i}')
    A('s_nop 0')
    for i in range(4):
        A(f'v_cvt_pk_bf16_f32 v{T+i}, v{P8+2*i}, v{P8+2*i+1}')
    A(f'v_add_f32 v{LS}, v{LS}, v{P8}')
    A(f'v_add_f32 v{P8+1}, v{P8+1}, v{P8+2}')
    A(f'v_add_f32 v{P8+3}, v{P8+3}, v{P8+4}')
    A(f'v_add_f32 v{P8+5}, v{P8+5}, v{P8+6}')
    A(f'v_add_f32 v{LS}, v{LS}, v{P8+7}')
    A(f'v_add_f32 v{P8+1}, v{P8+1}, v{P8+3}')
    A(f'v_add_f32 v{LS}, v{LS}, v{P8+5}')
    A(f'v_add_f32 v{LS}, v{LS}, v{P8+1}')
    for v in range(8):
        A(f's_mov_b64 exec, s[{64+2*v}:{65+2*v}]')
        A(f'v_mov_b64 {q(PV+4*v,2)}, {q(T,2)}')
        A(f'v_mov_b64 {q(PV+4*v+2,2)}, {q(T+2,2)}')
    A('s_mov_b64 exec, -1')
    poll_landed()
    order = [(i & 1) * 8 + (i >> 1) for i in range(16)]
    def vread(i):
        m = order[i]
        for kh in range(2):
            A(f'ds_read_b64_tr_b16 {q(KV+4*i+2*kh,2)}, v{VAC+(m&7)} offset:{kh*8192+(m>>3)*256}')
    PRE = 7
    for i in range(PRE):
        vread(i)
    A(f's_add_u32 s{sNEED}, s{sNEED}, 1')
    A(f's_or_b32 s15, s{sNEED}, s{sCODE}')
    A('v_mov_b32 v14, s15')
    for i in range(16):
        issued = min(16, i + PRE)
        A(f's_waitcnt lgkmcnt({2*(issued-i-1)})')
        m = order[i]
        a = m >> 3
        if i == 15:
            A(f'ds_write_b32 v{CONA}, v14')
        A(f'v_mfma_f32_16x16x32_bf16 {q(O+4*a)}, {q(PV+4*(m&7))}, {q(KV+4*i)}, {q(O+4*a)}')
        if i + PRE < 16:
            vread(i + PRE)
    A(f's_add_u32 s{sSLOT}, s{sSLOT}, {SLOT:#x}')
    A(f's_cmp_eq_u32 s{sSLOT}, {NSL*SLOT:#x}')
    A(f's_cselect_b32 s{sSLOT}, 0, s{sSLOT}')
    if ctl:
        A(f's_cmp_gt_u32 s{sNEED}, {max(o.cps)}')
        A('s_cbranch_scc1 .Lvlast')
        control('.Lvtile')
        g.lab('.Lvlast')
    A(f's_cmp_le_u32 s{sNEED}, 128')
    A('s_cbranch_scc1 .Lvtile')

    g.stamp(3)
    A(f'v_mov_b32 v15, v{LS}')
    A('s_mov_b32 vcc_lo, 0xf0f0f0f0')
    A('s_mov_b32 vcc_hi, 0xf0f0f0f0')
    A(f'v_permlane16_swap_b32 v{LS}, v15')
    A(f'v_add_f32 v{LS}, v{LS}, v15')
    A(f'v_mov_b32 v15, v{LS}')
    A(f'v_mov_b64 {q(RG,2)}, {q(O,2)}')
    A(f'v_mov_b64 {q(RG+8,2)}, {q(O+2,2)}')
    A(f'v_permlane32_swap_b32 v{LS}, v15')
    A(f'v_add_f32 v{LS}, v{LS}, v15')
    A(f'v_cndmask_b32 v15, v{NM}, v{LS}, vcc')
    A(f'v_mov_b64 {q(RG+4,2)}, {q(O+4,2)}')
    A(f'v_mov_b64 {q(RG+12,2)}, {q(O+6,2)}')
    for h in range(2):
        for a in range(2):
            r = RG + 8*h + 4*a
            A(f'v_mov_b32_dpp v{r+2}, v15 quad_perm:[{2*h},{2*h},{2*h},{2*h}] {DPPM}')
            A(f'buffer_store_dwordx4 {q(r)}, v56, {WS}, s44 offen offset:{h*2048+a*1024} {o.stflags}')
    WF = KV
    YD = QF
    YG = PV
    def between():
        g.lab('.Lwwait')
        A(f'ds_read_b32 v14, v{LNDA}')
        A('s_waitcnt lgkmcnt(0)')
        A(f'v_readfirstlane_b32 s{sRAW}, v14')
        A(f's_cmp_ge_u32 s{sRAW}, {WDONE:#x}')
        A('s_cbranch_scc1 .Lwok')
        A('s_sleep 1')
        A(f's_sub_u32 s{sBUD}, s{sBUD}, 1')
        A('s_cbranch_scc0 .Lwwait')
        A(f's_mov_b32 s{sBUD}, 0')
        g.lab('.Lwok')
        W2F = PV
        for i in range(14):
            A(f'ds_read_b64_tr_b16 {q(W2F+2*i,2)}, v60 offset:{i*64}')
        A('s_waitcnt lgkmcnt(0)')
        for i in range(7):
            A(f'v_mfma_f32_16x16x16_bf16 {q(YD+4*i)}, {q(HA,2)}, {q(W2F+4*i,2)}, 0')
        for i in range(7):
            A(f'v_mfma_f32_16x16x16_bf16 {q(YD+4*i)}, {q(HA+2,2)}, {q(W2F+4*i+2,2)}, {q(YD+4*i)}')
        for i in range(14):
            A(f'ds_read_b64_tr_b16 {q(WF+4*i,2)}, v63 offset:{i*64}')
            A(f'ds_read_b64_tr_b16 {q(WF+4*i+2,2)}, v63 offset:{i*64+3584}')
        for i in range(7):
            A(f'v_mul_f32 v{FP+2*i}, v{OMG}, v{YD+4*i}')
            A(f'v_mul_f32 v{FP+2*i+1}, v{OMG+1}, v{YD+4*i+1}')
        for i in range(7):
            A(f'v_mov_b32 v{YG+4*i+3}, v{TAG}')
        A('s_lshl_b32 s64, s47, 3')
        A(f's_add_u32 s64, s64, {YB:#x}')
        for i in range(1, 16):
            A(f's_add_u32 s{64+i}, s64, {i*16*YROW:#x}')
    g.apoll('h1', [f'buffer_load_dwordx4 {q(HG+4*i)}, v58, {WS}, s{4+i} offen {o.ldflags}' for i in range(4)],
            [HG+4*i+3 for i in range(4)], [36, 38, 40, 42], TAG, sBUD, o.h1sleep,
            slow=(o.h1thr, o.h1slow) if o.h1slow else None, between=between)
    g.stamp(4)
    for i in range(4):
        A(f'v_mov_b32 v{16+i}, v{HG+4*i+2}')
        A(f'v_mov_b32 v{20+i}, v{HG+4*i+2}')
    for i in range(4):
        if i == 3:
            A('v_max_f32 v36, v16, v17')
        A(f'v_permlane16_swap_b32 v{16+i}, v{20+i}')
    A('v_max_f32 v37, v18, v19')
    A('s_nop 0')
    A(f'v_max_f32_dpp v36, v36, v36 row_ror:4 {DPPM}')
    A(f'v_max_f32_dpp v37, v37, v37 row_ror:4 {DPPM}')
    A('s_nop 0')
    A(f'v_max_f32_dpp v36, v36, v36 row_ror:8 {DPPM}')
    A(f'v_max_f32_dpp v37, v37, v37 row_ror:8 {DPPM}')
    A('v_mov_b32 v38, v36')
    A('v_mov_b32 v39, v37')
    A('s_nop 0')
    A('v_permlane32_swap_b32 v36, v38')
    A('v_permlane32_swap_b32 v37, v39')
    A('v_max_f32 v36, v36, v38')
    A('v_max_f32 v37, v37, v39')
    for i in range(4):
        A(f'v_sub_f32 v{40+i}, v{16+i}, v{36+(i>>1)}')
    for i in range(4):
        A(f'v_exp_f32 v{40+i}, v{40+i}')
    A('s_mov_b32 vcc_lo, 0xaaaaaaaa')
    for b in range(2):
        srcs0 = (HG+8*b, HG+8*b+1, 20+2*b)
        srcs1 = (HG+8*b+4, HG+8*b+5, 21+2*b)
        for k in range(3):
            A(f'v_mul_f32 v{44+3*b+k}, v{40+2*b}, v{srcs0[k]}')
        for k in range(3):
            A(f'v_fmac_f32 v{44+3*b+k}, v{41+2*b}, v{srcs1[k]}')
    A('s_mov_b32 vcc_hi, 0xaaaaaaaa')
    for k in range(3):
        A(f'v_permlane32_swap_b32 v{44+k}, v{47+k}')
    for k in range(3):
        A(f'v_add_f32 v{44+k}, v{44+k}, v{47+k}')
    for rr in (4, 8):
        for k in (2, 0, 1) if rr == 8 else (0, 1, 2):
            if rr == 8 and k == 2:
                A('s_nop 1')
            A(f'v_add_f32_dpp v{44+k}, v{44+k}, v{44+k} row_ror:{rr} {DPPM}')
            if rr == 8 and k == 2:
                A('v_rcp_f32 v46, v46')
    A('v_mul_f32 v44, v44, v46')
    A('v_mul_f32 v45, v45, v46')
    A('v_cvt_pk_bf16_f32 v44, v44, v45')
    A('v_mov_b32 v45, v44')
    A('s_nop 1')
    A('v_permlane32_swap_b32 v44, v45')
    A('s_nop 1')
    for nn in range(4):
        A(f'v_mov_b32_dpp v{36+nn}, v45 quad_perm:[{nn},{nn},{nn},{nn}] {DPPM}')
    for nn in range(4):
        A(f'v_cndmask_b32_dpp v{36+nn}, v44, v{36+nn}, vcc quad_perm:[{nn},{nn},{nn},{nn}] {DPPM}')
    for nn in range(4):
        A(f'v_cndmask_b32 v{48+nn}, 0, v{36+nn}, s[48:49]')
    for nn in range(4):
        A(f'v_cndmask_b32 v{52+nn}, 0, v{36+nn}, s[50:51]')
    A('s_waitcnt lgkmcnt(0)')
    seq = []
    for i in range(7):
        seq.append((i, 0))
        if i >= 1:
            seq.append((i-1, 1))
    seq.append((6, 1))
    for n, (i, e) in enumerate(seq):
        A(f'v_mfma_f32_16x16x32_bf16 {q(YD+4*i)}, {q(48+4*e)}, {q(WF+8*i+4*e)}, {"0" if e==0 else q(YD+4*i)}')
    for i in range(7):
        A(f'v_fma_f32 v{YG+4*i}, v{G0}, v{YD+4*i}, v{FP+2*i}')
        A(f'v_fma_f32 v{YG+4*i+1}, v{G0+1}, v{YD+4*i+1}, v{FP+2*i+1}')
        A(f'buffer_store_dwordx4 {q(YG+4*i)}, v56, {WS}, s{45+(i>>2)} offen offset:{(i&3)*1024} {o.stflags}')
    g.stamp(5)
    A('s_cmp_ge_u32 s2, 112')
    A('s_cbranch_scc1 .Lfin')
    for i in range(16):
        A(f'v_not_b32 v{KV+4*i+3}, v{TAG}')
    if o.h2sleep0:
        A(f's_sleep {o.h2sleep0}')
    mk = [8, 10, 12, 14, 20, 22, 24, 26, 28, 30, 32, 34, 36, 38, 40, 42]
    g.apoll('h2', [f'buffer_load_dwordx4 {q(KV+4*i)}, v61, {WS}, s{64+i} offen {o.ldflags}' for i in range(16)],
            [KV+4*i+3 for i in range(16)], mk, TAG, sBUD, o.h2sleep)
    for k in range(4):
        A(f'v_pk_add_f32 v[{36+2*k}:{37+2*k}], {q(KV+8*k,2)}, {q(KV+8*k+4,2)}')
    for k in range(4):
        A(f'v_pk_add_f32 v[{44+2*k}:{45+2*k}], {q(KV+32+8*k,2)}, {q(KV+32+8*k+4,2)}')
    for k in range(4):
        A(f'v_pk_add_f32 v[{36+2*k}:{37+2*k}], v[{36+2*k}:{37+2*k}], v[{44+2*k}:{45+2*k}]')
    A('v_pk_add_f32 v[36:37], v[36:37], v[38:39]')
    A('v_pk_add_f32 v[40:41], v[40:41], v[42:43]')
    A('v_pk_add_f32 v[36:37], v[36:37], v[40:41]')
    A('s_nop 1')
    A('v_permlane32_swap_b32 v36, v37')
    A('v_add_f32 v36, v36, v37')
    A('v_mov_b32 v37, v36')
    A('s_nop 1')
    A('v_permlane16_swap_b32 v36, v37')
    A('v_add_f32 v36, v36, v37')
    for rr in (4, 8):
        A('s_nop 1')
        A(f'v_add_f32_dpp v36, v36, v36 row_ror:{rr} {DPPM}')
    A('v_cvt_pk_bf16_f32 v36, v36, v36')
    A('s_mov_b32 exec_lo, 0xf')
    A('s_mov_b32 exec_hi, 0xf')
    A(f'buffer_store_short v36, v62, s[{sOUT}:{sOUT+3}], s47 offen')
    A('s_cmp_lg_u32 s2, 0')
    A('s_cbranch_scc1 .Lfin')
    A('s_mov_b64 exec, 1')
    A(f'buffer_store_dword v{TAG}, v59, {WS}, 0 offen')
    g.lab('.Lfin')
    if o.diag:
        g.stamp(6)
        A('s_mov_b64 exec, 1')
        A('s_lshl_b32 s4, s2, 7')
        A(f's_add_u32 s4, s4, {STAMP:#x}')
        for k in range(7):
            A(f'v_mov_b32 v14, s{86+2*k}')
            A(f'v_mov_b32 v15, s{87+2*k}')
            A(f'buffer_store_dwordx2 v[14:15], v59, {WS}, s4 offen offset:{8*k}')
            A('s_nop 1')
        A('v_mov_b32 v14, s101')
        A('v_mov_b32 v15, s87')
        A(f'buffer_store_dwordx2 v[14:15], v59, {WS}, s4 offen offset:56')
        if ctl:
            A('s_mov_b64 exec, -1')
            A('v_lshlrev_b32 v14, 2, v1')
            A('s_lshl_b32 s4, s2, 8')
            A(f's_add_u32 s4, s4, {STAMP+0x20000:#x}')
            A(f'buffer_store_dword v246, v14, {WS}, s4 offen')
    g.lab('.Lexit')
    A('s_endpgm')

    ref = open('cdna_kernels/' + NAME + '.s.ref').read().split('\n')
    head = [l for l in ref if l.startswith(';') and '@launch' not in l and 'Override launch' not in l and 'grid=ceil' not in l]
    txt = '\n'.join(head) + '\n'
    txt += f'; @launch grid=(256,1,1) block=(128,1,1) lds={LDS_BYTES}\n'
    txt += '.amdgcn_target "amdgcn-amd-amdhsa--gfx950"\n.text\n'
    txt += '\n'.join(g.L) + '\n'
    txt += f'''.section .rodata,"a"
.p2align 6
.amdhsa_kernel {K}
  .amdhsa_next_free_vgpr 256
  .amdhsa_next_free_sgpr 102
  .amdhsa_accum_offset 256
  .amdhsa_group_segment_fixed_size 0
  .amdhsa_kernarg_size 96
  .amdhsa_user_sgpr_count 2
  .amdhsa_user_sgpr_kernarg_segment_ptr 1
  .amdhsa_system_sgpr_workgroup_id_x 1
.end_amdhsa_kernel
'''
    return txt


def parser():
    p = argparse.ArgumentParser()
    il = lambda x: [int(v) for v in x.split(',') if v]
    p.add_argument('-o', default='cdna_kernels/' + NAME + '.s')
    p.add_argument('--window', type=int, default=18)
    p.add_argument('--gs', type=int, default=2)
    p.add_argument('--unit', type=int, default=8)
    p.add_argument('--idxsh', type=int, default=3)
    p.add_argument('--perm', type=il, default=[0, 2, 1, 3])
    p.add_argument('--qwait', type=int, default=2)
    p.add_argument('--cfirst', type=int, default=15)
    p.add_argument('--wk', type=il, default=[])
    p.add_argument('--w1', type=il, default=[28,28,28,28,28,28,28,24])
    p.add_argument('--icpf', type=int, default=16)
    p.add_argument('--wins', type=il, default=[20,22,24])
    p.add_argument('--thr', type=il, default=[3,9,13])
    p.add_argument('--c0', type=int, default=1)
    p.add_argument('--wd', type=int, default=21)
    p.add_argument('--ctlonly', action='store_true')
    p.add_argument('--cps', type=il, default=[28,52,76,92,108,116])
    p.add_argument('--np', type=int, default=14)
    p.add_argument('--thr2', type=il, default=[])
    p.add_argument('--late', type=int, default=100)
    p.add_argument('--rx', type=int, default=1)
    p.add_argument('--rpair', type=int, default=1)
    p.add_argument('--nobr', action='store_true')
    p.add_argument('--pairskip', type=int, default=1)
    p.add_argument('--diag', action='store_true')
    p.add_argument('--prog', action='store_true')
    p.add_argument('--kflags', default='nt')
    p.add_argument('--vflags', default='nt')
    p.add_argument('--wqflags', default='nt')
    p.add_argument('--stflags', default='sc1')
    p.add_argument('--ldflags', default='sc1')
    p.add_argument('--lsleep', type=int, default=1)
    p.add_argument('--qsleep', type=int, default=6)
    p.add_argument('--h1sleep', type=int, default=0)
    p.add_argument('--h1thr', type=int, default=16)
    p.add_argument('--h1slow', type=int, default=4)
    p.add_argument('--h2sleep0', type=int, default=8)
    p.add_argument('--h2sleep', type=int, default=0)
    return p


if __name__ == '__main__':
    o = parser().parse_args()
    open(o.o, 'w').write(gen(o))
```

```python
import sys, struct, argparse

NAME = 'gated_mix__gqa_block_cached__dense_activation_silu__decode'

RING = 0
SLOT = 16384
NSL = 9
STG = RING + 8 * SLOT
W1S = RING + 7 * SLOT
W2S = RING + (128 % NSL) * SLOT
WOS = RING + (129 % NSL) * SLOT
SCB = RING + NSL * SLOT
XS = SCB + 8192
GS = XS + 2048
QS = GS + 1024
FL = QS + 1024
LDS_BYTES = FL + 512

QP = 0x20000
HP = 0x40000
FLG = 0x500000
REC = 0x100000
YB = 0x200000
YROW = 7168
WS_BYTES = 0x600000
STAMP = 0x400000
WDONE = 0x20000

def f32(x):
    return '0x%08x' % struct.unpack('<I', struct.pack('<f', x))[0]

LOG2E = 1.4426950408889634
DPPM = 'row_mask:0xf bank_mask:0xf'


class G:
    def __init__(self, o):
        self.L = []
        self.o = o
        self.uid = 0

    def A(self, s):
        self.L.append('    ' + s)

    def lab(self, s):
        self.L.append(s + ':')

    def new(self, p):
        self.uid += 1
        return f'.L{p}_{self.uid}'

    def srd(self, d, ptr, nbytes):
        A = self.A
        A(f's_mov_b32 s{d}, s{ptr}')
        A(f's_mov_b32 s{d+1}, s{ptr+1}')
        A(f's_mov_b32 s{d+2}, {nbytes:#x}')
        A(f's_mov_b32 s{d+3}, 0x20000')

    def stamp(self, k):
        if self.o.diag:
            self.A(f's_memrealtime s[{86+2*k}:{87+2*k}]')
            self.A('s_waitcnt lgkmcnt(0)')

    def apoll(self, name, loads, tagregs, masks, TAG, sBUD, sleep, slow=None, between=None):
        A = self.A
        for ld in loads:
            A(ld)
        if between:
            between()
        self.lab(f'.L{name}_loop')
        if sleep:
            A(f's_sleep {sleep}')
        for t, m in zip(tagregs, masks):
            A(f'v_cmp_ne_u32 s[{m}:{m+1}], v{t}, v{TAG}')
        A(f's_or_b64 vcc, s[{masks[0]}:{masks[0]+1}], s[{masks[1]}:{masks[1]+1}]')
        for m in masks[2:]:
            A(f's_or_b64 vcc, vcc, s[{m}:{m+1}]')
        A(f's_cbranch_scc0 .L{name}_ok')
        if self.o.pairskip and len(loads) > 4:
            for k in range(0, len(loads), 2):
                sk = self.new('sk')
                m0_, m1_ = masks[k], masks[k+1]
                A(f's_or_b64 exec, s[{m0_}:{m0_+1}], s[{m1_}:{m1_+1}]')
                A(f's_cbranch_execz {sk}')
                A(loads[k])
                A(loads[k+1])
                self.lab(sk)
        else:
            for ld, m in zip(loads, masks):
                sk = self.new('sk')
                A(f's_mov_b64 exec, s[{m}:{m+1}]')
                if not self.o.nobr:
                    A(f's_cbranch_execz {sk}')
                A(ld)
                self.lab(sk)
        A('s_mov_b64 exec, -1')
        if slow:
            thr, extra = slow
            sk = self.new('sk')
            A('s_bcnt1_i32_b64 vcc_lo, vcc')
            A(f's_cmp_le_u32 vcc_lo, {thr}')
            A(f's_cbranch_scc1 {sk}')
            A(f's_sleep {extra}')
            self.lab(sk)
        A(f's_sub_u32 s{sBUD}, s{sBUD}, 16')
        A(f's_cbranch_scc0 .L{name}_loop')
        A(f's_mov_b32 s{sBUD}, 0')
        self.lab(f'.L{name}_ok')


def q(b, n=4):
    return f'v[{b}:{b+n-1}]'


def gen(o):
    g = G(o)
    A = g.A
    W = o.window
    K = NAME + '_kernel'
    pX, pK, pV, pWQ, pWO, pW1, pW2, pG, pOUT, pWS = 36, 38, 40, 42, 44, 48, 50, 52, 54, 58

    g.L.append(f'.globl {K}\n.p2align 8\n.type {K},@function\n{K}:')
    A('s_cmp_ge_u32 s2, 256')
    A('s_cbranch_scc1 .Lexit')
    if o.diag:
        A('s_memrealtime s[30:31]')
    A('s_load_dwordx16 s[36:51], s[0:1], 0')
    A('s_load_dwordx8 s[52:59], s[0:1], 64')
    if o.icpf:
        A(f's_cmp_ge_u32 s2, {o.icpf}')
        A('s_cbranch_scc1 .Lnopf')
        A('s_getpc_b64 s[4:5]')
        g.lab('.Lpc')
        A('v_lshlrev_b32 v9, 7, v0')
        for i in range(3 if (len(o.wins) > 2 and o.nb == 8) else 2):
            A(f'v_add_u32 v10, {0x4000*i:#x}, v9')
            A('v_min_u32 v10, .Lexit-.Lpc, v10')
            A(f'global_load_dword v{249-i}, v10, s[4:5]')
        g.lab('.Lnopf')
    A('v_lshrrev_b32 v1, 6, v0')
    A('v_lshlrev_b32 v8, 2, v0')
    A('v_readfirstlane_b32 s3, v1')
    A(f'v_add_u32 v8, {FL}, v8')
    A('v_mov_b32 v14, 0')
    A('ds_write_b32 v8, v14')
    A('v_and_b32 v1, 63, v0')
    A('s_cmp_lg_u32 s3, 0')
    A('s_cbranch_scc1 .Lcons')

    gs, U, sh = o.gs, o.unit, o.idxsh
    lg = gs.bit_length() - 1
    A(f's_lshr_b32 s17, s2, {sh}')
    A(f's_and_b32 s17, s17, {gs-1}')
    A(f's_lshr_b32 s18, s2, {sh+lg}')
    A(f's_lshl_b32 s18, s18, {sh}')
    if o.rx == 1:
        A('s_lshr_b32 s19, s2, 4')
        A('s_xor_b32 s19, s19, s2')
        A(f's_and_b32 s19, s19, {(1<<sh)-1}')
    elif o.rx == 2:
        A('s_lshr_b32 s19, s2, 4')
        A('s_add_u32 s19, s19, s2')
        A(f's_and_b32 s19, s19, {(1<<sh)-1}')
    elif o.rx == 3:
        A('s_lshr_b32 s19, s2, 5')
        A('s_add_u32 s19, s19, s2')
        A(f's_and_b32 s19, s19, {(1<<sh)-1}')
    else:
        A(f's_and_b32 s19, s2, {(1<<sh)-1}')
    A('s_or_b32 s18, s18, s19')
    A(f's_lshl_b32 s16, s18, {20+lg}')
    A(f's_mul_i32 s17, s17, {U*4096}')
    A('s_add_u32 s16, s16, s17')
    A('v_lshrrev_b32 v3, 5, v1')
    A('v_and_b32 v5, 31, v1')
    A('v_lshlrev_b32 v4, 1, v3')
    A('v_xor_b32 v5, v5, v4')
    A('v_lshlrev_b32 v5, 4, v5')
    A('v_lshl_add_u32 v20, v3, 9, v5')
    for i in range(1, 4):
        A(f'v_xor_b32 v{20+i}, {i*64}, v20')
    A(f'v_mov_b32 v7, {FL+256}')
    A('v_lshlrev_b32 v24, 4, v1')
    j0 = (W - 1) % 16
    lag = (W - 1) // 16 + 1
    A('s_mov_b32 s20, -7')
    A('s_mov_b32 s22, 0')
    A('s_mov_b32 s27, s16')
    A('s_mov_b32 s24, 0')
    A(f's_mov_b32 s25, {1<<22}')
    A('s_lshr_b32 s4, s2, 3')
    A('s_lshl_b32 s4, s4, 7')
    A('s_bfe_u32 s5, s2, 0x20001')
    A('s_lshl_b32 s5, s5, 5')
    A('s_add_u32 s4, s4, s5')
    A('s_and_b32 s5, s2, 1')
    A('s_lshl_b32 s5, s5, 3')
    A('s_add_u32 s4, s4, s5')
    A('s_mul_i32 s4, s4, 896')
    A('s_mul_i32 s6, s2, 7168')
    A('s_waitcnt lgkmcnt(0)')
    g.srd(8, pK, 0x10000000)
    g.srd(60, pWO, 4096 * 896)
    g.srd(64, pW2, 1792 * 896)
    if o.diag:
        g.srd(68, pWS, STAMP + 0x20000)
        A('v_mov_b32 v30, 0')
    A('s_barrier')
    spins = []
    def check(name):
        A('s_cmp_lt_i32 s24, s20')
        A(f's_cbranch_scc1 .Lspin{name}')
        g.lab(f'.Lgo{name}')
        spins.append(name)
    def body(name, wins, first=False):
        NB = len(wins)
        for tt in range(NB):
            Wd = wins[tt]
            if not first:
                check(f'{name}{tt}')
            elif tt == 7:
                A('s_cmp_lt_i32 s24, 1')
                A('s_cbranch_scc1 .Lspinf')
                g.lab('.Lgof')
            for j in range(16):
                if j % 4 == 0:
                    k = tt * 4 + o.perm[j // 4]
                    A(f's_add_u32 m0, s22, {RING + j*1024:#x}')
                    A(f's_add_u32 s23, s16, {((k//U)*gs*U + k % U)*4096:#x}')
                if not (first and tt * 16 + j < Wd):
                    A(f's_waitcnt vmcnt({Wd-1})')
                elif j % 4 == 0:
                    A('s_nop 0')
                A(f'buffer_load_dwordx4 v{20+(j&3)}, s[8:11], s23 offen offset:{(j&3)*1024} {o.kflags} lds')
                if j == (Wd - 1) % 16:
                    if first:
                        v = tt - (Wd - 1) // 16
                        if v > 0:
                            A(f'v_mov_b32 v14, {v}')
                            A('ds_write_b32 v8, v14')
                    else:
                        A(f's_add_u32 s21, s20, {(7 if j <= 9 else 6) - (Wd - 1) // 16}')
                        A('v_mov_b32 v14, s21')
                        A('ds_write_b32 v8, v14')
                if o.prog and j == 0 and tt % 2 == 0:
                    A('s_memrealtime s[86:87]')
                if j == 12:
                    A(f's_add_u32 s22, s22, {SLOT:#x}')
                    A(f's_cmp_eq_u32 s22, {NSL*SLOT:#x}')
                    A('s_cselect_b32 s22, 0, s22')
                if j == 9:
                    if not first or tt >= 6:
                        A('ds_read_b32 v15, v7')
                    A('s_add_u32 s20, s20, 1')
                if j == 13 and tt == NB - 1:
                    if name == 'k':
                        A('s_mov_b32 s16, s27')
                    else:
                        A(f's_add_u32 s16, s16, {16384*gs*NB:#x}')
                        if not o.wk:
                            A('s_cmp_eq_u32 s20, 57')
                            A('s_cselect_b32 s16, s27, s16')
                if j == 14 and (not first or tt >= 6 or o.prog):
                    A('s_waitcnt lgkmcnt(0)')
                    if not first or tt >= 6:
                        A('v_readfirstlane_b32 s19, v15')
                        A('s_and_b32 s24, s19, 0xffff')
                if o.prog and j == 15 and tt % 2 == 1:
                    A('s_add_u32 s17, s20, 6')
                    A('s_lshr_b32 m0, s17, 1')
                    A('s_nop 0')
                    A('v_writelane_b32 v30, s86, m0')
    A(f's_mov_b32 s26, {49 if o.wk else 57}')
    body('f', o.w1 or [W] * 8, True)
    wins = [W] + o.wins
    if o.c0:
        A(f's_branch .Lload{o.c0}')
    for i, Wd in enumerate(wins):
        g.L.append('.p2align 6')
        g.lab(f'.Lload{i}')
        body(f'm{i}_', [Wd] * o.nb)
        A('s_cmp_ge_i32 s20, s26')
        A('s_cbranch_scc1 .Lturn')
        if i + 1 == len(wins):
            g.lab('.Lsel')
        for k in range(len(wins) - 1):
            A(f's_cmp_lt_u32 s19, {(k + 1) << 16:#x}')
            A(f's_cbranch_scc1 .Lload{k}')
        A(f's_branch .Lload{len(wins)-1}')
    g.lab('.Lturn')
    A('s_cmp_gt_i32 s20, 57')
    A('s_cbranch_scc1 .Ldrain')
    A('s_mov_b32 s26, 121')
    if o.wk:
        body('k', o.wk)
    A(f's_mov_b32 s8, s{pV}')
    A(f's_mov_b32 s9, s{pV+1}')
    A('s_branch .Lsel')
    g.lab('.Ldrain')
    NX = 23
    W = o.wd or W
    todo = list(range(128 - lag + 1, 129))
    def flag(c):
        A(f'v_mov_b32 v14, {c}')
        A('ds_write_b32 v8, v14')
        if c == 128 and o.diag:
            A('s_memrealtime s[86:87]')
    A('s_add_u32 s20, s20, 1')
    check('w')
    for e in range(NX):
        if e < 7:
            A(f's_mov_b32 m0, {W2S + e*1024}')
            A(f's_add_u32 s23, s6, {e*1024}')
            srd = 64
        else:
            k = e - 7
            a_, nn, u = k >> 3, (k >> 1) & 3, k & 1
            if k == 0:
                A('s_mov_b32 exec_hi, 0x00ffffff')
            A(f's_mov_b32 m0, {WOS + k*896}')
            A(f's_add_u32 s23, s4, {(4*a_+16*u+nn)*896}')
            srd = 60
        A(f's_waitcnt vmcnt({W-1})')
        while todo and 2048 + e >= 16 * todo[0] - 1 + W:
            flag(todo.pop(0))
        A(f'buffer_load_dwordx4 v24, s[{srd}:{srd+3}], s23 offen nt lds')
    for c in todo:
        A(f's_waitcnt vmcnt({2048 + NX - 16*c})')
        flag(c)
    A('s_waitcnt vmcnt(0)')
    A(f'v_mov_b32 v14, {WDONE + 128:#x}')
    A('ds_write_b32 v8, v14')
    if o.diag:
        A('s_waitcnt lgkmcnt(0)')
        A('v_mov_b32 v16, s86')
        A('v_mov_b32 v17, s87')
        A('v_mov_b32 v18, 0')
        A('v_mov_b32 v19, 0')
        A('s_lshl_b32 s17, s2, 7')
        A(f's_add_u32 s17, s17, {STAMP+64:#x}')
        A('s_mov_b64 exec, 1')
        A('buffer_store_dwordx4 v[16:19], v19, s[68:71], s17 offen')
        A('s_mov_b64 exec, -1')
        A('v_lshlrev_b32 v19, 2, v1')
        A('s_lshl_b32 s17, s2, 8')
        A(f's_add_u32 s17, s17, {STAMP+0x10000:#x}')
        A('buffer_store_dword v30, v19, s[68:71], s17 offen')
    A('s_endpgm')
    for tt in spins + ['f']:
        g.lab(f'.Lspin{tt}')
        A('ds_read_b32 v15, v7')
        A('s_waitcnt lgkmcnt(0)')
        A('v_readfirstlane_b32 s24, v15')
        A('s_and_b32 s24, s24, 0xffff')
        A('s_cmp_ge_i32 s24, 1' if tt == 'f' else 's_cmp_ge_i32 s24, s20')
        A(f's_cbranch_scc1 .Lgo{tt}')
        A('s_sleep 1')
        A('s_sub_u32 s25, s25, 1')
        A(f's_cbranch_scc0 .Lspin{tt}')
        A('s_mov_b32 s25, 0')
        A(f's_branch .Lgo{tt}')

    sX, sWQ, sWS, sW1, sG, sOUT = 8, 12, 16, 24, 32, 60
    TAG, LNDA, CONA, KA0, VA0, M, NM, LS = 6, 7, 8, 9, 10, 11, 12, 13
    KAC, VAC, O, S, T, P8 = 16, 20, 28, 36, 44, 48
    KV, QF, PV, FP, G0, TL = 64, 128, 160, 192, 206, 208
    HV = 240
    HA = 250
    OMG = 254
    sT, sSLOT, sLND, sC, sNEED, sBUD = 81, 82, 83, 84, 85, 80
    sRAW = 100
    WS = f's[{sWS}:{sWS+3}]'
    g.L.append('.p2align 6')
    g.lab('.Lcons')
    A('v_lshlrev_b32 v56, 4, v1')
    A('v_lshrrev_b32 v58, 3, v1')
    A('v_and_b32 v59, 7, v1')
    A('v_lshlrev_b32 v57, 13, v58')
    A('v_lshl_add_u32 v57, v59, 4, v57')
    A('v_mul_u32_u24 v58, 3584, v58')
    A('v_lshl_add_u32 v58, v59, 4, v58')
    A('v_mov_b32 v59, 0')
    A('v_and_b32 v2, 15, v1')
    A('v_lshrrev_b32 v3, 4, v1')
    A('v_bfe_u32 v4, v1, 2, 2')
    A('v_and_b32 v5, 3, v1')
    A('s_and_b32 s4, s2, 3')
    A(f's_mul_i32 s5, s4, {112*8192}')
    A('s_lshr_b32 s6, s2, 2')
    A('s_lshl_b32 s6, s6, 7')
    A('s_add_u32 s5, s5, s6')
    A('s_and_b32 s20, s2, 7')
    A(f's_mul_i32 s21, s20, {56*3584}')
    A('s_lshr_b32 s22, s2, 3')
    A('s_lshl_b32 s23, s22, 7')
    A('s_add_u32 s21, s21, s23')
    A('s_cmp_lt_u32 s2, 224')
    A('s_cselect_b32 s21, s21, 0x200000')
    A('s_waitcnt lgkmcnt(0)')
    g.srd(sWS, pWS, WS_BYTES)
    g.srd(sX, pX, 1792)
    g.srd(sWQ, pWQ, 448 * 8192)
    if o.cfirst < 0:
        A('s_barrier')
    g.stamp(0)
    if o.diag:
        A('s_mov_b32 s101, s30')
    A(f'buffer_load_dword v{TAG}, v59, {WS}, 0 offen')
    A(f's_mov_b32 m0, {XS}')
    A('s_nop 0')
    A(f'buffer_load_dwordx4 v56, s[{sX}:{sX+3}], 0 offen lds')
    A(f'buffer_load_dwordx4 v56, s[{sX}:{sX+3}], 0 offen offset:1024 lds')
    for t in range(14):
        if o.cfirst == t:
            A('s_barrier')
        A(f's_mov_b32 m0, {STG + t*1024}')
        A(f's_add_u32 s6, s5, {t*65536:#x}')
        A(f'buffer_load_dwordx4 v57, s[{sWQ}:{sWQ+3}], s6 offen {o.wqflags} lds')
    if o.cfirst == 14:
        A('s_barrier')
    g.srd(sW1, pW1, 448 * 3584)
    g.srd(sG, pG, 896)
    A(f's_mov_b32 m0, {GS}')
    g.srd(sOUT, pOUT, 1792)
    A(f'buffer_load_dwordx4 v56, s[{sG}:{sG+3}], 0 offen lds')
    for t in range(8):
        A(f's_mov_b32 m0, {W1S + t*1024}')
        if t < 7:
            A(f's_add_u32 s6, s21, {t*8*3584:#x}')
        else:
            A('s_mov_b32 s6, 0x200000')
        A(f'buffer_load_dwordx4 v58, s[{sW1}:{sW1+3}], s6 offen nt lds')
    if o.cfirst > 14:
        A('s_barrier')
    NW1 = 9
    A('v_and_b32 v58, 1, v2')
    A('v_mul_u32_u24 v60, 896, v58')
    A('v_lshl_add_u32 v60, v3, 4, v60')
    A(f'v_add_u32 v60, {XS}, v60')
    A('v_lshl_add_u32 v61, v3, 3, v4')
    A('v_lshlrev_b32 v61, 7, v61')
    A('v_lshl_add_u32 v61, v5, 3, v61')
    A(f'v_add_u32 v51, {W1S}, v61')
    A(f'v_add_u32 v61, {STG}, v61')
    A('v_lshl_add_u32 v63, v3, 2, v4')
    A('v_lshlrev_b32 v63, 7, v63')
    A('v_lshl_add_u32 v63, v5, 3, v63')
    A(f'v_add_u32 v63, {STG+96*128}, v63')
    A('s_mul_i32 s6, s4, 224')
    A('v_add_u32 v57, s6, v60')
    A('v_lshlrev_b32 v55, 3, v3')
    A('v_sub_u32 v55, v57, v55')
    A('s_mul_i32 s6, s20, 112')
    A('v_add_u32 v54, s6, v60')
    A('v_lshlrev_b32 v62, 16, v58')
    A('v_bfe_u32 v14, v2, 1, 2')
    A('v_lshl_add_u32 v62, v14, 6, v62')
    A('v_lshl_add_u32 v62, v3, 4, v62')
    A('v_lshlrev_b32 v53, 7, v14')
    A('v_lshl_add_u32 v53, v58, 5, v53')
    A('v_lshrrev_b32 v14, 1, v3')
    A('v_lshl_add_u32 v53, v14, 6, v53')
    A('v_and_b32 v14, 1, v3')
    A('v_lshl_add_u32 v53, v14, 4, v53')
    A(f'v_bfe_u32 v{HV+4}, v1, 2, 3')
    A(f'v_lshlrev_b32 v{HV+4}, 9, v{HV+4}')
    A(f'v_lshl_add_u32 v{HV+4}, v5, 4, v{HV+4}')
    A('v_and_b32 v14, 7, v2')
    A('v_lshlrev_b32 v14, 1, v14')
    A('v_xor_b32 v14, v14, v3')
    A('v_lshlrev_b32 v14, 4, v14')
    A(f'v_lshl_add_u32 v{KA0}, v2, 9, v14')
    A('v_lshl_add_u32 v14, v3, 2, v4')
    A('v_and_b32 v15, 7, v14')
    A('v_lshlrev_b32 v15, 5, v15')
    A('v_lshl_add_u32 v15, v5, 3, v15')
    A(f'v_lshl_add_u32 v{VA0}, v14, 9, v15')
    A(f'v_mov_b32 v{LNDA}, {FL}')
    for v in range(8):
        qq, u = v >> 1, v & 1
        m16 = (1 << (4*qq+u)) | (1 << (4*qq+u+2))
        m32 = m16 | (m16 << 16)
        A(f's_mov_b32 s{64+2*v}, {m32:#x}')
        A(f's_mov_b32 s{65+2*v}, {m32:#x}')
    A(f's_mov_b32 s{sC}, {f32(0.0625*LOG2E)}')
    A(f's_mov_b32 s{sBUD}, {1<<22}')
    A(f's_mov_b32 s{sLND}, 0')
    A(f's_mov_b32 s{sSLOT}, 0')
    A('s_mov_b32 s7, 1664525')
    A('s_lshr_b32 s5, s2, 5')
    A('s_lshl_b32 s5, s5, 13')
    A('s_lshl_b32 s4, s4, 11')
    A('s_add_u32 s5, s5, s4')
    A('s_bfe_u32 s4, s2, 0x30002')
    A('s_lshl_b32 s4, s4, 8')
    A('s_add_u32 s5, s5, s4')
    A(f's_add_u32 s5, s5, {QP:#x}')
    A('s_lshr_b32 s6, s2, 4')
    A('s_lshl_b32 s6, s6, 13')
    A(f's_add_u32 s6, s6, {QP:#x}')
    A('s_add_u32 s4, s6, 0x1000')
    A('s_lshl_b32 s21, s2, 9')
    A(f's_add_u32 s21, s21, {HP:#x}')
    A('s_lshl_b32 s22, s22, 12')
    A('s_lshl_b32 s20, s20, 6')
    A('s_add_u32 s22, s22, s20')
    A(f's_add_u32 s22, s22, {HP:#x}')
    for c in range(1, 4):
        m16 = (3 << (2*c)) | (3 << (2*c+8))
        A(f's_mov_b32 s{34+2*c}, {m16 | (m16 << 16):#x}')
        A(f's_mov_b32 s{35+2*c}, {m16 | (m16 << 16):#x}')
    for k in range(4):
        A(f's_mov_b32 s{42+k}, {0x07060500 + k:#x}')
    A('s_mov_b32 s46, 0x0c0c0400')
    A('s_mov_b32 s47, 0x04000c0c')

    def publish(D, dst, voff, soff):
        for c in range(1, 4):
            for r in range(4):
                A(f'v_cndmask_b32 v{D+r}, v{D+r}, v{D+4*c+r}, s[{34+2*c}:{35+2*c}]')
        for r in range(4):
            A(f'v_add_u32 v{D+r}, 0x80, v{D+r}')
        A('s_mov_b32 exec_lo, 0x00ff00ff')
        A('s_mov_b32 exec_hi, 0x00ff00ff')
        for r in range(4):
            A(f'v_perm_b32 v{dst+r}, v{D+r}, v{TAG}, s{42+r}')
        A(f'buffer_store_dwordx4 {q(dst)}, v{voff}, {WS}, s{soff} offen {o.stflags}')
        A('s_mov_b64 exec, -1')

    def rbf(r):
        A(f'v_cvt_pk_bf16_f32 v{r}, v{r}, v{r}')
        A(f'v_and_b32 v{r}, 0xffff0000, v{r}')

    XF, AF, QD = 64, 128, 80
    A(f's_waitcnt vmcnt({14+NW1})')
    A(f'v_mul_lo_u32 v{TAG}, v{TAG}, s7')
    for t in range(3):
        A(f'ds_read_b128 {q(XF+4*t)}, v57 offset:{t*64}')
    A(f'ds_read_b64 {q(XF+12,2)}, v55 offset:192')
    A(f'v_add_u32 v{TAG}, 1013904223, v{TAG}')
    def qm(t):
        for c in range(4):
            if t < 3:
                A(f'v_mfma_f32_16x16x32_bf16 {q(QD+4*c)}, {q(AF+16*t+4*c)}, {q(XF+4*t)}, {"0" if t==0 else q(QD+4*c)}')
            else:
                A(f'v_mfma_f32_16x16x16_bf16 {q(QD+4*c)}, {q(AF+48+2*c,2)}, {q(XF+12,2)}, {q(QD+4*c)}')
    for t in range(4):
        A(f's_waitcnt vmcnt({max(0, 10-4*t)+NW1})')
        for c in range(4):
            if t < 3:
                A(f'ds_read_b64_tr_b16 {q(AF+16*t+4*c,2)}, v61 offset:{t*4096+c*32}')
                A(f'ds_read_b64_tr_b16 {q(AF+16*t+4*c+2,2)}, v61 offset:{t*4096+c*32+512}')
            else:
                A(f'ds_read_b64_tr_b16 {q(AF+48+2*c,2)}, v63 offset:{c*32}')
        if t >= 1:
            A(f's_waitcnt lgkmcnt({8 if t < 3 else 4})')
            qm(t-1)
    A('s_waitcnt lgkmcnt(0)')
    qm(3)
    A('s_nop 5')
    publish(QD, T, 62, 5)
    g.stamp(1)
    for i in range(8):
        A(f'v_mov_b32 v{O+i}, 0')
    for i in range(32):
        A(f'v_mov_b32 v{PV+i}, 0')
    A(f'v_mov_b32 v{M}, 0xff7fffff')
    A(f'v_mov_b32 v{LS}, 0')
    A('v_lshlrev_b32 v57, 3, v1')
    A(f'v_add_u32 v57, {QS}, v57')
    A('v_bfe_u32 v58, v2, 1, 1')
    SCA = 245
    A(f'v_lshlrev_b32 v{SCA}, 6, v58')
    A(f'v_lshl_add_u32 v{SCA}, v3, 4, v{SCA}')
    A(f'v_add_u32 v{SCA}, {SCB}, v{SCA}')
    A('v_lshlrev_b32 v58, 9, v58')
    A('v_lshl_add_u32 v58, v3, 4, v58')
    A(f'v_add_u32 v58, {QS}, v58')

    def poll_landed():
        d = g.new('pd')
        sp = g.new('ps')
        A(f's_cmp_ge_u32 s{sLND}, s{sNEED}')
        A(f's_cbranch_scc1 {d}')
        g.lab(sp)
        A(f'ds_read_b32 v14, v{LNDA}')
        A('s_waitcnt lgkmcnt(0)')
        A(f'v_readfirstlane_b32 s{sLND}, v14')
        A(f's_cmp_ge_u32 s{sLND}, s{sNEED}')
        A(f's_cbranch_scc1 {d}')
        if o.lsleep:
            A(f's_sleep {o.lsleep}')
        A(f's_sub_u32 s{sBUD}, s{sBUD}, 1')
        A(f's_cbranch_scc0 {sp}')
        A(f's_mov_b32 s{sBUD}, 0')
        g.lab(d)

    hload = f'buffer_load_dwordx4 {q(HV)}, v{HV+4}, {WS}, s22 offen {o.ldflags}'
    def qloads():
        for i in range(8):
            A(f'buffer_load_dwordx4 {q(KV+4*i)}, v56, {WS}, s{6 if i < 4 else 4} offen offset:{(i&3)*1024} {o.ldflags}')
    A('s_waitcnt vmcnt(1)')
    A(f's_mov_b32 s{sNEED}, {o.qwait}')
    poll_landed()
    qloads()
    HD = 104
    for t in range(2):
        A(f'ds_read_b128 {q(96+4*t)}, v54 offset:{t*64}')
    for t in range(2):
        for c in range(4):
            A(f'ds_read_b64_tr_b16 {q(AF+16*t+4*c,2)}, v51 offset:{t*4096+c*32}')
            A(f'ds_read_b64_tr_b16 {q(AF+16*t+4*c+2,2)}, v51 offset:{t*4096+c*32+512}')
    A(f'v_add_u32 v52, {GS}, v56')
    A(f'ds_read_b128 {q(TL)}, v52')
    A(f'v_add_u32 v52, {XS}, v56')
    A(f'ds_read_b128 {q(TL+4)}, v52')
    A(f'ds_read_b128 {q(TL+8)}, v52 offset:896')
    A(f'v_mov_b32 v14, {(o.c0 << 16) + 1:#x}')
    A('s_waitcnt lgkmcnt(3)')
    A(f'ds_write_b32 v{CONA}, v14')
    for t in range(2):
        for c in range(4):
            A(f'v_mfma_f32_16x16x32_bf16 {q(HD+4*c)}, {q(AF+16*t+4*c)}, {q(96+4*t)}, {"0" if t==0 else q(HD+4*c)}')
    A('s_nop 5')
    publish(HD, 120, 53, 21)
    A('s_waitcnt lgkmcnt(0)')
    for b in range(2):
        acc = TL + 12 + b
        for d in range(4):
            A(f'v_lshlrev_b32 v{TL+16}, 16, v{TL+d}')
            A(f'v_and_b32 v{TL+17}, 0xffff0000, v{TL+d}')
            A(f'v_lshlrev_b32 v{TL+18}, 16, v{TL+4+4*b+d}')
            A(f'v_and_b32 v{TL+19}, 0xffff0000, v{TL+4+4*b+d}')
            A(f'v_mul_f32 v{TL+16}, v{TL+16}, v{TL+18}')
            A(f'v_mul_f32 v{TL+17}, v{TL+17}, v{TL+19}')
            A(f'v_cvt_pk_bf16_f32 v{TL+18}, v{TL+16}, v{TL+17}')
            A(f'v_lshlrev_b32 v{TL+16}, 16, v{TL+18}')
            A(f'v_and_b32 v{TL+17}, 0xffff0000, v{TL+18}')
            if d == 0:
                A(f'v_add_f32 v{acc}, v{TL+16}, v{TL+17}')
            else:
                A(f'v_add_f32 v{acc}, v{acc}, v{TL+16}')
                A(f'v_add_f32 v{acc}, v{acc}, v{TL+17}')
    Z = TL + 12
    A('s_nop 1')
    A(f'v_permlane32_swap_b32 v{Z}, v{Z+1}')
    A(f'v_add_f32 v{Z}, v{Z}, v{Z+1}')
    A(f'v_mov_b32 v{Z+1}, v{Z}')
    A('s_nop 1')
    A(f'v_permlane16_swap_b32 v{Z}, v{Z+1}')
    A(f'v_add_f32 v{Z}, v{Z}, v{Z+1}')
    for rr in (8, 4, 2, 1):
        A('s_nop 1')
        A(f'v_add_f32_dpp v{Z}, v{Z}, v{Z} row_ror:{rr} {DPPM}')
    rbf(Z)
    A(f'v_mul_f32 v{Z}, {f32(-LOG2E)}, v{Z}')
    A(f'v_exp_f32 v{Z}, v{Z}')
    A('s_nop 0')
    A(f'v_add_f32 v{Z}, 1.0, v{Z}')
    A(f'v_rcp_f32 v{G0}, v{Z}')
    A('s_nop 0')
    rbf(G0)
    A(f'v_sub_f32 v{OMG}, 1.0, v{G0}')
    rbf(OMG)
    A(f'v_mov_b32 v{G0+1}, v{G0}')
    A(f'v_mov_b32 v{OMG+1}, v{OMG}')
    A('s_nop 1')
    A(f'v_permlane32_swap_b32 v{G0}, v{G0+1}')
    A(f'v_permlane32_swap_b32 v{OMG}, v{OMG+1}')
    g.lab('.Lqchk')
    for i in range(8):
        A(f's_waitcnt vmcnt({8-i})')
        A(f'v_perm_b32 v14, v{KV+4*i+1}, v{KV+4*i}, s46')
        A(f'v_perm_b32 v15, v{KV+4*i+3}, v{KV+4*i+2}, s47')
        for r in range(4):
            A(f'v_and_b32 v{KV+4*i+r}, 0xffffff00, v{KV+4*i+r}')
        A(f'v_xor_b32 v14, v14, v{TAG}')
        if i == 0:
            A('v_xor_b32 v36, v14, v15')
        else:
            A('v_xor_b32 v14, v14, v15')
            A('v_or_b32 v36, v36, v14')
        if i >= 2:
            h = i & 1
            A(f'v_pk_add_f32 {q(KV+4*h,2)}, {q(KV+4*h,2)}, {q(KV+4*i,2)}')
            A(f'v_pk_add_f32 {q(KV+4*h+2,2)}, {q(KV+4*h+2,2)}, {q(KV+4*i+2,2)}')
    A('v_cmp_ne_u32 vcc, 0, v36')
    A('s_cbranch_vccz .Lqok')
    A(f's_sleep {o.qsleep}')
    qloads()
    A(hload)
    A(f's_sub_u32 s{sBUD}, s{sBUD}, 64')
    A('s_cbranch_scc0 .Lqchk')
    A(f's_mov_b32 s{sBUD}, 0')
    A('s_waitcnt vmcnt(0)')
    g.lab('.Lqok')
    for h in range(2):
        A(f'v_cvt_pk_bf16_f32 v{T+2*h}, v{KV+4*h}, v{KV+4*h+1}')
        A(f'v_cvt_pk_bf16_f32 v{T+2*h+1}, v{KV+4*h+2}, v{KV+4*h+3}')
    A(f'ds_write_b64 v57, {q(T,2)}')
    A(f'ds_write_b64 v57, {q(T+2,2)} offset:512')
    A(hload)
    A('s_waitcnt lgkmcnt(0)')
    for j in range(8):
        A(f'ds_read_b128 {q(QF+4*j)}, v58 offset:{j*64}')
    g.stamp(2)

    ctl = len(wins) > 1 or o.ctlonly
    sCODE, sTAG, sFO = 23, 20, 21
    A(f's_mov_b32 s{sCODE}, {o.c0 << 16:#x}')
    if ctl:
        A(f'v_readfirstlane_b32 s{sTAG}, v{TAG}')
        if o.diag:
            A('v_mov_b32 v246, 0')
        A(f's_add_u32 s52, s{pWS}, {FLG:#x}')
        A(f's_addc_u32 s53, s{pWS+1}, 0')
        A('s_lshl_b32 s8, s2, 8')
        assert len(o.cps) <= 16
        cm = sum(1 << c for c in o.cps)
        for i in range(4):
            A(f's_mov_b32 s{36+i}, {(cm >> (32*i)) & 0xffffffff:#x}')
        A(f's_lshl_b32 s{sFO}, s2, 8')
        A(f's_add_u32 s{sFO}, s{sFO}, {FLG:#x}')
    DST = [24, 25, 26, 27, 28, 29, 30, 31, 32, 33, 34, 35, 56, 57]
    def control(back):
        half = 0 if back == '.Lktile' else 1
        mask = sum(1 << (c - 64 * half) for c in o.cps if 64 * half <= c < 64 * half + 64)
        A(f's_bitcmp0_b64 s[{36+2*half}:{37+2*half}], s{sNEED}')
        A(f's_cbranch_scc1 {back}')
        for i in range(14):
            m = ((i >> 1) + 1) | ((i & 1) << 3) | (o.gm[i >> 1] << 4)
            A(f's_xor_b32 s{DST[i]}, s8, {m << 8:#x}')
            A(f's_load_dword s{DST[i]}, s[52:53], s{DST[i]}')
        A('s_mov_b64 exec, 1')
        A(f'buffer_store_dword v{TAG}, v59, {WS}, s{sFO} offen {o.stflags}')
        A('s_mov_b64 exec, -1')
        A(f's_add_u32 s{sFO}, s{sFO}, 0x10000')
        A('s_mov_b32 s15, 0')
        A('s_waitcnt lgkmcnt(0)')
        A('s_add_u32 s52, s52, 0x10000')
        A('s_addc_u32 s53, s53, 0')
        for i in range(14):
            A(f's_cmp_eq_u32 s{DST[i]}, s{sTAG}')
            A('s_addc_u32 s15, s15, 0')
        if o.diag:
            A(f's_lshr_b32 m0, s{sNEED}, 1')
            A('s_add_u32 s24, s15, 1')
            A('v_writelane_b32 v246, s24, m0')
        A(f's_mov_b32 s{sCODE}, 0')
        if half and o.thr2:
            sk = g.new('sk')
            A(f's_cmp_lt_u32 s{sNEED}, {o.late}')
            A(f's_cbranch_scc1 {sk}')
            for k, thr in enumerate(o.thr2[:len(wins)-1]):
                A(f's_cmp_ge_u32 s15, {thr}')
                A(f's_cselect_b32 s{sCODE}, {(k+1) << 16:#x}, s{sCODE}')
            A(f's_branch {back}')
            g.lab(sk)
        for k, thr in enumerate(o.thr[:len(wins)-1]):
            A(f's_cmp_ge_u32 s15, {thr}')
            A(f's_cselect_b32 s{sCODE}, {(k+1) << 16:#x}, s{sCODE}')
        A(f's_branch {back}')
    A(f's_mov_b32 s{sNEED}, 1')
    g.L.append('.p2align 6')
    g.lab('.Lktile')
    A(f'v_add_u32 v{KAC}, s{sSLOT}, v{KA0}')
    for i in range(1, 4):
        A(f'v_xor_b32 v{KAC+i}, {i*64}, v{KAC}')
    poll_landed()
    for i in range(16):
        j, hh = i >> 1, i & 1
        A(f'ds_read_b128 {q(KV+4*i)}, v{KAC+(j&3)} offset:{hh*8192+(j>>2)*256}')
    A(f's_add_u32 s{sNEED}, s{sNEED}, 1')
    A(f's_or_b32 s15, s{sNEED}, s{sCODE}')
    A('v_mov_b32 v14, s15')
    for i in range(16):
        j, hh = i >> 1, i & 1
        A(f's_waitcnt lgkmcnt({15-i})')
        if i == 15:
            A(f'ds_write_b32 v{CONA}, v14')
        A(f'v_mfma_f32_16x16x32_bf16 {q(S+4*hh)}, {q(KV+4*i)}, {q(QF+4*j)}, {"0" if j==0 else q(S+4*hh)}')
    A(f's_add_u32 s{sSLOT}, s{sSLOT}, {SLOT:#x}')
    A(f's_cmp_eq_u32 s{sSLOT}, {NSL*SLOT:#x}')
    A(f's_cselect_b32 s{sSLOT}, 0, s{sSLOT}')
    A('s_nop 4')
    for i in range(4):
        A(f'v_cvt_pk_bf16_f32 v{T+i}, v{S+2*i}, v{S+2*i+1}')
    A('s_mov_b64 exec, s[64:65]')
    A(f'ds_write_b128 v{SCA}, {q(T)}')
    A('s_mov_b64 exec, -1')
    A(f'v_max3_f32 v14, v{S}, v{S+1}, v{S+2}')
    A(f'v_max3_f32 v15, v{S+3}, v{S+4}, v{S+5}')
    A(f'v_max3_f32 v14, v14, v{S+6}, v{S+7}')
    A(f'v_max3_f32 v{M}, v14, v15, v{M}')
    A(f'v_add_u32 v{SCA}, 128, v{SCA}')
    if ctl:
        A(f's_cmp_gt_u32 s{sNEED}, 64')
        A('s_cbranch_scc1 .Lkdone')
        control('.Lktile')
        g.lab('.Lkdone')
    else:
        A(f's_cmp_le_u32 s{sNEED}, 64')
        A('s_cbranch_scc1 .Lktile')
    A(f'v_mov_b32 v15, v{M}')
    A(f'v_subrev_u32 v{SCA}, {64*128}, v{SCA}')
    A('s_nop 0')
    A(f'v_permlane16_swap_b32 v{M}, v15')
    A(f'v_max_f32 v{M}, v{M}, v15')
    A(f'v_mov_b32 v15, v{M}')
    A('s_nop 1')
    A(f'v_permlane32_swap_b32 v{M}, v15')
    A(f'v_max_f32 v{M}, v{M}, v15')
    rbf(M)
    A(f'v_mul_f32 v{NM}, s{sC}, v{M}')

    H = TL
    g.lab('.Lhchk')
    A('s_waitcnt vmcnt(0)')
    A(f'v_perm_b32 v14, v{HV+1}, v{HV}, s46')
    A(f'v_perm_b32 v15, v{HV+3}, v{HV+2}, s47')
    A('v_xor_b32 v14, v14, v15')
    A(f'v_cmp_ne_u32 vcc, v14, v{TAG}')
    A('s_cbranch_vccz .Lhok')
    A(hload)
    A(f's_sub_u32 s{sBUD}, s{sBUD}, 64')
    A('s_cbranch_scc0 .Lhchk')
    A(f's_mov_b32 s{sBUD}, 0')
    A('s_waitcnt vmcnt(0)')
    g.lab('.Lhok')
    for r in range(4):
        A(f'v_and_b32 v{H+r}, 0xffffff00, v{HV+r}')
    for rr in (4, 8):
        for r in range(4):
            A(f'v_add_f32_dpp v{H+r}, v{H+r}, v{H+r} row_ror:{rr} {DPPM}')
    for r in range(4):
        A(f'v_mov_b32 v{H+4+r}, v{H+r}')
    A('s_nop 0')
    for r in range(4):
        A(f'v_permlane16_swap_b32 v{H+r}, v{H+4+r}')
    for r in range(4):
        A(f'v_add_f32 v{H+r}, v{H+r}, v{H+4+r}')
    for r in range(4):
        rbf(H + r)
    for r in range(4):
        A(f'v_mul_f32 v{H+4+r}, {f32(-LOG2E)}, v{H+r}')
    for r in range(4):
        A(f'v_exp_f32 v{H+4+r}, v{H+4+r}')
    A('s_nop 0')
    for r in range(4):
        A(f'v_add_f32 v{H+4+r}, 1.0, v{H+4+r}')
    for r in range(4):
        A(f'v_rcp_f32 v{H+4+r}, v{H+4+r}')
    A('s_nop 0')
    for r in range(4):
        A(f'v_mul_f32 v{H+r}, v{H+r}, v{H+4+r}')
    A(f'v_cvt_pk_bf16_f32 v{H+4}, v{H}, v{H+1}')
    A(f'v_cvt_pk_bf16_f32 v{H+5}, v{H+2}, v{H+3}')
    A('v_and_b32 v14, 1, v2')
    A('v_and_b32 v15, 1, v3')
    A('v_lshlrev_b32 v14, 3, v14')
    A('v_lshl_add_u32 v57, v15, 2, v14')
    A(f'ds_bpermute_b32 v{H+6}, v57, v{H+4}')
    A(f'ds_bpermute_b32 v{H+8}, v57, v{H+5}')
    A('s_mov_b32 s48, 0x00030003')
    A('s_mov_b32 s49, 0x00300030')
    A('s_mov_b32 s50, 0x03000300')
    A('s_mov_b32 s51, 0x30003000')
    A('v_lshl_add_u32 v14, v15, 2, v4')
    A('v_mul_u32_u24 v60, 896, v14')
    A('v_lshrrev_b32 v14, 1, v3')
    A('v_lshl_add_u32 v60, v14, 5, v60')
    A('v_lshl_add_u32 v60, v5, 3, v60')
    A('v_mul_u32_u24 v63, 3584, v15')
    A('v_add_u32 v63, v63, v60')
    A(f'v_add_u32 v63, {WOS}, v63')
    A(f'v_add_u32 v60, {W2S}, v60')
    A('s_waitcnt lgkmcnt(0)')
    A(f'v_cndmask_b32 v{HA}, 0, v{H+6}, s[48:49]')
    A(f'v_cndmask_b32 v{HA+1}, 0, v{H+8}, s[48:49]')
    A(f'v_cndmask_b32 v{HA+2}, 0, v{H+6}, s[50:51]')
    A(f'v_cndmask_b32 v{HA+3}, 0, v{H+8}, s[50:51]')
    RG = TL
    HG = TL + 16
    for i in range(4):
        A(f'v_mov_b32 v{RG+4*i+3}, v{TAG}')
        A(f'v_not_b32 v{HG+4*i+3}, v{TAG}')
    A('v_lshrrev_b32 v57, 2, v1')
    A(f'v_mul_u32_u24 v61, {YROW}, v57')
    A('v_lshlrev_b32 v57, 7, v57')
    A('v_lshl_add_u32 v57, v5, 4, v57')
    A('v_lshl_add_u32 v61, v5, 4, v61')
    A('v_lshrrev_b32 v58, 5, v1')
    A('v_mul_u32_u24 v62, 896, v58')
    A('v_lshl_add_u32 v62, v5, 1, v62')
    A('v_lshl_add_u32 v58, v58, 2, v4')
    A('v_lshlrev_b32 v58, 12, v58')
    A('v_lshl_add_u32 v58, v15, 6, v58')
    A('v_lshl_add_u32 v58, v5, 4, v58')
    A('s_lshr_b32 s4, s2, 5')
    A('s_lshl_b32 s4, s4, 16')
    A('s_and_b32 s5, s2, 31')
    A('s_lshl_b32 s5, s5, 7')
    A('s_add_u32 s4, s4, s5')
    A(f's_add_u32 s4, s4, {REC:#x}')
    A('s_add_u32 s5, s4, 0x8000')
    A('s_add_u32 s6, s4, 0x80000')
    A('s_add_u32 s7, s4, 0x88000')
    A('s_lshl_b32 s44, s2, 12')
    A(f's_add_u32 s44, s44, {REC:#x}')
    A(f's_mul_i32 s45, s2, {YROW}')
    A(f's_add_u32 s45, s45, {YB:#x}')
    A('s_add_u32 s46, s45, 0x1000')
    if o.rpair:
        A('s_andn2_b32 s47, s2, 15')
        A('s_and_b32 s43, s2, 7')
        A('s_lshl_b32 s43, s43, 1')
        A('s_or_b32 s47, s47, s43')
        A('s_bfe_u32 s43, s2, 0x10003')
        A('s_or_b32 s47, s47, s43')
        A('s_lshl_b32 s47, s47, 3')
    else:
        A('s_lshl_b32 s47, s2, 3')

    g.L.append('.p2align 6')
    g.lab('.Lvtile')
    A(f'ds_read_b128 {q(T)}, v{SCA}')
    A(f'v_add_u32 v{SCA}, 128, v{SCA}')
    A(f'v_add_u32 v{VAC}, s{sSLOT}, v{VA0}')
    for i in range(1, 8):
        A(f'v_xor_b32 v{VAC+i}, {i*32}, v{VAC}')
    A('s_waitcnt lgkmcnt(0)')
    for i in range(4):
        A(f'v_lshlrev_b32 v{S+2*i}, 16, v{T+i}')
        A(f'v_and_b32 v{S+2*i+1}, 0xffff0000, v{T+i}')
    for i in range(8):
        A(f'v_fma_f32 v{P8+i}, v{S+i}, s{sC}, -v{NM}')
    for i in range(8):
        A(f'v_exp_f32 v{P8+i}, v{P8+i}')
    A('s_nop 0')
    for i in range(4):
        A(f'v_cvt_pk_bf16_f32 v{T+i}, v{P8+2*i}, v{P8+2*i+1}')
    A(f'v_add_f32 v{LS}, v{LS}, v{P8}')
    A(f'v_add_f32 v{P8+1}, v{P8+1}, v{P8+2}')
    A(f'v_add_f32 v{P8+3}, v{P8+3}, v{P8+4}')
    A(f'v_add_f32 v{P8+5}, v{P8+5}, v{P8+6}')
    A(f'v_add_f32 v{LS}, v{LS}, v{P8+7}')
    A(f'v_add_f32 v{P8+1}, v{P8+1}, v{P8+3}')
    A(f'v_add_f32 v{LS}, v{LS}, v{P8+5}')
    A(f'v_add_f32 v{LS}, v{LS}, v{P8+1}')
    for v in range(8):
        A(f's_mov_b64 exec, s[{64+2*v}:{65+2*v}]')
        A(f'v_mov_b64 {q(PV+4*v,2)}, {q(T,2)}')
        A(f'v_mov_b64 {q(PV+4*v+2,2)}, {q(T+2,2)}')
    A('s_mov_b64 exec, -1')
    poll_landed()
    order = [(i & 1) * 8 + (i >> 1) for i in range(16)]
    def vread(i):
        m = order[i]
        for kh in range(2):
            A(f'ds_read_b64_tr_b16 {q(KV+4*i+2*kh,2)}, v{VAC+(m&7)} offset:{kh*8192+(m>>3)*256}')
    PRE = 7
    for i in range(PRE):
        vread(i)
    A(f's_add_u32 s{sNEED}, s{sNEED}, 1')
    A(f's_or_b32 s15, s{sNEED}, s{sCODE}')
    A('v_mov_b32 v14, s15')
    for i in range(16):
        issued = min(16, i + PRE)
        A(f's_waitcnt lgkmcnt({2*(issued-i-1)})')
        m = order[i]
        a = m >> 3
        if i == 15:
            A(f'ds_write_b32 v{CONA}, v14')
        A(f'v_mfma_f32_16x16x32_bf16 {q(O+4*a)}, {q(PV+4*(m&7))}, {q(KV+4*i)}, {q(O+4*a)}')
        if i + PRE < 16:
            vread(i + PRE)
    A(f's_add_u32 s{sSLOT}, s{sSLOT}, {SLOT:#x}')
    A(f's_cmp_eq_u32 s{sSLOT}, {NSL*SLOT:#x}')
    A(f's_cselect_b32 s{sSLOT}, 0, s{sSLOT}')
    if ctl:
        A(f's_cmp_gt_u32 s{sNEED}, {max(o.cps)}')
        A('s_cbranch_scc1 .Lvlast')
        control('.Lvtile')
        g.lab('.Lvlast')
    A(f's_cmp_le_u32 s{sNEED}, 128')
    A('s_cbranch_scc1 .Lvtile')

    g.stamp(3)
    A(f'v_mov_b32 v15, v{LS}')
    A('s_mov_b32 vcc_lo, 0xf0f0f0f0')
    A('s_mov_b32 vcc_hi, 0xf0f0f0f0')
    A(f'v_permlane16_swap_b32 v{LS}, v15')
    A(f'v_add_f32 v{LS}, v{LS}, v15')
    A(f'v_mov_b32 v15, v{LS}')
    A(f'v_mov_b64 {q(RG,2)}, {q(O,2)}')
    A(f'v_mov_b64 {q(RG+8,2)}, {q(O+2,2)}')
    A(f'v_permlane32_swap_b32 v{LS}, v15')
    A(f'v_add_f32 v{LS}, v{LS}, v15')
    A(f'v_cndmask_b32 v15, v{NM}, v{LS}, vcc')
    A(f'v_mov_b64 {q(RG+4,2)}, {q(O+4,2)}')
    A(f'v_mov_b64 {q(RG+12,2)}, {q(O+6,2)}')
    for h in range(2):
        for a in range(2):
            r = RG + 8*h + 4*a
            A(f'v_mov_b32_dpp v{r+2}, v15 quad_perm:[{2*h},{2*h},{2*h},{2*h}] {DPPM}')
            A(f'buffer_store_dwordx4 {q(r)}, v56, {WS}, s44 offen offset:{h*2048+a*1024} {o.stflags}')
    WF = KV
    YD = QF
    YG = PV
    def between():
        g.lab('.Lwwait')
        A(f'ds_read_b32 v14, v{LNDA}')
        A('s_waitcnt lgkmcnt(0)')
        A(f'v_readfirstlane_b32 s{sRAW}, v14')
        A(f's_cmp_ge_u32 s{sRAW}, {WDONE:#x}')
        A('s_cbranch_scc1 .Lwok')
        A('s_sleep 1')
        A(f's_sub_u32 s{sBUD}, s{sBUD}, 1')
        A('s_cbranch_scc0 .Lwwait')
        A(f's_mov_b32 s{sBUD}, 0')
        g.lab('.Lwok')
        W2F = PV
        for i in range(14):
            A(f'ds_read_b64_tr_b16 {q(W2F+2*i,2)}, v60 offset:{i*64}')
        A('s_waitcnt lgkmcnt(0)')
        for i in range(7):
            A(f'v_mfma_f32_16x16x16_bf16 {q(YD+4*i)}, {q(HA,2)}, {q(W2F+4*i,2)}, 0')
        for i in range(7):
            A(f'v_mfma_f32_16x16x16_bf16 {q(YD+4*i)}, {q(HA+2,2)}, {q(W2F+4*i+2,2)}, {q(YD+4*i)}')
        for i in range(14):
            A(f'ds_read_b64_tr_b16 {q(WF+4*i,2)}, v63 offset:{i*64}')
            A(f'ds_read_b64_tr_b16 {q(WF+4*i+2,2)}, v63 offset:{i*64+3584}')
        for i in range(7):
            A(f'v_mul_f32 v{FP+2*i}, v{OMG}, v{YD+4*i}')
            A(f'v_mul_f32 v{FP+2*i+1}, v{OMG+1}, v{YD+4*i+1}')
        for i in range(7):
            A(f'v_mov_b32 v{YG+4*i+3}, v{TAG}')
        A('s_lshl_b32 s64, s47, 3')
        A(f's_add_u32 s64, s64, {YB:#x}')
        for i in range(1, 16):
            A(f's_add_u32 s{64+i}, s64, {i*16*YROW:#x}')
    g.apoll('h1', [f'buffer_load_dwordx4 {q(HG+4*i)}, v58, {WS}, s{4+i} offen {o.ldflags}' for i in range(4)],
            [HG+4*i+3 for i in range(4)], [36, 38, 40, 42], TAG, sBUD, o.h1sleep,
            slow=(o.h1thr, o.h1slow) if o.h1slow else None, between=between)
    g.stamp(4)
    for i in range(4):
        A(f'v_mov_b32 v{16+i}, v{HG+4*i+2}')
        A(f'v_mov_b32 v{20+i}, v{HG+4*i+2}')
    for i in range(4):
        if i == 3:
            A('v_max_f32 v36, v16, v17')
        A(f'v_permlane16_swap_b32 v{16+i}, v{20+i}')
    A('v_max_f32 v37, v18, v19')
    A('s_nop 0')
    A(f'v_max_f32_dpp v36, v36, v36 row_ror:4 {DPPM}')
    A(f'v_max_f32_dpp v37, v37, v37 row_ror:4 {DPPM}')
    A('s_nop 0')
    A(f'v_max_f32_dpp v36, v36, v36 row_ror:8 {DPPM}')
    A(f'v_max_f32_dpp v37, v37, v37 row_ror:8 {DPPM}')
    A('v_mov_b32 v38, v36')
    A('v_mov_b32 v39, v37')
    A('s_nop 0')
    A('v_permlane32_swap_b32 v36, v38')
    A('v_permlane32_swap_b32 v37, v39')
    A('v_max_f32 v36, v36, v38')
    A('v_max_f32 v37, v37, v39')
    for i in range(4):
        A(f'v_sub_f32 v{40+i}, v{16+i}, v{36+(i>>1)}')
    for i in range(4):
        A(f'v_exp_f32 v{40+i}, v{40+i}')
    A('s_mov_b32 vcc_lo, 0xaaaaaaaa')
    for b in range(2):
        srcs0 = (HG+8*b, HG+8*b+1, 20+2*b)
        srcs1 = (HG+8*b+4, HG+8*b+5, 21+2*b)
        for k in range(3):
            A(f'v_mul_f32 v{44+3*b+k}, v{40+2*b}, v{srcs0[k]}')
        for k in range(3):
            A(f'v_fmac_f32 v{44+3*b+k}, v{41+2*b}, v{srcs1[k]}')
    A('s_mov_b32 vcc_hi, 0xaaaaaaaa')
    for k in range(3):
        A(f'v_permlane32_swap_b32 v{44+k}, v{47+k}')
    for k in range(3):
        A(f'v_add_f32 v{44+k}, v{44+k}, v{47+k}')
    for rr in (4, 8):
        for k in (2, 0, 1) if rr == 8 else (0, 1, 2):
            if rr == 8 and k == 2:
                A('s_nop 1')
            A(f'v_add_f32_dpp v{44+k}, v{44+k}, v{44+k} row_ror:{rr} {DPPM}')
            if rr == 8 and k == 2:
                A('v_rcp_f32 v46, v46')
    A('v_mul_f32 v44, v44, v46')
    A('v_mul_f32 v45, v45, v46')
    A('v_cvt_pk_bf16_f32 v44, v44, v45')
    A('v_mov_b32 v45, v44')
    A('s_nop 1')
    A('v_permlane32_swap_b32 v44, v45')
    A('s_nop 1')
    for nn in range(4):
        A(f'v_mov_b32_dpp v{36+nn}, v45 quad_perm:[{nn},{nn},{nn},{nn}] {DPPM}')
    for nn in range(4):
        A(f'v_cndmask_b32_dpp v{36+nn}, v44, v{36+nn}, vcc quad_perm:[{nn},{nn},{nn},{nn}] {DPPM}')
    for nn in range(4):
        A(f'v_cndmask_b32 v{48+nn}, 0, v{36+nn}, s[48:49]')
    for nn in range(4):
        A(f'v_cndmask_b32 v{52+nn}, 0, v{36+nn}, s[50:51]')
    A('s_waitcnt lgkmcnt(0)')
    seq = []
    for i in range(7):
        seq.append((i, 0))
        if i >= 1:
            seq.append((i-1, 1))
    seq.append((6, 1))
    for n, (i, e) in enumerate(seq):
        A(f'v_mfma_f32_16x16x32_bf16 {q(YD+4*i)}, {q(48+4*e)}, {q(WF+8*i+4*e)}, {"0" if e==0 else q(YD+4*i)}')
    for i in range(7):
        A(f'v_fma_f32 v{YG+4*i}, v{G0}, v{YD+4*i}, v{FP+2*i}')
        A(f'v_fma_f32 v{YG+4*i+1}, v{G0+1}, v{YD+4*i+1}, v{FP+2*i+1}')
        A(f'buffer_store_dwordx4 {q(YG+4*i)}, v56, {WS}, s{45+(i>>2)} offen offset:{(i&3)*1024} {o.stflags}')
    g.stamp(5)
    A('s_cmp_ge_u32 s2, 112')
    A('s_cbranch_scc1 .Lfin')
    for i in range(16):
        A(f'v_not_b32 v{KV+4*i+3}, v{TAG}')
    if o.h2sleep0 < 0:
        A('s_waitcnt vmcnt(0)')
    elif o.h2sleep0:
        A(f's_sleep {o.h2sleep0}')
    mk = [8, 10, 12, 14, 20, 22, 24, 26, 28, 30, 32, 34, 36, 38, 40, 42]
    g.apoll('h2', [f'buffer_load_dwordx4 {q(KV+4*i)}, v61, {WS}, s{64+i} offen {o.ldflags}' for i in range(16)],
            [KV+4*i+3 for i in range(16)], mk, TAG, sBUD, o.h2sleep)
    for k in range(4):
        A(f'v_pk_add_f32 v[{36+2*k}:{37+2*k}], {q(KV+8*k,2)}, {q(KV+8*k+4,2)}')
    for k in range(4):
        A(f'v_pk_add_f32 v[{44+2*k}:{45+2*k}], {q(KV+32+8*k,2)}, {q(KV+32+8*k+4,2)}')
    for k in range(4):
        A(f'v_pk_add_f32 v[{36+2*k}:{37+2*k}], v[{36+2*k}:{37+2*k}], v[{44+2*k}:{45+2*k}]')
    A('v_pk_add_f32 v[36:37], v[36:37], v[38:39]')
    A('v_pk_add_f32 v[40:41], v[40:41], v[42:43]')
    A('v_pk_add_f32 v[36:37], v[36:37], v[40:41]')
    A('s_nop 1')
    A('v_permlane32_swap_b32 v36, v37')
    A('v_add_f32 v36, v36, v37')
    A('v_mov_b32 v37, v36')
    A('s_nop 1')
    A('v_permlane16_swap_b32 v36, v37')
    A('v_add_f32 v36, v36, v37')
    for rr in (4, 8):
        A('s_nop 1')
        A(f'v_add_f32_dpp v36, v36, v36 row_ror:{rr} {DPPM}')
    A('v_cvt_pk_bf16_f32 v36, v36, v36')
    A('s_mov_b32 exec_lo, 0xf')
    A('s_mov_b32 exec_hi, 0xf')
    A(f'buffer_store_short v36, v62, s[{sOUT}:{sOUT+3}], s47 offen')
    A('s_cmp_lg_u32 s2, 0')
    A('s_cbranch_scc1 .Lfin')
    A('s_mov_b64 exec, 1')
    A(f'buffer_store_dword v{TAG}, v59, {WS}, 0 offen')
    g.lab('.Lfin')
    if o.diag:
        g.stamp(6)
        A('s_mov_b64 exec, 1')
        A('s_lshl_b32 s4, s2, 7')
        A(f's_add_u32 s4, s4, {STAMP:#x}')
        for k in range(7):
            A(f'v_mov_b32 v14, s{86+2*k}')
            A(f'v_mov_b32 v15, s{87+2*k}')
            A(f'buffer_store_dwordx2 v[14:15], v59, {WS}, s4 offen offset:{8*k}')
            A('s_nop 1')
        A('v_mov_b32 v14, s101')
        A('v_mov_b32 v15, s87')
        A(f'buffer_store_dwordx2 v[14:15], v59, {WS}, s4 offen offset:56')
        if ctl:
            A('s_mov_b64 exec, -1')
            A('v_lshlrev_b32 v14, 2, v1')
            A('s_lshl_b32 s4, s2, 8')
            A(f's_add_u32 s4, s4, {STAMP+0x20000:#x}')
            A(f'buffer_store_dword v246, v14, {WS}, s4 offen')
    g.lab('.Lexit')
    A('s_endpgm')

    ref = open('cdna_kernels/' + NAME + '.s.ref').read().split('\n')
    head = [l for l in ref if l.startswith(';') and '@launch' not in l and 'Override launch' not in l and 'grid=ceil' not in l]
    txt = '\n'.join(head) + '\n'
    txt += f'; @launch grid=(256,1,1) block=(128,1,1) lds={LDS_BYTES}\n'
    txt += '.amdgcn_target "amdgcn-amd-amdhsa--gfx950"\n.text\n'
    txt += '\n'.join(g.L) + '\n'
    txt += f'''.section .rodata,"a"
.p2align 6
.amdhsa_kernel {K}
  .amdhsa_next_free_vgpr 256
  .amdhsa_next_free_sgpr 102
  .amdhsa_accum_offset 256
  .amdhsa_group_segment_fixed_size 0
  .amdhsa_kernarg_size 96
  .amdhsa_user_sgpr_count 2
  .amdhsa_user_sgpr_kernarg_segment_ptr 1
  .amdhsa_system_sgpr_workgroup_id_x 1
  .amdhsa_float_denorm_mode_32 3
.end_amdhsa_kernel
'''
    return txt


def parser():
    p = argparse.ArgumentParser()
    il = lambda x: [int(v) for v in x.split(',') if v]
    p.add_argument('-o', default='cdna_kernels/' + NAME + '.s')
    p.add_argument('--window', type=int, default=18)
    p.add_argument('--gs', type=int, default=2)
    p.add_argument('--unit', type=int, default=8)
    p.add_argument('--idxsh', type=int, default=3)
    p.add_argument('--perm', type=il, default=[0, 2, 1, 3])
    p.add_argument('--qwait', type=int, default=3)
    p.add_argument('--cfirst', type=int, default=15)
    p.add_argument('--wk', type=il, default=[])
    p.add_argument('--w1', type=il, default=[28,28,28,28,28,28,28,24])
    p.add_argument('--icpf', type=int, default=16)
    p.add_argument('--wins', type=il, default=[19,20,21,22,24])
    p.add_argument('--thr', type=il, default=[2,4,8,11,13])
    p.add_argument('--c0', type=int, default=2)
    p.add_argument('--wd', type=int, default=21)
    p.add_argument('--ctlonly', action='store_true')
    p.add_argument('--cps', type=il, default=[28,52,76,92,108,116])
    p.add_argument('--nb', type=int, default=2)
    p.add_argument('--gm', type=il, default=[1,2,4,8,3,12,15])
    p.add_argument('--thr2', type=il, default=[])
    p.add_argument('--late', type=int, default=100)
    p.add_argument('--rx', type=int, default=1)
    p.add_argument('--rpair', type=int, default=1)
    p.add_argument('--nobr', action='store_true')
    p.add_argument('--pairskip', type=int, default=1)
    p.add_argument('--diag', action='store_true')
    p.add_argument('--prog', action='store_true')
    p.add_argument('--kflags', default='nt')
    p.add_argument('--vflags', default='nt')
    p.add_argument('--wqflags', default='nt')
    p.add_argument('--stflags', default='sc1')
    p.add_argument('--ldflags', default='sc1')
    p.add_argument('--lsleep', type=int, default=1)
    p.add_argument('--qsleep', type=int, default=6)
    p.add_argument('--h1sleep', type=int, default=0)
    p.add_argument('--h1thr', type=int, default=16)
    p.add_argument('--h1slow', type=int, default=4)
    p.add_argument('--h2sleep0', type=int, default=-1)
    p.add_argument('--h2sleep', type=int, default=0)
    return p


if __name__ == '__main__':
    o = parser().parse_args()
    open(o.o, 'w').write(gen(o))
```

```python
import sys, struct, argparse

NAME = 'gated_mix__gqa_block_cached__dense_activation_silu__decode'

RING = 0
SLOT = 16384
NSL = 9
STG = RING + 8 * SLOT
W1S = RING + 7 * SLOT
W2S = RING + (128 % NSL) * SLOT
WOS = RING + (129 % NSL) * SLOT
SCB = RING + NSL * SLOT
XS = SCB + 8192
GS = XS + 2048
QS = GS + 1024
FL = QS + 1024
LDS_BYTES = FL + 512

QP = 0x20000
HP = 0x40000
FLG = 0x500000
REC = 0x100000
YB = 0x200000
YROW = 7168
RECB = 0x600000
WS_BYTES = 0x700000
STAMP = 0x400000
W2DONE = 0x10000
WDONE = 0x20000

def f32(x):
    return '0x%08x' % struct.unpack('<I', struct.pack('<f', x))[0]

LOG2E = 1.4426950408889634
DPPM = 'row_mask:0xf bank_mask:0xf'


class G:
    def __init__(self, o):
        self.L = []
        self.o = o
        self.uid = 0

    def A(self, s):
        self.L.append('    ' + s)

    def lab(self, s):
        self.L.append(s + ':')

    def new(self, p):
        self.uid += 1
        return f'.L{p}_{self.uid}'

    def srd(self, d, ptr, nbytes):
        A = self.A
        A(f's_mov_b32 s{d}, s{ptr}')
        A(f's_mov_b32 s{d+1}, s{ptr+1}')
        A(f's_mov_b32 s{d+2}, {nbytes:#x}')
        A(f's_mov_b32 s{d+3}, 0x20000')

    def stamp(self, k):
        if self.o.diag:
            self.A(f's_memrealtime s[{86+2*k}:{87+2*k}]')
            self.A('s_waitcnt lgkmcnt(0)')

    def apoll(self, name, loads, tagregs, masks, TAG, sBUD, sleep, slow=None, between=None, alt=None):
        A = self.A
        for ld in loads:
            A(ld)
        if between:
            between()
        self.lab(f'.L{name}_loop')
        if sleep:
            A(f's_sleep {sleep}')
        for t, m in zip(tagregs, masks):
            A(f'v_cmp_ne_u32 s[{m}:{m+1}], v{t}, v{TAG}')
        A(f's_or_b64 vcc, s[{masks[0]}:{masks[0]+1}], s[{masks[1]}:{masks[1]+1}]')
        for m in masks[2:]:
            A(f's_or_b64 vcc, vcc, s[{m}:{m+1}]')
        A(f's_cbranch_scc0 .L{name}_ok')
        if self.o.pairskip and len(loads) > 4:
            for k in range(0, len(loads), 2):
                sk = self.new('sk')
                m0_, m1_ = masks[k], masks[k+1]
                A(f's_or_b64 exec, s[{m0_}:{m0_+1}], s[{m1_}:{m1_+1}]')
                A(f's_cbranch_execz {sk}')
                A('s_wqm_b64 exec, exec')
                A(loads[k])
                A(loads[k+1])
                self.lab(sk)
        else:
            for ld, m in zip(loads, masks):
                sk = self.new('sk')
                A(f's_wqm_b64 exec, s[{m}:{m+1}]')
                if not self.o.nobr:
                    A(f's_cbranch_execz {sk}')
                A(ld)
                self.lab(sk)
        A('s_mov_b64 exec, -1')
        if slow:
            thr, extra = slow
            sk = self.new('sk')
            A('s_bcnt1_i32_b64 vcc_lo, vcc')
            A(f's_cmp_le_u32 vcc_lo, {thr}')
            A(f's_cbranch_scc1 {sk}')
            A(f's_sleep {extra}')
            self.lab(sk)
        if alt:
            cnt, period, altloads = alt
            A(f's_sub_u32 s{cnt}, s{cnt}, 1')
            A(f's_cbranch_scc0 .L{name}_loop')
            A(f's_mov_b32 s{cnt}, {period}')
            A('s_waitcnt vmcnt(0)')
            for ld, t in zip(altloads, tagregs):
                sk = self.new('sk')
                A(f'v_cmp_ne_u32 vcc, v{t}, v{TAG}')
                A('s_wqm_b64 exec, vcc')
                A(f's_cbranch_execz {sk}')
                A(ld)
                self.lab(sk)
                A('s_mov_b64 exec, -1')
            A('s_waitcnt vmcnt(0)')
            A(f's_sub_u32 s{sBUD}, s{sBUD}, 1024')
        else:
            A(f's_sub_u32 s{sBUD}, s{sBUD}, 16')
        A(f's_cbranch_scc0 .L{name}_loop')
        A(f's_mov_b32 s{sBUD}, 0')
        self.lab(f'.L{name}_ok')


def q(b, n=4):
    return f'v[{b}:{b+n-1}]'


def gen(o):
    g = G(o)
    A = g.A
    W = o.window
    K = NAME + '_kernel'
    pX, pK, pV, pWQ, pWO, pW1, pW2, pG, pOUT, pWS = 36, 38, 40, 42, 44, 48, 50, 52, 54, 58

    def mk_jv(d, t):
        if o.loc:
            A(f's_and_b32 s{d}, s2, 7')
            A(f's_lshl_b32 s{d}, s{d}, 4')
            A(f's_bfe_u32 s{t}, s2, 0x40003')
            A(f's_or_b32 s{d}, s{d}, s{t}')
            A(f's_and_b32 s{t}, s2, 0x80')
            A(f's_or_b32 s{d}, s{d}, s{t}')
        else:
            A(f's_mov_b32 s{d}, s2')
    def mk_j2(d, t):
        if o.loc:
            A(f's_and_b32 s{d}, s2, 7')
            A(f's_lshl_b32 s{d}, s{d}, 5')
            A(f's_lshr_b32 s{t}, s2, 3')
            A(f's_or_b32 s{d}, s{d}, s{t}')
        else:
            A(f's_mov_b32 s{d}, s2')
    g.L.append(f'.globl {K}\n.p2align 8\n.type {K},@function\n{K}:')
    A('s_cmp_ge_u32 s2, 256')
    A('s_cbranch_scc1 .Lexit')
    if o.diag:
        A('s_memrealtime s[30:31]')
    A('s_load_dwordx16 s[36:51], s[0:1], 0')
    A('s_load_dwordx8 s[52:59], s[0:1], 64')
    if o.icpf:
        A(f's_cmp_ge_u32 s2, {o.icpf}')
        A('s_cbranch_scc1 .Lnopf')
        A('s_getpc_b64 s[4:5]')
        g.lab('.Lpc')
        A('v_lshlrev_b32 v9, 7, v0')
        for i in range(3 if (len(o.wins) > 2 and o.nb == 8) else 2):
            A(f'v_add_u32 v10, {0x4000*i:#x}, v9')
            A('v_min_u32 v10, .Lexit-.Lpc, v10')
            A(f'global_load_dword v{249-i}, v10, s[4:5]')
        g.lab('.Lnopf')
    A('v_lshrrev_b32 v1, 6, v0')
    A('v_lshlrev_b32 v8, 2, v0')
    A('v_readfirstlane_b32 s3, v1')
    A(f'v_add_u32 v8, {FL}, v8')
    A('v_mov_b32 v14, 0')
    A('ds_write_b32 v8, v14')
    A('v_and_b32 v1, 63, v0')
    A('s_cmp_lg_u32 s3, 0')
    A('s_cbranch_scc1 .Lcons')

    gs, U, sh = o.gs, o.unit, o.idxsh
    lg = gs.bit_length() - 1
    A(f's_lshr_b32 s17, s2, {sh}')
    A(f's_and_b32 s17, s17, {gs-1}')
    A(f's_lshr_b32 s18, s2, {sh+lg}')
    A(f's_lshl_b32 s18, s18, {sh}')
    if o.rx == 1:
        A('s_lshr_b32 s19, s2, 4')
        A('s_xor_b32 s19, s19, s2')
        A(f's_and_b32 s19, s19, {(1<<sh)-1}')
    elif o.rx == 2:
        A('s_lshr_b32 s19, s2, 4')
        A('s_add_u32 s19, s19, s2')
        A(f's_and_b32 s19, s19, {(1<<sh)-1}')
    elif o.rx == 3:
        A('s_lshr_b32 s19, s2, 5')
        A('s_add_u32 s19, s19, s2')
        A(f's_and_b32 s19, s19, {(1<<sh)-1}')
    else:
        A(f's_and_b32 s19, s2, {(1<<sh)-1}')
    A('s_or_b32 s18, s18, s19')
    if o.loc:
        mk_jv(18, 19)
        A('s_lshr_b32 s18, s18, 1')
    A(f's_lshl_b32 s16, s18, {20+lg}')
    A(f's_mul_i32 s17, s17, {U*4096}')
    A('s_add_u32 s16, s16, s17')
    A('v_lshrrev_b32 v3, 5, v1')
    A('v_and_b32 v5, 31, v1')
    A('v_lshlrev_b32 v4, 1, v3')
    A('v_xor_b32 v5, v5, v4')
    A('v_lshlrev_b32 v5, 4, v5')
    A('v_lshl_add_u32 v20, v3, 9, v5')
    for i in range(1, 4):
        A(f'v_xor_b32 v{20+i}, {i*64}, v20')
    A(f'v_mov_b32 v7, {FL+256}')
    A('v_lshlrev_b32 v24, 4, v1')
    j0 = (W - 1) % 16
    lag = (W - 1) // 16 + 1
    A('s_mov_b32 s20, -7')
    A('s_mov_b32 s22, 0')
    A('s_mov_b32 s27, s16')
    A('s_mov_b32 s24, 0')
    A(f's_mov_b32 s25, {1<<22}')
    mk_j2(28, 29)
    A('s_lshr_b32 s4, s28, 3')
    A('s_lshl_b32 s4, s4, 7')
    A('s_bfe_u32 s5, s28, 0x20001')
    A('s_lshl_b32 s5, s5, 5')
    A('s_add_u32 s4, s4, s5')
    A('s_and_b32 s5, s28, 1')
    A('s_lshl_b32 s5, s5, 3')
    A('s_add_u32 s4, s4, s5')
    A('s_mul_i32 s4, s4, 896')
    A('s_mul_i32 s6, s2, 7168')
    A('s_waitcnt lgkmcnt(0)')
    g.srd(8, pK, 0x10000000)
    g.srd(60, pWO, 4096 * 896)
    g.srd(64, pW2, 1792 * 896)
    if o.diag:
        g.srd(68, pWS, STAMP + 0x20000)
        A('v_mov_b32 v30, 0')
    A('s_barrier')
    spins = []
    def check(name):
        A('s_cmp_lt_i32 s24, s20')
        A(f's_cbranch_scc1 .Lspin{name}')
        g.lab(f'.Lgo{name}')
        spins.append(name)
    def body(name, wins, first=False):
        NB = len(wins)
        for tt in range(NB):
            Wd = wins[tt]
            if not first:
                check(f'{name}{tt}')
            elif tt == 7:
                A('s_cmp_lt_i32 s24, 1')
                A('s_cbranch_scc1 .Lspinf')
                g.lab('.Lgof')
            for j in range(16):
                if j % 4 == 0:
                    k = tt * 4 + o.perm[j // 4]
                    A(f's_add_u32 m0, s22, {RING + j*1024:#x}')
                    A(f's_add_u32 s23, s16, {((k//U)*gs*U + k % U)*4096:#x}')
                if not (first and tt * 16 + j < Wd):
                    A(f's_waitcnt vmcnt({Wd-1})')
                elif j % 4 == 0:
                    A('s_nop 0')
                A(f'buffer_load_dwordx4 v{20+(j&3)}, s[8:11], s23 offen offset:{(j&3)*1024} {o.kflags} lds')
                if j == (Wd - 1) % 16:
                    if first:
                        v = tt - (Wd - 1) // 16
                        if v > 0:
                            A(f'v_mov_b32 v14, {v}')
                            A('ds_write_b32 v8, v14')
                    else:
                        A(f's_add_u32 s21, s20, {(7 if j <= 9 else 6) - (Wd - 1) // 16}')
                        A('v_mov_b32 v14, s21')
                        A('ds_write_b32 v8, v14')
                if o.prog and j == 0 and tt % 2 == 0:
                    A('s_memrealtime s[86:87]')
                if j == 12:
                    A(f's_add_u32 s22, s22, {SLOT:#x}')
                    A(f's_cmp_eq_u32 s22, {NSL*SLOT:#x}')
                    A('s_cselect_b32 s22, 0, s22')
                if j == 9:
                    if not first or tt >= 6:
                        A('ds_read_b32 v15, v7')
                    A('s_add_u32 s20, s20, 1')
                if j == 13 and tt == NB - 1:
                    if name == 'k':
                        A('s_mov_b32 s16, s27')
                    else:
                        A(f's_add_u32 s16, s16, {16384*gs*NB:#x}')
                        if not o.wk:
                            A('s_cmp_eq_u32 s20, 57')
                            A('s_cselect_b32 s16, s27, s16')
                if j == 14 and (not first or tt >= 6 or o.prog):
                    A('s_waitcnt lgkmcnt(0)')
                    if not first or tt >= 6:
                        A('v_readfirstlane_b32 s19, v15')
                        A('s_and_b32 s24, s19, 0xffff')
                if o.prog and j == 15 and tt % 2 == 1:
                    A('s_add_u32 s17, s20, 6')
                    A('s_lshr_b32 m0, s17, 1')
                    A('s_nop 0')
                    A('v_writelane_b32 v30, s86, m0')
    A(f's_mov_b32 s26, {49 if o.wk else 57}')
    body('f', o.w1 or [W] * 8, True)
    wins = [W] + o.wins
    if o.c0:
        A(f's_branch .Lload{o.c0}')
    for i, Wd in enumerate(wins):
        g.L.append('.p2align 6')
        g.lab(f'.Lload{i}')
        body(f'm{i}_', [Wd] * o.nb)
        A('s_cmp_ge_i32 s20, s26')
        A('s_cbranch_scc1 .Lturn')
        if i + 1 == len(wins):
            g.lab('.Lsel')
        for k in range(len(wins) - 1):
            A(f's_cmp_lt_u32 s19, {(k + 1) << 16:#x}')
            A(f's_cbranch_scc1 .Lload{k}')
        A(f's_branch .Lload{len(wins)-1}')
    g.lab('.Lturn')
    A('s_cmp_gt_i32 s20, 57')
    A('s_cbranch_scc1 .Ldrain')
    A('s_mov_b32 s26, 121')
    if o.wk:
        body('k', o.wk)
    A(f's_mov_b32 s8, s{pV}')
    A(f's_mov_b32 s9, s{pV+1}')
    A('s_branch .Lsel')
    g.lab('.Ldrain')
    NX = 23
    W = o.wd or W
    todo = list(range(128 - lag + 1, 129))
    def flag(c):
        A(f'v_mov_b32 v14, {c}')
        A('ds_write_b32 v8, v14')
        if c == 128 and o.diag:
            A('s_memrealtime s[86:87]')
    A('s_add_u32 s20, s20, 1')
    check('w')
    for e in range(NX):
        if e < 7:
            A(f's_mov_b32 m0, {W2S + e*1024}')
            A(f's_add_u32 s23, s6, {e*1024}')
            srd = 64
        else:
            k = e - 7
            a_, nn, u = k >> 3, (k >> 1) & 3, k & 1
            if k == 0:
                A('s_mov_b32 exec_hi, 0x00ffffff')
            A(f's_mov_b32 m0, {WOS + k*896}')
            A(f's_add_u32 s23, s4, {(4*a_+16*u+nn)*896}')
            srd = 60
        A(f's_waitcnt vmcnt({W-1})')
        while todo and 2048 + e >= 16 * todo[0] - 1 + W:
            flag(todo.pop(0))
        A(f'buffer_load_dwordx4 v24, s[{srd}:{srd+3}], s23 offen nt lds')
    for c in todo:
        A(f's_waitcnt vmcnt({2048 + NX - 16*c})')
        flag(c)
    A('s_waitcnt vmcnt(16)')
    A(f'v_mov_b32 v14, {W2DONE + 128:#x}')
    A('ds_write_b32 v8, v14')
    A('s_waitcnt vmcnt(0)')
    A(f'v_mov_b32 v14, {WDONE + 128:#x}')
    A('ds_write_b32 v8, v14')
    if o.diag:
        A('s_waitcnt lgkmcnt(0)')
        A('v_mov_b32 v16, s86')
        A('v_mov_b32 v17, s87')
        A('v_mov_b32 v18, 0')
        A('v_mov_b32 v19, 0')
        A('s_lshl_b32 s17, s2, 7')
        A(f's_add_u32 s17, s17, {STAMP+64:#x}')
        A('s_mov_b64 exec, 1')
        A('buffer_store_dwordx4 v[16:19], v19, s[68:71], s17 offen')
        A('s_mov_b64 exec, -1')
        A('v_lshlrev_b32 v19, 2, v1')
        A('s_lshl_b32 s17, s2, 8')
        A(f's_add_u32 s17, s17, {STAMP+0x10000:#x}')
        A('buffer_store_dword v30, v19, s[68:71], s17 offen')
    A('s_endpgm')
    for tt in spins + ['f']:
        g.lab(f'.Lspin{tt}')
        A('ds_read_b32 v15, v7')
        A('s_waitcnt lgkmcnt(0)')
        A('v_readfirstlane_b32 s24, v15')
        A('s_and_b32 s24, s24, 0xffff')
        A('s_cmp_ge_i32 s24, 1' if tt == 'f' else 's_cmp_ge_i32 s24, s20')
        A(f's_cbranch_scc1 .Lgo{tt}')
        A('s_sleep 1')
        A('s_sub_u32 s25, s25, 1')
        A(f's_cbranch_scc0 .Lspin{tt}')
        A('s_mov_b32 s25, 0')
        A(f's_branch .Lgo{tt}')

    sX, sWQ, sWS, sW1, sG, sOUT = 8, 12, 16, 24, 32, 60
    TAG, LNDA, CONA, KA0, VA0, M, NM, LS = 6, 7, 8, 9, 10, 11, 12, 13
    KAC, VAC, O, S, T, P8 = 16, 20, 28, 36, 44, 48
    KV, QF, PV, FP, G0, TL = 64, 128, 160, 192, 206, 208
    HV = 240
    HA = 250
    OMG = 254
    sT, sSLOT, sLND, sC, sNEED, sBUD = 81, 82, 83, 84, 85, 80
    sRAW = 100
    WS = f's[{sWS}:{sWS+3}]'
    g.L.append('.p2align 6')
    g.lab('.Lcons')
    A('v_lshlrev_b32 v56, 4, v1')
    A('v_lshrrev_b32 v58, 3, v1')
    A('v_and_b32 v59, 7, v1')
    A('v_lshlrev_b32 v57, 13, v58')
    A('v_lshl_add_u32 v57, v59, 4, v57')
    A('v_mul_u32_u24 v58, 3584, v58')
    A('v_lshl_add_u32 v58, v59, 4, v58')
    A('v_mov_b32 v59, 0')
    A('v_and_b32 v2, 15, v1')
    A('v_lshrrev_b32 v3, 4, v1')
    A('v_bfe_u32 v4, v1, 2, 2')
    A('v_and_b32 v5, 3, v1')
    A('s_and_b32 s4, s2, 3')
    A(f's_mul_i32 s5, s4, {112*8192}')
    A('s_lshr_b32 s6, s2, 2')
    A('s_lshl_b32 s6, s6, 7')
    A('s_add_u32 s5, s5, s6')
    A('s_and_b32 s20, s2, 7')
    A(f's_mul_i32 s21, s20, {56*3584}')
    A('s_lshr_b32 s22, s2, 3')
    A('s_lshl_b32 s23, s22, 7')
    A('s_add_u32 s21, s21, s23')
    A('s_cmp_lt_u32 s2, 224')
    A('s_cselect_b32 s21, s21, 0x200000')
    A('s_waitcnt lgkmcnt(0)')
    g.srd(sWS, pWS, WS_BYTES)
    g.srd(sX, pX, 1792)
    g.srd(sWQ, pWQ, 448 * 8192)
    if o.cfirst < 0:
        A('s_barrier')
    g.stamp(0)
    if o.diag:
        A('s_mov_b32 s101, s30')
    A(f'buffer_load_dword v{TAG}, v59, {WS}, 0 offen')
    A(f's_mov_b32 m0, {XS}')
    A('s_nop 0')
    A(f'buffer_load_dwordx4 v56, s[{sX}:{sX+3}], 0 offen lds')
    A(f'buffer_load_dwordx4 v56, s[{sX}:{sX+3}], 0 offen offset:1024 lds')
    for t in range(14):
        if o.cfirst == t:
            A('s_barrier')
        A(f's_mov_b32 m0, {STG + t*1024}')
        A(f's_add_u32 s6, s5, {t*65536:#x}')
        A(f'buffer_load_dwordx4 v57, s[{sWQ}:{sWQ+3}], s6 offen {o.wqflags} lds')
    if o.cfirst == 14:
        A('s_barrier')
    g.srd(sW1, pW1, 448 * 3584)
    g.srd(sG, pG, 896)
    A(f's_mov_b32 m0, {GS}')
    g.srd(sOUT, pOUT, 1792)
    A(f'buffer_load_dwordx4 v56, s[{sG}:{sG+3}], 0 offen lds')
    for t in range(8):
        A(f's_mov_b32 m0, {W1S + t*1024}')
        if t < 7:
            A(f's_add_u32 s6, s21, {t*8*3584:#x}')
        else:
            A('s_mov_b32 s6, 0x200000')
        A(f'buffer_load_dwordx4 v58, s[{sW1}:{sW1+3}], s6 offen nt lds')
    if o.cfirst > 14:
        A('s_barrier')
    NW1 = 9
    A('v_and_b32 v58, 1, v2')
    A('v_mul_u32_u24 v60, 896, v58')
    A('v_lshl_add_u32 v60, v3, 4, v60')
    A(f'v_add_u32 v60, {XS}, v60')
    A('v_lshl_add_u32 v61, v3, 3, v4')
    A('v_lshlrev_b32 v61, 7, v61')
    A('v_lshl_add_u32 v61, v5, 3, v61')
    A(f'v_add_u32 v51, {W1S}, v61')
    A(f'v_add_u32 v61, {STG}, v61')
    A('v_lshl_add_u32 v63, v3, 2, v4')
    A('v_lshlrev_b32 v63, 7, v63')
    A('v_lshl_add_u32 v63, v5, 3, v63')
    A(f'v_add_u32 v63, {STG+96*128}, v63')
    A('s_mul_i32 s6, s4, 224')
    A('v_add_u32 v57, s6, v60')
    A('v_lshlrev_b32 v55, 3, v3')
    A('v_sub_u32 v55, v57, v55')
    A('s_mul_i32 s6, s20, 112')
    A('v_add_u32 v54, s6, v60')
    A('v_lshlrev_b32 v62, 16, v58')
    A('v_bfe_u32 v14, v2, 1, 2')
    A('v_lshl_add_u32 v62, v14, 6, v62')
    A('v_lshl_add_u32 v62, v3, 4, v62')
    A('v_lshlrev_b32 v53, 7, v14')
    A('v_lshl_add_u32 v53, v58, 5, v53')
    A('v_lshrrev_b32 v14, 1, v3')
    A('v_lshl_add_u32 v53, v14, 6, v53')
    A('v_and_b32 v14, 1, v3')
    A('v_lshl_add_u32 v53, v14, 4, v53')
    A(f'v_bfe_u32 v{HV+4}, v1, 2, 3')
    A(f'v_lshlrev_b32 v{HV+4}, 9, v{HV+4}')
    A(f'v_lshl_add_u32 v{HV+4}, v5, 4, v{HV+4}')
    A('v_and_b32 v14, 7, v2')
    A('v_lshlrev_b32 v14, 1, v14')
    A('v_xor_b32 v14, v14, v3')
    A('v_lshlrev_b32 v14, 4, v14')
    A(f'v_lshl_add_u32 v{KA0}, v2, 9, v14')
    A('v_lshl_add_u32 v14, v3, 2, v4')
    A('v_and_b32 v15, 7, v14')
    A('v_lshlrev_b32 v15, 5, v15')
    A('v_lshl_add_u32 v15, v5, 3, v15')
    A(f'v_lshl_add_u32 v{VA0}, v14, 9, v15')
    A(f'v_mov_b32 v{LNDA}, {FL}')
    for v in range(8):
        qq, u = v >> 1, v & 1
        m16 = (1 << (4*qq+u)) | (1 << (4*qq+u+2))
        m32 = m16 | (m16 << 16)
        A(f's_mov_b32 s{64+2*v}, {m32:#x}')
        A(f's_mov_b32 s{65+2*v}, {m32:#x}')
    A(f's_mov_b32 s{sC}, {f32(0.0625*LOG2E)}')
    A(f's_mov_b32 s{sBUD}, {1<<22}')
    A(f's_mov_b32 s{sLND}, 0')
    A(f's_mov_b32 s{sSLOT}, 0')
    A('s_mov_b32 s7, 1664525')
    A('s_lshr_b32 s5, s2, 5')
    A('s_lshl_b32 s5, s5, 13')
    A('s_lshl_b32 s4, s4, 11')
    A('s_add_u32 s5, s5, s4')
    A('s_bfe_u32 s4, s2, 0x30002')
    A('s_lshl_b32 s4, s4, 8')
    A('s_add_u32 s5, s5, s4')
    A(f's_add_u32 s5, s5, {QP:#x}')
    mk_jv(6, 4)
    A('s_lshr_b32 s6, s6, 4')
    A('s_lshl_b32 s6, s6, 13')
    A(f's_add_u32 s6, s6, {QP:#x}')
    A('s_add_u32 s4, s6, 0x1000')
    A('s_lshl_b32 s21, s2, 9')
    A(f's_add_u32 s21, s21, {HP:#x}')
    A('s_lshl_b32 s22, s22, 12')
    A('s_lshl_b32 s20, s20, 6')
    A('s_add_u32 s22, s22, s20')
    A(f's_add_u32 s22, s22, {HP:#x}')
    for c in range(1, 4):
        m16 = (3 << (2*c)) | (3 << (2*c+8))
        A(f's_mov_b32 s{34+2*c}, {m16 | (m16 << 16):#x}')
        A(f's_mov_b32 s{35+2*c}, {m16 | (m16 << 16):#x}')
    for k in range(4):
        A(f's_mov_b32 s{42+k}, {0x07060500 + k:#x}')
    A('s_mov_b32 s46, 0x0c0c0400')
    A('s_mov_b32 s47, 0x04000c0c')

    def publish(D, dst, voff, soff):
        for c in range(1, 4):
            for r in range(4):
                A(f'v_cndmask_b32 v{D+r}, v{D+r}, v{D+4*c+r}, s[{34+2*c}:{35+2*c}]')
        for r in range(4):
            A(f'v_add_u32 v{D+r}, 0x80, v{D+r}')
        A('s_mov_b32 exec_lo, 0x00ff00ff')
        A('s_mov_b32 exec_hi, 0x00ff00ff')
        for r in range(4):
            A(f'v_perm_b32 v{dst+r}, v{D+r}, v{TAG}, s{42+r}')
        A(f'buffer_store_dwordx4 {q(dst)}, v{voff}, {WS}, s{soff} offen {o.stflags}')
        A('s_mov_b64 exec, -1')

    def rbf(r):
        A(f'v_cvt_pk_bf16_f32 v{r}, v{r}, v{r}')
        A(f'v_and_b32 v{r}, 0xffff0000, v{r}')

    XF, AF, QD = 64, 128, 80
    A(f's_waitcnt vmcnt({14+NW1})')
    A(f'v_mul_lo_u32 v{TAG}, v{TAG}, s7')
    for t in range(3):
        A(f'ds_read_b128 {q(XF+4*t)}, v57 offset:{t*64}')
    A(f'ds_read_b64 {q(XF+12,2)}, v55 offset:192')
    A(f'v_add_u32 v{TAG}, 1013904223, v{TAG}')
    def qm(t):
        for c in range(4):
            if t < 3:
                A(f'v_mfma_f32_16x16x32_bf16 {q(QD+4*c)}, {q(AF+16*t+4*c)}, {q(XF+4*t)}, {"0" if t==0 else q(QD+4*c)}')
            else:
                A(f'v_mfma_f32_16x16x16_bf16 {q(QD+4*c)}, {q(AF+48+2*c,2)}, {q(XF+12,2)}, {q(QD+4*c)}')
    for t in range(4):
        A(f's_waitcnt vmcnt({max(0, 10-4*t)+NW1})')
        for c in range(4):
            if t < 3:
                A(f'ds_read_b64_tr_b16 {q(AF+16*t+4*c,2)}, v61 offset:{t*4096+c*32}')
                A(f'ds_read_b64_tr_b16 {q(AF+16*t+4*c+2,2)}, v61 offset:{t*4096+c*32+512}')
            else:
                A(f'ds_read_b64_tr_b16 {q(AF+48+2*c,2)}, v63 offset:{c*32}')
        if t >= 1:
            A(f's_waitcnt lgkmcnt({8 if t < 3 else 4})')
            qm(t-1)
    A('s_waitcnt lgkmcnt(0)')
    qm(3)
    A('s_nop 5')
    publish(QD, T, 62, 5)
    g.stamp(1)
    for i in range(8):
        A(f'v_mov_b32 v{O+i}, 0')
    for i in range(32):
        A(f'v_mov_b32 v{PV+i}, 0')
    A(f'v_mov_b32 v{M}, 0xff7fffff')
    A(f'v_mov_b32 v{LS}, 0')
    A('v_lshlrev_b32 v57, 3, v1')
    A(f'v_add_u32 v57, {QS}, v57')
    A('v_bfe_u32 v58, v2, 1, 1')
    SCA = 245
    A(f'v_lshlrev_b32 v{SCA}, 6, v58')
    A(f'v_lshl_add_u32 v{SCA}, v3, 4, v{SCA}')
    A(f'v_add_u32 v{SCA}, {SCB}, v{SCA}')
    A('v_lshlrev_b32 v58, 9, v58')
    A('v_lshl_add_u32 v58, v3, 4, v58')
    A(f'v_add_u32 v58, {QS}, v58')

    def poll_landed():
        d = g.new('pd')
        sp = g.new('ps')
        A(f's_cmp_ge_u32 s{sLND}, s{sNEED}')
        A(f's_cbranch_scc1 {d}')
        g.lab(sp)
        A(f'ds_read_b32 v14, v{LNDA}')
        A('s_waitcnt lgkmcnt(0)')
        A(f'v_readfirstlane_b32 s{sLND}, v14')
        A(f's_cmp_ge_u32 s{sLND}, s{sNEED}')
        A(f's_cbranch_scc1 {d}')
        if o.lsleep:
            A(f's_sleep {o.lsleep}')
        A(f's_sub_u32 s{sBUD}, s{sBUD}, 1')
        A(f's_cbranch_scc0 {sp}')
        A(f's_mov_b32 s{sBUD}, 0')
        g.lab(d)

    hload = f'buffer_load_dwordx4 {q(HV)}, v{HV+4}, {WS}, s22 offen {o.ldflags}'
    def qloads():
        for i in range(8):
            A(f'buffer_load_dwordx4 {q(KV+4*i)}, v56, {WS}, s{6 if i < 4 else 4} offen offset:{(i&3)*1024} {o.ldflags}')
    A('s_waitcnt vmcnt(1)')
    A(f's_mov_b32 s{sNEED}, {o.qwait}')
    poll_landed()
    qloads()
    HD = 104
    for t in range(2):
        A(f'ds_read_b128 {q(96+4*t)}, v54 offset:{t*64}')
    for t in range(2):
        for c in range(4):
            A(f'ds_read_b64_tr_b16 {q(AF+16*t+4*c,2)}, v51 offset:{t*4096+c*32}')
            A(f'ds_read_b64_tr_b16 {q(AF+16*t+4*c+2,2)}, v51 offset:{t*4096+c*32+512}')
    A(f'v_add_u32 v52, {GS}, v56')
    A(f'ds_read_b128 {q(TL)}, v52')
    A(f'v_add_u32 v52, {XS}, v56')
    A(f'ds_read_b128 {q(TL+4)}, v52')
    A(f'ds_read_b128 {q(TL+8)}, v52 offset:896')
    A(f'v_mov_b32 v14, {(o.c0 << 16) + 1:#x}')
    A('s_waitcnt lgkmcnt(3)')
    A(f'ds_write_b32 v{CONA}, v14')
    for t in range(2):
        for c in range(4):
            A(f'v_mfma_f32_16x16x32_bf16 {q(HD+4*c)}, {q(AF+16*t+4*c)}, {q(96+4*t)}, {"0" if t==0 else q(HD+4*c)}')
    A('s_nop 5')
    publish(HD, 120, 53, 21)
    A('s_waitcnt lgkmcnt(0)')
    for b in range(2):
        acc = TL + 12 + b
        for d in range(4):
            A(f'v_lshlrev_b32 v{TL+16}, 16, v{TL+d}')
            A(f'v_and_b32 v{TL+17}, 0xffff0000, v{TL+d}')
            A(f'v_lshlrev_b32 v{TL+18}, 16, v{TL+4+4*b+d}')
            A(f'v_and_b32 v{TL+19}, 0xffff0000, v{TL+4+4*b+d}')
            A(f'v_mul_f32 v{TL+16}, v{TL+16}, v{TL+18}')
            A(f'v_mul_f32 v{TL+17}, v{TL+17}, v{TL+19}')
            A(f'v_cvt_pk_bf16_f32 v{TL+18}, v{TL+16}, v{TL+17}')
            A(f'v_lshlrev_b32 v{TL+16}, 16, v{TL+18}')
            A(f'v_and_b32 v{TL+17}, 0xffff0000, v{TL+18}')
            if d == 0:
                A(f'v_add_f32 v{acc}, v{TL+16}, v{TL+17}')
            else:
                A(f'v_add_f32 v{acc}, v{acc}, v{TL+16}')
                A(f'v_add_f32 v{acc}, v{acc}, v{TL+17}')
    Z = TL + 12
    A('s_nop 1')
    A(f'v_permlane32_swap_b32 v{Z}, v{Z+1}')
    A(f'v_add_f32 v{Z}, v{Z}, v{Z+1}')
    A(f'v_mov_b32 v{Z+1}, v{Z}')
    A('s_nop 1')
    A(f'v_permlane16_swap_b32 v{Z}, v{Z+1}')
    A(f'v_add_f32 v{Z}, v{Z}, v{Z+1}')
    for rr in (8, 4, 2, 1):
        A('s_nop 1')
        A(f'v_add_f32_dpp v{Z}, v{Z}, v{Z} row_ror:{rr} {DPPM}')
    rbf(Z)
    A(f'v_mul_f32 v{Z}, {f32(-LOG2E)}, v{Z}')
    A(f'v_exp_f32 v{Z}, v{Z}')
    A('s_nop 0')
    A(f'v_add_f32 v{Z}, 1.0, v{Z}')
    A(f'v_rcp_f32 v{G0}, v{Z}')
    A('s_nop 0')
    rbf(G0)
    A(f'v_sub_f32 v{OMG}, 1.0, v{G0}')
    rbf(OMG)
    A(f'v_mov_b32 v{G0+1}, v{G0}')
    A(f'v_mov_b32 v{OMG+1}, v{OMG}')
    A('s_nop 1')
    A(f'v_permlane32_swap_b32 v{G0}, v{G0+1}')
    A(f'v_permlane32_swap_b32 v{OMG}, v{OMG+1}')
    g.lab('.Lqchk')
    for i in range(8):
        A(f's_waitcnt vmcnt({8-i})')
        A(f'v_perm_b32 v14, v{KV+4*i+1}, v{KV+4*i}, s46')
        A(f'v_perm_b32 v15, v{KV+4*i+3}, v{KV+4*i+2}, s47')
        for r in range(4):
            A(f'v_and_b32 v{KV+4*i+r}, 0xffffff00, v{KV+4*i+r}')
        A(f'v_xor_b32 v14, v14, v{TAG}')
        if i == 0:
            A('v_xor_b32 v36, v14, v15')
        else:
            A('v_xor_b32 v14, v14, v15')
            A('v_or_b32 v36, v36, v14')
        if i >= 2:
            h = i & 1
            A(f'v_pk_add_f32 {q(KV+4*h,2)}, {q(KV+4*h,2)}, {q(KV+4*i,2)}')
            A(f'v_pk_add_f32 {q(KV+4*h+2,2)}, {q(KV+4*h+2,2)}, {q(KV+4*i+2,2)}')
    A('v_cmp_ne_u32 vcc, 0, v36')
    A('s_cbranch_vccz .Lqok')
    A(f's_sleep {o.qsleep}')
    qloads()
    A(hload)
    A(f's_sub_u32 s{sBUD}, s{sBUD}, 64')
    A('s_cbranch_scc0 .Lqchk')
    A(f's_mov_b32 s{sBUD}, 0')
    A('s_waitcnt vmcnt(0)')
    g.lab('.Lqok')
    for h in range(2):
        A(f'v_cvt_pk_bf16_f32 v{T+2*h}, v{KV+4*h}, v{KV+4*h+1}')
        A(f'v_cvt_pk_bf16_f32 v{T+2*h+1}, v{KV+4*h+2}, v{KV+4*h+3}')
    A(f'ds_write_b64 v57, {q(T,2)}')
    A(f'ds_write_b64 v57, {q(T+2,2)} offset:512')
    A(hload)
    A('s_waitcnt lgkmcnt(0)')
    for j in range(8):
        A(f'ds_read_b128 {q(QF+4*j)}, v58 offset:{j*64}')
    g.stamp(2)

    ctl = len(wins) > 1 or o.ctlonly
    sCODE, sTAG, sFO = 23, 20, 21
    A(f's_mov_b32 s{sCODE}, {o.c0 << 16:#x}')
    if ctl:
        A(f'v_readfirstlane_b32 s{sTAG}, v{TAG}')
        if o.diag:
            A('v_mov_b32 v246, 0')
        A(f's_add_u32 s52, s{pWS}, {FLG:#x}')
        A(f's_addc_u32 s53, s{pWS+1}, 0')
        A('s_lshl_b32 s8, s2, 8')
        assert len(o.cps) <= 16
        cm = sum(1 << c for c in o.cps)
        for i in range(4):
            A(f's_mov_b32 s{36+i}, {(cm >> (32*i)) & 0xffffffff:#x}')
        if o.delta:
            cm = sum(1 << (c - o.delta) for c in o.cps)
            assert all(c - o.delta not in (64, 65) for c in o.cps)
            for i in range(4):
                A(f's_mov_b32 s{10+i}, {(cm >> (32*i)) & 0xffffffff:#x}')
        A(f's_lshl_b32 s{sFO}, s2, 8')
        A(f's_add_u32 s{sFO}, s{sFO}, {FLG:#x}')
    DST = [24, 25, 26, 27, 28, 29, 30, 31, 32, 33, 34, 35, 56, 57]
    def control(back):
        half = 0 if back == '.Lktile' else 1
        mask = sum(1 << (c - 64 * half) for c in o.cps if 64 * half <= c < 64 * half + 64)
        if o.delta:
            sk = g.new('sk')
            A(f's_bitcmp0_b64 s[{10+2*half}:{11+2*half}], s{sNEED}')
            A(f's_cbranch_scc1 {sk}')
            A(f'v_xor_b32 v14, 1, v{TAG}')
            A('s_mov_b64 exec, 1')
            A(f'buffer_store_dword v14, v59, {WS}, s{sFO} offen {o.stflags}')
            A('s_mov_b64 exec, -1')
            g.lab(sk)
        A(f's_bitcmp0_b64 s[{36+2*half}:{37+2*half}], s{sNEED}')
        A(f's_cbranch_scc1 {back}')
        for i in range(14):
            m = ((i >> 1) + 1) | ((i & 1) << 3) | (o.gm[i >> 1] << 4)
            A(f's_xor_b32 s{DST[i]}, s8, {m << 8:#x}')
            A(f's_load_dword s{DST[i]}, s[52:53], s{DST[i]}')
        A('s_mov_b64 exec, 1')
        A(f'buffer_store_dword v{TAG}, v59, {WS}, s{sFO} offen {o.stflags}')
        A('s_mov_b64 exec, -1')
        A(f's_add_u32 s{sFO}, s{sFO}, 0x10000')
        A('s_mov_b32 s15, 0')
        A('s_waitcnt lgkmcnt(0)')
        A('s_add_u32 s52, s52, 0x10000')
        A('s_addc_u32 s53, s53, 0')
        for i in range(14):
            A(f's_cmp_eq_u32 s{DST[i]}, s{sTAG}')
            A('s_addc_u32 s15, s15, 0')
        if o.delta:
            A('s_mov_b32 s9, 0')
            for i in range(14):
                A(f's_xor_b32 s{DST[i]}, s{DST[i]}, s{sTAG}')
                A(f's_cmp_gt_u32 s{DST[i]}, 1')
                A('s_addc_u32 s9, s9, 0')
            A(f's_cmp_ge_u32 s9, {o.farn}')
            A(f's_cselect_b32 s9, {o.farsub}, 0')
            A('s_sub_u32 s15, s15, s9')
            A('s_max_i32 s15, s15, 0')
        if o.diag:
            A(f's_lshr_b32 m0, s{sNEED}, 1')
            A('s_add_u32 s24, s15, 1')
            A('v_writelane_b32 v246, s24, m0')
        A(f's_mov_b32 s{sCODE}, 0')
        if half and o.thr2:
            sk = g.new('sk')
            A(f's_cmp_lt_u32 s{sNEED}, {o.late}')
            A(f's_cbranch_scc1 {sk}')
            for k, thr in enumerate(o.thr2[:len(wins)-1]):
                A(f's_cmp_ge_u32 s15, {thr}')
                A(f's_cselect_b32 s{sCODE}, {(k+1) << 16:#x}, s{sCODE}')
            A(f's_branch {back}')
            g.lab(sk)
        for k, thr in enumerate(o.thr[:len(wins)-1]):
            A(f's_cmp_ge_u32 s15, {thr}')
            A(f's_cselect_b32 s{sCODE}, {(k+1) << 16:#x}, s{sCODE}')
        A(f's_branch {back}')
    A(f's_mov_b32 s{sNEED}, 1')
    g.L.append('.p2align 6')
    g.lab('.Lktile')
    A(f'v_add_u32 v{KAC}, s{sSLOT}, v{KA0}')
    for i in range(1, 4):
        A(f'v_xor_b32 v{KAC+i}, {i*64}, v{KAC}')
    poll_landed()
    for i in range(16):
        j, hh = i >> 1, i & 1
        A(f'ds_read_b128 {q(KV+4*i)}, v{KAC+(j&3)} offset:{hh*8192+(j>>2)*256}')
    A(f's_add_u32 s{sNEED}, s{sNEED}, 1')
    A(f's_or_b32 s15, s{sNEED}, s{sCODE}')
    A('v_mov_b32 v14, s15')
    for i in range(16):
        j, hh = i >> 1, i & 1
        A(f's_waitcnt lgkmcnt({15-i})')
        if i == 15:
            A(f'ds_write_b32 v{CONA}, v14')
        A(f'v_mfma_f32_16x16x32_bf16 {q(S+4*hh)}, {q(KV+4*i)}, {q(QF+4*j)}, {"0" if j==0 else q(S+4*hh)}')
    A(f's_add_u32 s{sSLOT}, s{sSLOT}, {SLOT:#x}')
    A(f's_cmp_eq_u32 s{sSLOT}, {NSL*SLOT:#x}')
    A(f's_cselect_b32 s{sSLOT}, 0, s{sSLOT}')
    A('s_nop 4')
    for i in range(4):
        A(f'v_cvt_pk_bf16_f32 v{T+i}, v{S+2*i}, v{S+2*i+1}')
    A('s_mov_b64 exec, s[64:65]')
    A(f'ds_write_b128 v{SCA}, {q(T)}')
    A('s_mov_b64 exec, -1')
    A(f'v_max3_f32 v14, v{S}, v{S+1}, v{S+2}')
    A(f'v_max3_f32 v15, v{S+3}, v{S+4}, v{S+5}')
    A(f'v_max3_f32 v14, v14, v{S+6}, v{S+7}')
    A(f'v_max3_f32 v{M}, v14, v15, v{M}')
    A(f'v_add_u32 v{SCA}, 128, v{SCA}')
    if ctl:
        A(f's_cmp_gt_u32 s{sNEED}, 64')
        A('s_cbranch_scc1 .Lkdone')
        control('.Lktile')
        g.lab('.Lkdone')
    else:
        A(f's_cmp_le_u32 s{sNEED}, 64')
        A('s_cbranch_scc1 .Lktile')
    A(f'v_mov_b32 v15, v{M}')
    A(f'v_subrev_u32 v{SCA}, {64*128}, v{SCA}')
    A('s_nop 0')
    A(f'v_permlane16_swap_b32 v{M}, v15')
    A(f'v_max_f32 v{M}, v{M}, v15')
    A(f'v_mov_b32 v15, v{M}')
    A('s_nop 1')
    A(f'v_permlane32_swap_b32 v{M}, v15')
    A(f'v_max_f32 v{M}, v{M}, v15')
    rbf(M)
    A(f'v_mul_f32 v{NM}, s{sC}, v{M}')

    H = TL
    g.lab('.Lhchk')
    A('s_waitcnt vmcnt(0)')
    A(f'v_perm_b32 v14, v{HV+1}, v{HV}, s46')
    A(f'v_perm_b32 v15, v{HV+3}, v{HV+2}, s47')
    A('v_xor_b32 v14, v14, v15')
    A(f'v_cmp_ne_u32 vcc, v14, v{TAG}')
    A('s_cbranch_vccz .Lhok')
    A(hload)
    A(f's_sub_u32 s{sBUD}, s{sBUD}, 64')
    A('s_cbranch_scc0 .Lhchk')
    A(f's_mov_b32 s{sBUD}, 0')
    A('s_waitcnt vmcnt(0)')
    g.lab('.Lhok')
    for r in range(4):
        A(f'v_and_b32 v{H+r}, 0xffffff00, v{HV+r}')
    for rr in (4, 8):
        for r in range(4):
            A(f'v_add_f32_dpp v{H+r}, v{H+r}, v{H+r} row_ror:{rr} {DPPM}')
    for r in range(4):
        A(f'v_mov_b32 v{H+4+r}, v{H+r}')
    A('s_nop 0')
    for r in range(4):
        A(f'v_permlane16_swap_b32 v{H+r}, v{H+4+r}')
    for r in range(4):
        A(f'v_add_f32 v{H+r}, v{H+r}, v{H+4+r}')
    for r in range(4):
        rbf(H + r)
    for r in range(4):
        A(f'v_mul_f32 v{H+4+r}, {f32(-LOG2E)}, v{H+r}')
    for r in range(4):
        A(f'v_exp_f32 v{H+4+r}, v{H+4+r}')
    A('s_nop 0')
    for r in range(4):
        A(f'v_add_f32 v{H+4+r}, 1.0, v{H+4+r}')
    for r in range(4):
        A(f'v_rcp_f32 v{H+4+r}, v{H+4+r}')
    A('s_nop 0')
    for r in range(4):
        A(f'v_mul_f32 v{H+r}, v{H+r}, v{H+4+r}')
    A(f'v_cvt_pk_bf16_f32 v{H+4}, v{H}, v{H+1}')
    A(f'v_cvt_pk_bf16_f32 v{H+5}, v{H+2}, v{H+3}')
    A('v_and_b32 v14, 1, v2')
    A('v_and_b32 v15, 1, v3')
    A('v_lshlrev_b32 v14, 3, v14')
    A('v_lshl_add_u32 v57, v15, 2, v14')
    A(f'ds_bpermute_b32 v{H+6}, v57, v{H+4}')
    A(f'ds_bpermute_b32 v{H+8}, v57, v{H+5}')
    A('s_mov_b32 s48, 0x00030003')
    A('s_mov_b32 s49, 0x00300030')
    A('s_mov_b32 s50, 0x03000300')
    A('s_mov_b32 s51, 0x30003000')
    A('v_lshl_add_u32 v14, v15, 2, v4')
    A('v_mul_u32_u24 v60, 896, v14')
    A('v_lshrrev_b32 v14, 1, v3')
    A('v_lshl_add_u32 v60, v14, 5, v60')
    A('v_lshl_add_u32 v60, v5, 3, v60')
    A('v_mul_u32_u24 v63, 3584, v15')
    A('v_add_u32 v63, v63, v60')
    A(f'v_add_u32 v63, {WOS}, v63')
    A(f'v_add_u32 v60, {W2S}, v60')
    A('s_waitcnt lgkmcnt(0)')
    A(f'v_cndmask_b32 v{HA}, 0, v{H+6}, s[48:49]')
    A(f'v_cndmask_b32 v{HA+1}, 0, v{H+8}, s[48:49]')
    A(f'v_cndmask_b32 v{HA+2}, 0, v{H+6}, s[50:51]')
    A(f'v_cndmask_b32 v{HA+3}, 0, v{H+8}, s[50:51]')
    RG = TL
    HG = TL + 16
    for i in range(4):
        A(f'v_mov_b32 v{RG+4*i+3}, v{TAG}')
        A(f'v_not_b32 v{HG+4*i+3}, v{TAG}')
    A('v_lshrrev_b32 v57, 2, v1')
    A(f'v_mul_u32_u24 v61, {YROW}, v57')
    A('v_lshl_add_u32 v61, v5, 4, v61')
    A('v_lshrrev_b32 v58, 5, v1')
    A('v_mul_u32_u24 v62, 896, v58')
    A('v_lshl_add_u32 v62, v5, 1, v62')
    A('v_lshl_add_u32 v58, v58, 2, v4')
    A('v_lshlrev_b32 v58, 12, v58')
    A('v_lshl_add_u32 v58, v15, 6, v58')
    A('v_lshl_add_u32 v58, v5, 4, v58')
    A(f'v_add_u32 v57, {RECB-REC:#x}, v58')
    mk_j2(45, 44)
    A('s_lshr_b32 s4, s45, 5')
    A('s_lshl_b32 s4, s4, 16')
    A('s_and_b32 s5, s45, 31')
    A('s_lshl_b32 s5, s5, 7')
    A('s_add_u32 s4, s4, s5')
    A(f's_add_u32 s4, s4, {REC:#x}')
    A('s_add_u32 s5, s4, 0x8000')
    A('s_add_u32 s6, s4, 0x80000')
    A('s_add_u32 s7, s4, 0x88000')
    mk_jv(44, 46)
    A('s_lshl_b32 s44, s44, 12')
    A(f's_add_u32 s44, s44, {REC:#x}')
    A(f's_mul_i32 s45, s45, {YROW}')
    A(f's_add_u32 s45, s45, {YB:#x}')
    A('s_add_u32 s46, s45, 0x1000')
    if o.rpair:
        A('s_andn2_b32 s47, s2, 15')
        A('s_and_b32 s43, s2, 7')
        A('s_lshl_b32 s43, s43, 1')
        A('s_or_b32 s47, s47, s43')
        A('s_bfe_u32 s43, s2, 0x10003')
        A('s_or_b32 s47, s47, s43')
        A('s_lshl_b32 s47, s47, 3')
    else:
        A('s_lshl_b32 s47, s2, 3')
    A(f's_add_u32 s43, s44, {RECB-REC:#x}')
    A(f's_mov_b32 s9, {o.altp}')

    g.L.append('.p2align 6')
    g.lab('.Lvtile')
    A(f'ds_read_b128 {q(T)}, v{SCA}')
    A(f'v_add_u32 v{SCA}, 128, v{SCA}')
    A(f'v_add_u32 v{VAC}, s{sSLOT}, v{VA0}')
    for i in range(1, 8):
        A(f'v_xor_b32 v{VAC+i}, {i*32}, v{VAC}')
    A('s_waitcnt lgkmcnt(0)')
    for i in range(4):
        A(f'v_lshlrev_b32 v{S+2*i}, 16, v{T+i}')
        A(f'v_and_b32 v{S+2*i+1}, 0xffff0000, v{T+i}')
    for i in range(8):
        A(f'v_fma_f32 v{P8+i}, v{S+i}, s{sC}, -v{NM}')
    for i in range(8):
        A(f'v_exp_f32 v{P8+i}, v{P8+i}')
    A('s_nop 0')
    for i in range(4):
        A(f'v_cvt_pk_bf16_f32 v{T+i}, v{P8+2*i}, v{P8+2*i+1}')
    A(f'v_add_f32 v{LS}, v{LS}, v{P8}')
    A(f'v_add_f32 v{P8+1}, v{P8+1}, v{P8+2}')
    A(f'v_add_f32 v{P8+3}, v{P8+3}, v{P8+4}')
    A(f'v_add_f32 v{P8+5}, v{P8+5}, v{P8+6}')
    A(f'v_add_f32 v{LS}, v{LS}, v{P8+7}')
    A(f'v_add_f32 v{P8+1}, v{P8+1}, v{P8+3}')
    A(f'v_add_f32 v{LS}, v{LS}, v{P8+5}')
    A(f'v_add_f32 v{LS}, v{LS}, v{P8+1}')
    for v in range(8):
        A(f's_mov_b64 exec, s[{64+2*v}:{65+2*v}]')
        A(f'v_mov_b64 {q(PV+4*v,2)}, {q(T,2)}')
        A(f'v_mov_b64 {q(PV+4*v+2,2)}, {q(T+2,2)}')
    A('s_mov_b64 exec, -1')
    poll_landed()
    order = [(i & 1) * 8 + (i >> 1) for i in range(16)]
    def vread(i):
        m = order[i]
        for kh in range(2):
            A(f'ds_read_b64_tr_b16 {q(KV+4*i+2*kh,2)}, v{VAC+(m&7)} offset:{kh*8192+(m>>3)*256}')
    PRE = 7
    for i in range(PRE):
        vread(i)
    A(f's_add_u32 s{sNEED}, s{sNEED}, 1')
    A(f's_or_b32 s15, s{sNEED}, s{sCODE}')
    A('v_mov_b32 v14, s15')
    for i in range(16):
        issued = min(16, i + PRE)
        A(f's_waitcnt lgkmcnt({2*(issued-i-1)})')
        m = order[i]
        a = m >> 3
        if i == 15:
            A(f'ds_write_b32 v{CONA}, v14')
        A(f'v_mfma_f32_16x16x32_bf16 {q(O+4*a)}, {q(PV+4*(m&7))}, {q(KV+4*i)}, {q(O+4*a)}')
        if i + PRE < 16:
            vread(i + PRE)
    A(f's_add_u32 s{sSLOT}, s{sSLOT}, {SLOT:#x}')
    A(f's_cmp_eq_u32 s{sSLOT}, {NSL*SLOT:#x}')
    A(f's_cselect_b32 s{sSLOT}, 0, s{sSLOT}')
    if ctl:
        A(f's_cmp_gt_u32 s{sNEED}, {max(o.cps)}')
        A('s_cbranch_scc1 .Lvlast')
        control('.Lvtile')
        g.lab('.Lvlast')
    A(f's_cmp_le_u32 s{sNEED}, 128')
    A('s_cbranch_scc1 .Lvtile')

    g.stamp(3)
    A(f'v_mov_b32 v15, v{LS}')
    A('s_mov_b32 vcc_lo, 0xf0f0f0f0')
    A('s_mov_b32 vcc_hi, 0xf0f0f0f0')
    A(f'v_permlane16_swap_b32 v{LS}, v15')
    A(f'v_add_f32 v{LS}, v{LS}, v15')
    A(f'v_mov_b32 v15, v{LS}')
    A(f'v_mov_b64 {q(RG,2)}, {q(O,2)}')
    A(f'v_mov_b64 {q(RG+8,2)}, {q(O+2,2)}')
    A(f'v_permlane32_swap_b32 v{LS}, v15')
    A(f'v_add_f32 v{LS}, v{LS}, v15')
    A(f'v_cndmask_b32 v15, v{NM}, v{LS}, vcc')
    A(f'v_mov_b64 {q(RG+4,2)}, {q(O+4,2)}')
    A(f'v_mov_b64 {q(RG+12,2)}, {q(O+6,2)}')
    for h in range(2):
        for a in range(2):
            r = RG + 8*h + 4*a
            A(f'v_mov_b32_dpp v{r+2}, v15 quad_perm:[{2*h},{2*h},{2*h},{2*h}] {DPPM}')
            A(f'buffer_store_dwordx4 {q(r)}, v56, {WS}, s44 offen offset:{h*2048+a*1024} {o.recflags}')
    WF = KV
    YD = QF
    YG = PV
    h1loads = [f'buffer_load_dwordx4 {q(HG+4*i)}, v58, {WS}, s{4+i} offen {o.ldflags}' for i in range(4)]
    def wwait(name, bit):
        g.lab(f'.L{name}')
        A(f'ds_read_b32 v14, v{LNDA}')
        A('s_waitcnt lgkmcnt(0)')
        A(f'v_readfirstlane_b32 s{sRAW}, v14')
        A(f's_cmp_ge_u32 s{sRAW}, {bit:#x}')
        A(f's_cbranch_scc1 .L{name}_ok')
        A(f's_sub_u32 s{sBUD}, s{sBUD}, 1')
        A(f's_cbranch_scc0 .L{name}')
        A(f's_mov_b32 s{sBUD}, 0')
        g.lab(f'.L{name}_ok')
    def between():
        if o.dual:
            for i in range(4):
                A(f'buffer_store_dwordx4 {q(RG+4*i)}, v56, {WS}, s43 offen offset:{i*1024} sc1')
        A('s_lshl_b32 s64, s47, 3')
        A(f's_add_u32 s64, s64, {YB:#x}')
        for i in range(1, 16):
            A(f's_add_u32 s{64+i}, s64, {i*16*YROW:#x}')
        wwait('w2wait', W2DONE)
        W2F = PV
        for i in range(14):
            A(f'ds_read_b64_tr_b16 {q(W2F+2*i,2)}, v60 offset:{i*64}')
        for i in range(7):
            A(f's_waitcnt lgkmcnt({12-2*i})')
            A(f'v_mfma_f32_16x16x16_bf16 {q(YD+4*i)}, {q(HA,2)}, {q(W2F+4*i,2)}, 0')
        for i in range(7):
            A(f'v_mfma_f32_16x16x16_bf16 {q(YD+4*i)}, {q(HA+2,2)}, {q(W2F+4*i+2,2)}, {q(YD+4*i)}')
        for ld in h1loads:
            A(ld)
        for i in range(7):
            A(f'v_mov_b32 v{YG+4*i+3}, v{TAG}')
        for i in range(7):
            A(f'v_mul_f32 v{FP+2*i}, v{OMG}, v{YD+4*i}')
            A(f'v_mul_f32 v{FP+2*i+1}, v{OMG+1}, v{YD+4*i+1}')
        wwait('wowait', WDONE)
        for ld in h1loads:
            A(ld)
        for i in range(14):
            A(f'ds_read_b64_tr_b16 {q(WF+4*i,2)}, v63 offset:{i*64}')
            A(f'ds_read_b64_tr_b16 {q(WF+4*i+2,2)}, v63 offset:{i*64+3584}')
    alt = None
    if o.dual:
        alt = (9, o.altp, [f'buffer_load_dwordx4 {q(HG+4*i)}, v57, {WS}, s{4+i} offen {o.ldflags}' for i in range(4)])
    g.apoll('h1', h1loads, [HG+4*i+3 for i in range(4)], [36, 38, 40, 10], TAG, sBUD, o.h1sleep,
            slow=(o.h1thr, o.h1slow) if o.h1slow else None, between=between, alt=alt)
    g.stamp(4)
    for i in range(4):
        A(f'v_mov_b32 v{16+i}, v{HG+4*i+2}')
        A(f'v_mov_b32 v{20+i}, v{HG+4*i+2}')
    for i in range(4):
        if i == 3:
            A('v_max_f32 v36, v16, v17')
        A(f'v_permlane16_swap_b32 v{16+i}, v{20+i}')
    A('v_max_f32 v37, v18, v19')
    A('s_nop 0')
    A(f'v_max_f32_dpp v36, v36, v36 row_ror:4 {DPPM}')
    A(f'v_max_f32_dpp v37, v37, v37 row_ror:4 {DPPM}')
    A('s_nop 0')
    A(f'v_max_f32_dpp v36, v36, v36 row_ror:8 {DPPM}')
    A(f'v_max_f32_dpp v37, v37, v37 row_ror:8 {DPPM}')
    A('v_mov_b32 v38, v36')
    A('v_mov_b32 v39, v37')
    A('s_nop 0')
    A('v_permlane32_swap_b32 v36, v38')
    A('v_permlane32_swap_b32 v37, v39')
    A('v_max_f32 v36, v36, v38')
    A('v_max_f32 v37, v37, v39')
    for i in range(4):
        A(f'v_sub_f32 v{40+i}, v{16+i}, v{36+(i>>1)}')
    for i in range(4):
        A(f'v_exp_f32 v{40+i}, v{40+i}')
    A('s_mov_b32 vcc_lo, 0xaaaaaaaa')
    for b in range(2):
        srcs0 = (HG+8*b, HG+8*b+1, 20+2*b)
        srcs1 = (HG+8*b+4, HG+8*b+5, 21+2*b)
        for k in range(3):
            A(f'v_mul_f32 v{44+3*b+k}, v{40+2*b}, v{srcs0[k]}')
        for k in range(3):
            A(f'v_fmac_f32 v{44+3*b+k}, v{41+2*b}, v{srcs1[k]}')
    A('s_mov_b32 vcc_hi, 0xaaaaaaaa')
    for k in range(3):
        A(f'v_permlane32_swap_b32 v{44+k}, v{47+k}')
    for k in range(3):
        A(f'v_add_f32 v{44+k}, v{44+k}, v{47+k}')
    for rr in (4, 8):
        for k in (2, 0, 1) if rr == 8 else (0, 1, 2):
            if rr == 8 and k == 2:
                A('s_nop 1')
            A(f'v_add_f32_dpp v{44+k}, v{44+k}, v{44+k} row_ror:{rr} {DPPM}')
            if rr == 8 and k == 2:
                A('v_rcp_f32 v46, v46')
    A('v_mul_f32 v44, v44, v46')
    A('v_mul_f32 v45, v45, v46')
    A('v_cvt_pk_bf16_f32 v44, v44, v45')
    A('v_mov_b32 v45, v44')
    A('s_nop 1')
    A('v_permlane32_swap_b32 v44, v45')
    A('s_nop 1')
    for nn in range(4):
        A(f'v_mov_b32_dpp v{36+nn}, v45 quad_perm:[{nn},{nn},{nn},{nn}] {DPPM}')
    for nn in range(4):
        A(f'v_cndmask_b32_dpp v{36+nn}, v44, v{36+nn}, vcc quad_perm:[{nn},{nn},{nn},{nn}] {DPPM}')
    for nn in range(4):
        A(f'v_cndmask_b32 v{48+nn}, 0, v{36+nn}, s[48:49]')
    for nn in range(4):
        A(f'v_cndmask_b32 v{52+nn}, 0, v{36+nn}, s[50:51]')
    A('s_waitcnt lgkmcnt(0)')
    seq = []
    for i in range(7):
        seq.append((i, 0))
        if i >= 1:
            seq.append((i-1, 1))
    seq.append((6, 1))
    for n, (i, e) in enumerate(seq):
        A(f'v_mfma_f32_16x16x32_bf16 {q(YD+4*i)}, {q(48+4*e)}, {q(WF+8*i+4*e)}, {"0" if e==0 else q(YD+4*i)}')
    for i in range(7):
        A(f'v_fma_f32 v{YG+4*i}, v{G0}, v{YD+4*i}, v{FP+2*i}')
        A(f'v_fma_f32 v{YG+4*i+1}, v{G0+1}, v{YD+4*i+1}, v{FP+2*i+1}')
        A(f'buffer_store_dwordx4 {q(YG+4*i)}, v56, {WS}, s{45+(i>>2)} offen offset:{(i&3)*1024} {o.stflags}')
    g.stamp(5)
    A('s_cmp_ge_u32 s2, 112')
    A('s_cbranch_scc1 .Lfin')
    for i in range(16):
        A(f'v_not_b32 v{KV+4*i+3}, v{TAG}')
    if o.h2sleep0 < 0:
        A('s_waitcnt vmcnt(0)')
    elif o.h2sleep0:
        A(f's_sleep {o.h2sleep0}')
    mk = [8, 10, 12, 14, 20, 22, 24, 26, 28, 30, 32, 34, 36, 38, 40, 42]
    g.apoll('h2', [f'buffer_load_dwordx4 {q(KV+4*i)}, v61, {WS}, s{64+i} offen {o.ldflags}' for i in range(16)],
            [KV+4*i+3 for i in range(16)], mk, TAG, sBUD, o.h2sleep)
    for k in range(4):
        A(f'v_pk_add_f32 v[{36+2*k}:{37+2*k}], {q(KV+8*k,2)}, {q(KV+8*k+4,2)}')
    for k in range(4):
        A(f'v_pk_add_f32 v[{44+2*k}:{45+2*k}], {q(KV+32+8*k,2)}, {q(KV+32+8*k+4,2)}')
    for k in range(4):
        A(f'v_pk_add_f32 v[{36+2*k}:{37+2*k}], v[{36+2*k}:{37+2*k}], v[{44+2*k}:{45+2*k}]')
    A('v_pk_add_f32 v[36:37], v[36:37], v[38:39]')
    A('v_pk_add_f32 v[40:41], v[40:41], v[42:43]')
    A('v_pk_add_f32 v[36:37], v[36:37], v[40:41]')
    A('s_nop 1')
    A('v_permlane32_swap_b32 v36, v37')
    A('v_add_f32 v36, v36, v37')
    A('v_mov_b32 v37, v36')
    A('s_nop 1')
    A('v_permlane16_swap_b32 v36, v37')
    A('v_add_f32 v36, v36, v37')
    for rr in (4, 8):
        A('s_nop 1')
        A(f'v_add_f32_dpp v36, v36, v36 row_ror:{rr} {DPPM}')
    A('v_cvt_pk_bf16_f32 v36, v36, v36')
    A('s_mov_b32 exec_lo, 0xf')
    A('s_mov_b32 exec_hi, 0xf')
    A(f'buffer_store_short v36, v62, s[{sOUT}:{sOUT+3}], s47 offen')
    A('s_cmp_lg_u32 s2, 0')
    A('s_cbranch_scc1 .Lfin')
    A('s_mov_b64 exec, 1')
    A(f'buffer_store_dword v{TAG}, v59, {WS}, 0 offen')
    g.lab('.Lfin')
    if o.diag:
        g.stamp(6)
        A('s_mov_b64 exec, 1')
        A('s_lshl_b32 s4, s2, 7')
        A(f's_add_u32 s4, s4, {STAMP:#x}')
        for k in range(7):
            A(f'v_mov_b32 v14, s{86+2*k}')
            A(f'v_mov_b32 v15, s{87+2*k}')
            A(f'buffer_store_dwordx2 v[14:15], v59, {WS}, s4 offen offset:{8*k}')
            A('s_nop 1')
        A('v_mov_b32 v14, s101')
        A('v_mov_b32 v15, s87')
        A(f'buffer_store_dwordx2 v[14:15], v59, {WS}, s4 offen offset:56')
        if ctl:
            A('s_mov_b64 exec, -1')
            A('v_lshlrev_b32 v14, 2, v1')
            A('s_lshl_b32 s4, s2, 8')
            A(f's_add_u32 s4, s4, {STAMP+0x20000:#x}')
            A(f'buffer_store_dword v246, v14, {WS}, s4 offen')
    g.lab('.Lexit')
    A('s_endpgm')

    ref = open('cdna_kernels/' + NAME + '.s.ref').read().split('\n')
    head = [l for l in ref if l.startswith(';') and '@launch' not in l and 'Override launch' not in l and 'grid=ceil' not in l]
    txt = '\n'.join(head) + '\n'
    txt += f'; @launch grid=(256,1,1) block=(128,1,1) lds={LDS_BYTES}\n'
    txt += '.amdgcn_target "amdgcn-amd-amdhsa--gfx950"\n.text\n'
    txt += '\n'.join(g.L) + '\n'
    txt += f'''.section .rodata,"a"
.p2align 6
.amdhsa_kernel {K}
  .amdhsa_next_free_vgpr 256
  .amdhsa_next_free_sgpr 102
  .amdhsa_accum_offset 256
  .amdhsa_group_segment_fixed_size 0
  .amdhsa_kernarg_size 96
  .amdhsa_user_sgpr_count 2
  .amdhsa_user_sgpr_kernarg_segment_ptr 1
  .amdhsa_system_sgpr_workgroup_id_x 1
  .amdhsa_float_denorm_mode_32 3
.end_amdhsa_kernel
'''
    return txt


def parser():
    p = argparse.ArgumentParser()
    il = lambda x: [int(v) for v in x.split(',') if v]
    p.add_argument('-o', default='cdna_kernels/' + NAME + '.s')
    p.add_argument('--window', type=int, default=18)
    p.add_argument('--gs', type=int, default=2)
    p.add_argument('--unit', type=int, default=8)
    p.add_argument('--idxsh', type=int, default=3)
    p.add_argument('--perm', type=il, default=[0, 2, 1, 3])
    p.add_argument('--qwait', type=int, default=3)
    p.add_argument('--cfirst', type=int, default=15)
    p.add_argument('--wk', type=il, default=[])
    p.add_argument('--w1', type=il, default=[28,28,28,28,28,28,28,24])
    p.add_argument('--icpf', type=int, default=16)
    p.add_argument('--wins', type=il, default=[19,20,21,22,24])
    p.add_argument('--thr', type=il, default=[3,6,10,12,13])
    p.add_argument('--c0', type=int, default=2)
    p.add_argument('--wd', type=int, default=21)
    p.add_argument('--ctlonly', action='store_true')
    p.add_argument('--cps', type=il, default=[28,52,76,92,108,116])
    p.add_argument('--nb', type=int, default=2)
    p.add_argument('--loc', type=int, default=1)
    p.add_argument('--recflags', default='')
    p.add_argument('--dual', type=int, default=1)
    p.add_argument('--altp', type=int, default=100)
    p.add_argument('--delta', type=int, default=0)
    p.add_argument('--farn', type=int, default=2)
    p.add_argument('--farsub', type=int, default=4)
    p.add_argument('--gm', type=il, default=[1,2,4,8,3,12,15])
    p.add_argument('--thr2', type=il, default=[])
    p.add_argument('--late', type=int, default=100)
    p.add_argument('--rx', type=int, default=1)
    p.add_argument('--rpair', type=int, default=1)
    p.add_argument('--nobr', action='store_true')
    p.add_argument('--pairskip', type=int, default=1)
    p.add_argument('--diag', action='store_true')
    p.add_argument('--prog', action='store_true')
    p.add_argument('--kflags', default='nt')
    p.add_argument('--vflags', default='nt')
    p.add_argument('--wqflags', default='nt')
    p.add_argument('--stflags', default='sc1')
    p.add_argument('--ldflags', default='sc1')
    p.add_argument('--lsleep', type=int, default=1)
    p.add_argument('--qsleep', type=int, default=6)
    p.add_argument('--h1sleep', type=int, default=0)
    p.add_argument('--h1thr', type=int, default=16)
    p.add_argument('--h1slow', type=int, default=0)
    p.add_argument('--h2sleep0', type=int, default=-1)
    p.add_argument('--h2sleep', type=int, default=0)
    return p


if __name__ == '__main__':
    o = parser().parse_args()
    open(o.o, 'w').write(gen(o))
```

```python
import sys, struct, argparse

NAME = 'gated_mix__gqa_block_cached__dense_activation_silu__decode'

RING = 0
SLOT = 16384
NSL = 9
STG = RING + 8 * SLOT
W1S = RING + 7 * SLOT
W2S = RING + (128 % NSL) * SLOT
WOS = RING + (129 % NSL) * SLOT
SCB = RING + NSL * SLOT
XS = SCB + 8192
GS = XS + 2048
QS = GS + 1024
FL = QS + 1024
LDS_BYTES = FL + 512

SEN = 0x10000
QP = 0x20000
HP = 0x40000
FLG = 0x500000
REC = 0x100000
YB = 0x200000
YROW = 5120
NRED = 80
RECB = 0x600000
WS_BYTES = 0x700000
STAMP = 0x400000
YDONE = 0x10000

def f32(x):
    return '0x%08x' % struct.unpack('<I', struct.pack('<f', x))[0]

LOG2E = 1.4426950408889634
DPPM = 'row_mask:0xf bank_mask:0xf'


class G:
    def __init__(self, o):
        self.L = []
        self.o = o
        self.uid = 0

    def A(self, s):
        self.L.append('    ' + s)

    def lab(self, s):
        self.L.append(s + ':')

    def new(self, p):
        self.uid += 1
        return f'.L{p}_{self.uid}'

    def srd(self, d, ptr, nbytes):
        A = self.A
        A(f's_mov_b32 s{d}, s{ptr}')
        A(f's_mov_b32 s{d+1}, s{ptr+1}')
        A(f's_mov_b32 s{d+2}, {nbytes:#x}')
        A(f's_mov_b32 s{d+3}, 0x20000')

    def stamp(self, k):
        if self.o.diag:
            self.A(f's_memrealtime s[{86+2*k}:{87+2*k}]')
            self.A('s_waitcnt lgkmcnt(0)')

    def apoll(self, name, loads, tagregs, masks, TAG, sBUD, sleep, slow=None, between=None, alt=None, sen=None, thro=-1):
        A = self.A
        if not sen:
            for ld in loads:
                A(ld)
        if between:
            between()
        self.lab(f'.L{name}_loop')
        if sleep:
            A(f's_sleep {sleep}')
        if thro >= 0:
            A(f's_waitcnt vmcnt({thro})')
        for t, m in zip(tagregs, masks):
            A(f'v_cmp_ne_u32 s[{m}:{m+1}], v{t}, v{TAG}')
        A(f's_or_b64 vcc, s[{masks[0]}:{masks[0]+1}], s[{masks[1]}:{masks[1]+1}]')
        for m in masks[2:]:
            A(f's_or_b64 vcc, vcc, s[{m}:{m+1}]')
        A(f's_cbranch_scc0 .L{name}_ok')
        if sen:
            lnda, bit, sreg, own = sen
            A('s_waitcnt lgkmcnt(0)')
            A('v_readfirstlane_b32 vcc_lo, v14')
            A(f'ds_read_b32 v14, v{lnda}')
            A(f's_cmp_ge_u32 vcc_lo, {bit:#x}')
            A(f's_cselect_b32 s{sreg}, -1, s{own}')
        if self.o.pairskip and len(loads) > 4:
            for k in range(0, len(loads), 2):
                sk = self.new('sk')
                m0_, m1_ = masks[k], masks[k+1]
                if sen:
                    A(f's_bitcmp0_b32 s{sreg}, {k//2}')
                    A(f's_cbranch_scc1 {sk}')
                A(f's_or_b64 exec, s[{m0_}:{m0_+1}], s[{m1_}:{m1_+1}]')
                A(f's_cbranch_execz {sk}')
                A('s_wqm_b64 exec, exec')
                A(loads[k])
                A(loads[k+1])
                self.lab(sk)
        else:
            for ld, m in zip(loads, masks):
                sk = self.new('sk')
                A(f's_wqm_b64 exec, s[{m}:{m+1}]')
                if not self.o.nobr:
                    A(f's_cbranch_execz {sk}')
                A(ld)
                self.lab(sk)
        A('s_mov_b64 exec, -1')
        if slow:
            thr, extra = slow
            sk = self.new('sk')
            A('s_bcnt1_i32_b64 vcc_lo, vcc')
            A(f's_cmp_le_u32 vcc_lo, {thr}')
            A(f's_cbranch_scc1 {sk}')
            A(f's_sleep {extra}')
            self.lab(sk)
        if alt:
            cnt, period, altloads = alt
            A(f's_sub_u32 s{cnt}, s{cnt}, 1')
            A(f's_cbranch_scc0 .L{name}_loop')
            A(f's_mov_b32 s{cnt}, {period}')
            A('s_waitcnt vmcnt(0)')
            for ld, t in zip(altloads, tagregs):
                sk = self.new('sk')
                A(f'v_cmp_ne_u32 vcc, v{t}, v{TAG}')
                A('s_wqm_b64 exec, vcc')
                A(f's_cbranch_execz {sk}')
                A(ld)
                self.lab(sk)
                A('s_mov_b64 exec, -1')
            A('s_waitcnt vmcnt(0)')
            A(f's_sub_u32 s{sBUD}, s{sBUD}, 1024')
        else:
            A(f's_sub_u32 s{sBUD}, s{sBUD}, 16')
        A(f's_cbranch_scc0 .L{name}_loop')
        A(f's_mov_b32 s{sBUD}, 0')
        self.lab(f'.L{name}_ok')


def q(b, n=4):
    return f'v[{b}:{b+n-1}]'


def gen(o):
    g = G(o)
    A = g.A
    W = o.window
    K = NAME + '_kernel'
    pX, pK, pV, pWQ, pWO, pW1, pW2, pG, pOUT, pWS = 36, 38, 40, 42, 44, 48, 50, 52, 54, 58

    def mk_jv(d, t):
        if o.loc:
            A(f's_and_b32 s{d}, s2, 7')
            A(f's_lshl_b32 s{d}, s{d}, 4')
            A(f's_bfe_u32 s{t}, s2, 0x40003')
            A(f's_or_b32 s{d}, s{d}, s{t}')
            A(f's_and_b32 s{t}, s2, 0x80')
            A(f's_or_b32 s{d}, s{d}, s{t}')
        else:
            A(f's_mov_b32 s{d}, s2')
    def mk_j2(d, t):
        if o.loc:
            A(f's_and_b32 s{d}, s2, 7')
            A(f's_lshl_b32 s{d}, s{d}, 5')
            A(f's_lshr_b32 s{t}, s2, 3')
            A(f's_or_b32 s{d}, s{d}, s{t}')
        else:
            A(f's_mov_b32 s{d}, s2')
    g.L.append(f'.globl {K}\n.p2align 8\n.type {K},@function\n{K}:')
    A('s_cmp_ge_u32 s2, 256')
    A('s_cbranch_scc1 .Lexit')
    if o.diag:
        A('s_memrealtime s[30:31]')
    A('s_load_dwordx16 s[36:51], s[0:1], 0')
    A('s_load_dwordx8 s[52:59], s[0:1], 64')
    if o.icpf:
        A(f's_cmp_ge_u32 s2, {o.icpf}')
        A('s_cbranch_scc1 .Lnopf')
        A('s_getpc_b64 s[4:5]')
        g.lab('.Lpc')
        A('v_lshlrev_b32 v9, 7, v0')
        for i in range(3 if (len(o.wins) > 2 and o.nb == 8) else 2):
            A(f'v_add_u32 v10, {0x4000*i:#x}, v9')
            A('v_min_u32 v10, .Lexit-.Lpc, v10')
            A(f'global_load_dword v{249-i}, v10, s[4:5]')
        g.lab('.Lnopf')
    A('v_lshrrev_b32 v1, 6, v0')
    A('v_lshlrev_b32 v8, 2, v0')
    A('v_readfirstlane_b32 s3, v1')
    A(f'v_add_u32 v8, {FL}, v8')
    A('v_mov_b32 v14, 0')
    A('ds_write_b32 v8, v14')
    A('v_and_b32 v1, 63, v0')
    A('s_cmp_lg_u32 s3, 0')
    A('s_cbranch_scc1 .Lcons')

    gs, U, sh = o.gs, o.unit, o.idxsh
    lg = gs.bit_length() - 1
    A(f's_lshr_b32 s17, s2, {sh}')
    A(f's_and_b32 s17, s17, {gs-1}')
    A(f's_lshr_b32 s18, s2, {sh+lg}')
    A(f's_lshl_b32 s18, s18, {sh}')
    if o.rx == 1:
        A('s_lshr_b32 s19, s2, 4')
        A('s_xor_b32 s19, s19, s2')
        A(f's_and_b32 s19, s19, {(1<<sh)-1}')
    elif o.rx == 2:
        A('s_lshr_b32 s19, s2, 4')
        A('s_add_u32 s19, s19, s2')
        A(f's_and_b32 s19, s19, {(1<<sh)-1}')
    elif o.rx == 3:
        A('s_lshr_b32 s19, s2, 5')
        A('s_add_u32 s19, s19, s2')
        A(f's_and_b32 s19, s19, {(1<<sh)-1}')
    else:
        A(f's_and_b32 s19, s2, {(1<<sh)-1}')
    A('s_or_b32 s18, s18, s19')
    if o.loc:
        mk_jv(18, 19)
        A('s_lshr_b32 s18, s18, 1')
    A(f's_lshl_b32 s16, s18, {20+lg}')
    A(f's_mul_i32 s17, s17, {U*4096}')
    A('s_add_u32 s16, s16, s17')
    A('v_lshrrev_b32 v3, 5, v1')
    A('v_and_b32 v5, 31, v1')
    A('v_lshlrev_b32 v4, 1, v3')
    A('v_xor_b32 v5, v5, v4')
    A('v_lshlrev_b32 v5, 4, v5')
    A('v_lshl_add_u32 v20, v3, 9, v5')
    for i in range(1, 4):
        A(f'v_xor_b32 v{20+i}, {i*64}, v20')
    A(f'v_mov_b32 v7, {FL+256}')
    A('v_lshlrev_b32 v24, 4, v1')
    j0 = (W - 1) % 16
    lag = (W - 1) // 16 + 1
    A('s_mov_b32 s20, -7')
    A('s_mov_b32 s22, 0')
    A('s_mov_b32 s27, s16')
    A('s_mov_b32 s24, 0')
    A(f's_mov_b32 s25, {1<<22}')
    mk_j2(28, 29)
    A('s_lshr_b32 s4, s28, 3')
    A('s_lshl_b32 s4, s4, 7')
    A('s_bfe_u32 s5, s28, 0x20001')
    A('s_lshl_b32 s5, s5, 5')
    A('s_add_u32 s4, s4, s5')
    A('s_and_b32 s5, s28, 1')
    A('s_lshl_b32 s5, s5, 3')
    A('s_add_u32 s4, s4, s5')
    A('s_mul_i32 s4, s4, 896')
    A('s_mul_i32 s6, s2, 7168')
    A('s_waitcnt lgkmcnt(0)')
    g.srd(8, pK, 0x10000000)
    g.srd(60, pWO, 4096 * 896)
    g.srd(64, pW2, 1792 * 896)
    g.srd(72, pWS, WS_BYTES)
    A('s_lshr_b32 s76, s28, 5')
    A('s_lshl_b32 s76, s76, 16')
    A('s_and_b32 s77, s28, 31')
    A('s_lshl_b32 s77, s77, 7')
    A('s_add_u32 s76, s76, s77')
    A(f's_add_u32 s76, s76, {REC:#x}')
    A('s_add_u32 s77, s76, 0x8000')
    A('s_add_u32 s78, s76, 0x80000')
    A('s_add_u32 s79, s76, 0x88000')
    A(f's_mul_i32 s80, s28, {YROW}')
    A(f's_add_u32 s80, s80, {YB:#x}')
    A('s_add_u32 s81, s80, 0x1000')
    A('s_mov_b32 s48, 0x00030003')
    A('s_mov_b32 s49, 0x00300030')
    A('s_mov_b32 s50, 0x03000300')
    A('s_mov_b32 s51, 0x30003000')
    A(f's_mov_b32 s29, {o.altp}')
    A(f'v_add_u32 v25, {XS}, v24')
    if o.diag:
        g.srd(68, pWS, STAMP + 0x20000)
        A('v_mov_b32 v30, 0')
    A('s_barrier')
    spins = []
    def check(name):
        A('s_cmp_lt_i32 s24, s20')
        A(f's_cbranch_scc1 .Lspin{name}')
        g.lab(f'.Lgo{name}')
        spins.append(name)
    def body(name, wins, first=False):
        NB = len(wins)
        for tt in range(NB):
            Wd = wins[tt]
            if not first:
                check(f'{name}{tt}')
            elif tt == 7:
                A('s_cmp_lt_i32 s24, 1')
                A('s_cbranch_scc1 .Lspinf')
                g.lab('.Lgof')
            for j in range(16):
                if j % 4 == 0:
                    k = tt * 4 + o.perm[j // 4]
                    A(f's_add_u32 m0, s22, {RING + j*1024:#x}')
                    A(f's_add_u32 s23, s16, {((k//U)*gs*U + k % U)*4096:#x}')
                if not (first and tt * 16 + j < Wd):
                    A(f's_waitcnt vmcnt({Wd-1})')
                elif j % 4 == 0:
                    A('s_nop 0')
                A(f'buffer_load_dwordx4 v{20+(j&3)}, s[8:11], s23 offen offset:{(j&3)*1024} {o.kflags} lds')
                if j == (Wd - 1) % 16:
                    if first:
                        v = tt - (Wd - 1) // 16
                        if v > 0:
                            A(f'v_mov_b32 v14, {v}')
                            A('ds_write_b32 v8, v14')
                    else:
                        A(f's_add_u32 s21, s20, {(7 if j <= 9 else 6) - (Wd - 1) // 16}')
                        A('v_mov_b32 v14, s21')
                        A('ds_write_b32 v8, v14')
                if o.prog and j == 0 and tt % 2 == 0:
                    A('s_memrealtime s[86:87]')
                if j == 12:
                    A(f's_add_u32 s22, s22, {SLOT:#x}')
                    A(f's_cmp_eq_u32 s22, {NSL*SLOT:#x}')
                    A('s_cselect_b32 s22, 0, s22')
                if j == 9:
                    if not first or tt >= 6:
                        A('ds_read_b32 v15, v7')
                    A('s_add_u32 s20, s20, 1')
                if j == 13 and tt == NB - 1:
                    if name == 'k':
                        A('s_mov_b32 s16, s27')
                    else:
                        A(f's_add_u32 s16, s16, {16384*gs*NB:#x}')
                        if not o.wk:
                            A('s_cmp_eq_u32 s20, 57')
                            A('s_cselect_b32 s16, s27, s16')
                if j == 14 and (not first or tt >= 6 or o.prog):
                    A('s_waitcnt lgkmcnt(0)')
                    if not first or tt >= 6:
                        A('v_readfirstlane_b32 s19, v15')
                        A('s_and_b32 s24, s19, 0xffff')
                if o.prog and j == 15 and tt % 2 == 1:
                    A('s_add_u32 s17, s20, 6')
                    A('s_lshr_b32 m0, s17, 1')
                    A('s_nop 0')
                    A('v_writelane_b32 v30, s86, m0')
    A(f's_mov_b32 s26, {49 if o.wk else 57}')
    body('f', o.w1 or [W] * 8, True)
    wins = [W] + o.wins
    if o.c0:
        A(f's_branch .Lload{o.c0}')
    for i, Wd in enumerate(wins):
        g.L.append('.p2align 6')
        g.lab(f'.Lload{i}')
        body(f'm{i}_', [Wd] * o.nb)
        A('s_cmp_ge_i32 s20, s26')
        A('s_cbranch_scc1 .Lturn')
        if i + 1 == len(wins):
            g.lab('.Lsel')
        for k in range(len(wins) - 1):
            A(f's_cmp_lt_u32 s19, {(k + 1) << 16:#x}')
            A(f's_cbranch_scc1 .Lload{k}')
        A(f's_branch .Lload{len(wins)-1}')
    g.lab('.Lturn')
    A('s_cmp_gt_i32 s20, 57')
    A('s_cbranch_scc1 .Ldrain')
    A('s_mov_b32 s26, 121')
    if o.wk:
        body('k', o.wk)
    A(f's_mov_b32 s8, s{pV}')
    A(f's_mov_b32 s9, s{pV+1}')
    A('s_branch .Lsel')
    g.lab('.Ldrain')
    NX = 23
    HA, G0, TAG = 248, 252, 244
    OMG = G0 + 2
    HG, WF, YD, YG, W2F = 224, 64, 128, 160, 188
    fp = lambda i: (120 + i) if i < 8 else (208 + i)
    WS = 's[72:75]'
    W = o.wd or W
    todo = list(range(128 - lag + 1, 129))
    def flag(c):
        A(f'v_mov_b32 v14, {c}')
        A('ds_write_b32 v8, v14')
        if c == 128 and o.diag:
            A('s_memrealtime s[86:87]')
    A('s_add_u32 s20, s20, 1')
    check('w')
    for e in range(NX):
        if e < 7:
            A(f's_mov_b32 m0, {W2S + e*1024}')
            A(f's_add_u32 s23, s6, {e*1024}')
            srd = 64
        else:
            k = e - 7
            a_, nn, u = k >> 3, (k >> 1) & 3, k & 1
            if k == 0:
                A('s_mov_b32 exec_hi, 0x00ffffff')
            A(f's_mov_b32 m0, {WOS + k*896}')
            A(f's_add_u32 s23, s4, {(4*a_+16*u+nn)*896}')
            srd = 60
        A(f's_waitcnt vmcnt({W-1})')
        while todo and 2048 + e >= 16 * todo[0] - 1 + W:
            flag(todo.pop(0))
        A(f'buffer_load_dwordx4 v24, s[{srd}:{srd+3}], s23 offen nt lds')
        if e == 0:
            A(f'ds_read_b128 {q(HA)}, v25')
            A(f'ds_read_b128 {q(G0)}, v25 offset:1024')
            A(f'ds_read_b128 {q(TAG)}, v25 offset:2048')
        if e == 3:
            A('s_waitcnt lgkmcnt(0)')
            for i in range(4):
                A(f'v_not_b32 v{HG+4*i+3}, v{TAG}')
        if e == 4:
            for i in range(5):
                A(f'v_mov_b32 v{YG+4*i+3}, v{TAG}')
        if e == 5:
            A(f'v_add_u32 v57, {RECB-REC:#x}, v{TAG+1}')
    for c in todo:
        A(f's_waitcnt vmcnt({2048 + NX - 16*c})')
        flag(c)
    A('s_mov_b64 exec, -1')
    h1loads = [f'buffer_load_dwordx4 {q(HG+4*i)}, v{TAG+1}, {WS}, s{76+i} offen {o.ldflags}' for i in range(4)]
    A('s_waitcnt vmcnt(16) lgkmcnt(0)')
    for i in range(14):
        A(f'ds_read_b64_tr_b16 {q(W2F+2*i,2)}, v{TAG+2} offset:{i*64}')
    for i in range(7):
        A(f's_waitcnt lgkmcnt({12-2*i})')
        A(f'v_mfma_f32_16x16x16_bf16 {q(YD+4*i)}, {q(HA,2)}, {q(W2F+4*i,2)}, 0')
    for i in range(7):
        A(f'v_mfma_f32_16x16x16_bf16 {q(YD+4*i)}, {q(HA+2,2)}, {q(W2F+4*i+2,2)}, {q(YD+4*i)}')
    for ld in h1loads:
        A(ld)
    A('s_nop 3')
    for i in range(7):
        A(f'v_mul_f32 v{fp(2*i)}, v{OMG}, v{YD+4*i}')
        A(f'v_mul_f32 v{fp(2*i+1)}, v{OMG+1}, v{YD+4*i+1}')
    A('s_waitcnt vmcnt(12)')
    for ld in h1loads:
        A(ld)
    A('s_waitcnt vmcnt(8)')
    def between():
        for i in range(14):
            A(f'ds_read_b64_tr_b16 {q(WF+4*i,2)}, v{TAG+3} offset:{i*64}')
            A(f'ds_read_b64_tr_b16 {q(WF+4*i+2,2)}, v{TAG+3} offset:{i*64+3584}')
    alt = (29, o.altp, [f'buffer_load_dwordx4 {q(HG+4*i)}, v57, {WS}, s{76+i} offen {o.ldflags}' for i in range(4)])
    g.apoll('h1', h1loads, [HG+4*i+3 for i in range(4)], [36, 38, 40, 10], TAG, 25, o.h1sleep, between=between, alt=alt, thro=o.h1thro)
    g.stamp(4)
    for i in range(4):
        A(f'v_mov_b32 v{16+i}, v{HG+4*i+2}')
        A(f'v_mov_b32 v{20+i}, v{HG+4*i+2}')
    for i in range(4):
        if i == 3:
            A('v_max_f32 v36, v16, v17')
        A(f'v_permlane16_swap_b32 v{16+i}, v{20+i}')
    A('v_max_f32 v37, v18, v19')
    A('s_nop 0')
    A(f'v_max_f32_dpp v36, v36, v36 row_ror:4 {DPPM}')
    A(f'v_max_f32_dpp v37, v37, v37 row_ror:4 {DPPM}')
    A('s_nop 0')
    A(f'v_max_f32_dpp v36, v36, v36 row_ror:8 {DPPM}')
    A(f'v_max_f32_dpp v37, v37, v37 row_ror:8 {DPPM}')
    A('v_mov_b32 v38, v36')
    A('v_mov_b32 v39, v37')
    A('s_nop 0')
    A('v_permlane32_swap_b32 v36, v38')
    A('v_permlane32_swap_b32 v37, v39')
    A('v_max_f32 v36, v36, v38')
    A('v_max_f32 v37, v37, v39')
    for i in range(4):
        A(f'v_sub_f32 v{40+i}, v{16+i}, v{36+(i>>1)}')
    for i in range(4):
        A(f'v_exp_f32 v{40+i}, v{40+i}')
    A('s_mov_b32 vcc_lo, 0xaaaaaaaa')
    for b in range(2):
        srcs0 = (HG+8*b, HG+8*b+1, 20+2*b)
        srcs1 = (HG+8*b+4, HG+8*b+5, 21+2*b)
        for k in range(3):
            A(f'v_mul_f32 v{44+3*b+k}, v{40+2*b}, v{srcs0[k]}')
        for k in range(3):
            A(f'v_fmac_f32 v{44+3*b+k}, v{41+2*b}, v{srcs1[k]}')
    A('s_mov_b32 vcc_hi, 0xaaaaaaaa')
    for k in range(3):
        A(f'v_permlane32_swap_b32 v{44+k}, v{47+k}')
    for k in range(3):
        A(f'v_add_f32 v{44+k}, v{44+k}, v{47+k}')
    for rr in (4, 8):
        for k in (2, 0, 1) if rr == 8 else (0, 1, 2):
            if rr == 8 and k == 2:
                A('s_nop 1')
            A(f'v_add_f32_dpp v{44+k}, v{44+k}, v{44+k} row_ror:{rr} {DPPM}')
            if rr == 8 and k == 2:
                A('v_rcp_f32 v46, v46')
    A('v_mul_f32 v44, v44, v46')
    A('v_mul_f32 v45, v45, v46')
    A('v_cvt_pk_bf16_f32 v44, v44, v45')
    A('v_mov_b32 v45, v44')
    A('s_nop 1')
    A('v_permlane32_swap_b32 v44, v45')
    A('s_nop 1')
    for nn in range(4):
        A(f'v_mov_b32_dpp v{36+nn}, v45 quad_perm:[{nn},{nn},{nn},{nn}] {DPPM}')
    for nn in range(4):
        A(f'v_cndmask_b32_dpp v{36+nn}, v44, v{36+nn}, vcc quad_perm:[{nn},{nn},{nn},{nn}] {DPPM}')
    for nn in range(4):
        A(f'v_cndmask_b32 v{48+nn}, 0, v{36+nn}, s[48:49]')
    for nn in range(4):
        A(f'v_cndmask_b32 v{52+nn}, 0, v{36+nn}, s[50:51]')
    A('s_waitcnt lgkmcnt(0)')
    seq = []
    for i in range(7):
        seq.append((i, 0))
        if i >= 1:
            seq.append((i-1, 1))
    seq.append((6, 1))
    for n, (i, e) in enumerate(seq):
        A(f'v_mfma_f32_16x16x32_bf16 {q(YD+4*i)}, {q(48+4*e)}, {q(WF+8*i+4*e)}, {"0" if e==0 else q(YD+4*i)}')
    for v in range(14):
        A(f'v_fma_f32 v{YG+4*(v//3)+v%3}, v{G0+(v&1)}, v{YD+4*(v>>1)+(v&1)}, v{fp(v)}')
        if v % 3 == 2 or v == 13:
            k = v // 3
            A(f'buffer_store_dwordx4 {q(YG+4*k)}, v24, {WS}, s{80+(k>>2)} offen offset:{(k&3)*1024} {o.stflags}')
    g.stamp(5)
    A(f's_waitcnt vmcnt({o.yw})')
    A(f'v_mov_b32 v14, {YDONE + 128:#x}')
    A('ds_write_b32 v8, v14')
    if o.diag:
        A('s_waitcnt lgkmcnt(0)')
        A('v_mov_b32 v16, s86')
        A('v_mov_b32 v17, s87')
        A('v_mov_b32 v18, 0')
        A('v_mov_b32 v19, 0')
        A('s_lshl_b32 s17, s2, 7')
        A(f's_add_u32 s17, s17, {STAMP+64:#x}')
        A('s_mov_b64 exec, 1')
        A('buffer_store_dwordx4 v[16:19], v19, s[68:71], s17 offen')
        for k in range(4):
            A(f'v_mov_b32 v{32+k}, s{94+k}')
        A('s_sub_u32 s17, s17, 32')
        A('buffer_store_dwordx4 v[32:35], v19, s[68:71], s17 offen')
        A('s_mov_b64 exec, -1')
        A('v_lshlrev_b32 v19, 2, v1')
        A('s_lshl_b32 s17, s2, 8')
        A(f's_add_u32 s17, s17, {STAMP+0x10000:#x}')
        A('buffer_store_dword v30, v19, s[68:71], s17 offen')
    A('s_endpgm')
    for tt in spins + ['f']:
        g.lab(f'.Lspin{tt}')
        A('ds_read_b32 v15, v7')
        A('s_waitcnt lgkmcnt(0)')
        A('v_readfirstlane_b32 s24, v15')
        A('s_and_b32 s24, s24, 0xffff')
        A('s_cmp_ge_i32 s24, 1' if tt == 'f' else 's_cmp_ge_i32 s24, s20')
        A(f's_cbranch_scc1 .Lgo{tt}')
        A('s_sleep 1')
        A('s_sub_u32 s25, s25, 1')
        A(f's_cbranch_scc0 .Lspin{tt}')
        A('s_mov_b32 s25, 0')
        A(f's_branch .Lgo{tt}')

    sX, sWQ, sWS, sW1, sG, sOUT = 8, 12, 16, 24, 32, 60
    TAG, LNDA, CONA, KA0, VA0, M, NM, LS = 6, 7, 8, 9, 10, 11, 12, 13
    KAC, VAC, O, S, T, P8 = 16, 20, 28, 36, 44, 48
    KV, QF, PV, FP, G0, TL = 64, 128, 160, 192, 206, 208
    HV = 240
    HA = 250
    OMG = 254
    sT, sSLOT, sLND, sC, sNEED, sBUD = 81, 82, 83, 84, 85, 80
    sRAW = 100
    WS = f's[{sWS}:{sWS+3}]'
    g.L.append('.p2align 6')
    g.lab('.Lcons')
    A('v_lshlrev_b32 v56, 4, v1')
    A('v_lshrrev_b32 v58, 3, v1')
    A('v_and_b32 v59, 7, v1')
    A('v_lshlrev_b32 v57, 13, v58')
    A('v_lshl_add_u32 v57, v59, 4, v57')
    A('v_mul_u32_u24 v58, 3584, v58')
    A('v_lshl_add_u32 v58, v59, 4, v58')
    A('v_mov_b32 v59, 0')
    A('v_and_b32 v2, 15, v1')
    A('v_lshrrev_b32 v3, 4, v1')
    A('v_bfe_u32 v4, v1, 2, 2')
    A('v_and_b32 v5, 3, v1')
    A('s_and_b32 s4, s2, 3')
    A(f's_mul_i32 s5, s4, {112*8192}')
    A('s_lshr_b32 s6, s2, 2')
    A('s_lshl_b32 s6, s6, 7')
    A('s_add_u32 s5, s5, s6')
    A('s_and_b32 s20, s2, 7')
    A(f's_mul_i32 s21, s20, {56*3584}')
    A('s_lshr_b32 s22, s2, 3')
    A('s_lshl_b32 s23, s22, 7')
    A('s_add_u32 s21, s21, s23')
    A('s_cmp_lt_u32 s2, 224')
    A('s_cselect_b32 s21, s21, 0x200000')
    A('s_waitcnt lgkmcnt(0)')
    g.srd(sWS, pWS, WS_BYTES)
    g.srd(sX, pX, 1792)
    g.srd(sWQ, pWQ, 448 * 8192)
    if o.cfirst < 0:
        A('s_barrier')
    g.stamp(0)
    if o.diag:
        A('s_mov_b32 s101, s30')
    A(f'buffer_load_dword v{TAG}, v59, {WS}, 0 offen')
    A(f's_mov_b32 m0, {XS}')
    A('s_nop 0')
    A(f'buffer_load_dwordx4 v56, s[{sX}:{sX+3}], 0 offen lds')
    A(f'buffer_load_dwordx4 v56, s[{sX}:{sX+3}], 0 offen offset:1024 lds')
    for t in range(14):
        if o.cfirst == t:
            A('s_barrier')
        A(f's_mov_b32 m0, {STG + t*1024}')
        A(f's_add_u32 s6, s5, {t*65536:#x}')
        A(f'buffer_load_dwordx4 v57, s[{sWQ}:{sWQ+3}], s6 offen {o.wqflags} lds')
    if o.cfirst == 14:
        A('s_barrier')
    g.srd(sW1, pW1, 448 * 3584)
    g.srd(sG, pG, 896)
    A(f's_mov_b32 m0, {GS}')
    g.srd(sOUT, pOUT, 1792)
    A(f'buffer_load_dwordx4 v56, s[{sG}:{sG+3}], 0 offen lds')
    for t in range(8):
        A(f's_mov_b32 m0, {W1S + t*1024}')
        if t < 7:
            A(f's_add_u32 s6, s21, {t*8*3584:#x}')
        else:
            A('s_mov_b32 s6, 0x200000')
        A(f'buffer_load_dwordx4 v58, s[{sW1}:{sW1+3}], s6 offen nt lds')
    if o.cfirst > 14:
        A('s_barrier')
    NW1 = 9
    A('v_and_b32 v58, 1, v2')
    A('v_mul_u32_u24 v60, 896, v58')
    A('v_lshl_add_u32 v60, v3, 4, v60')
    A(f'v_add_u32 v60, {XS}, v60')
    A('v_lshl_add_u32 v61, v3, 3, v4')
    A('v_lshlrev_b32 v61, 7, v61')
    A('v_lshl_add_u32 v61, v5, 3, v61')
    A(f'v_add_u32 v51, {W1S}, v61')
    A(f'v_add_u32 v61, {STG}, v61')
    A('v_lshl_add_u32 v63, v3, 2, v4')
    A('v_lshlrev_b32 v63, 7, v63')
    A('v_lshl_add_u32 v63, v5, 3, v63')
    A(f'v_add_u32 v63, {STG+96*128}, v63')
    A('s_mul_i32 s6, s4, 224')
    A('v_add_u32 v57, s6, v60')
    A('v_lshlrev_b32 v55, 3, v3')
    A('v_sub_u32 v55, v57, v55')
    A('s_mul_i32 s6, s20, 112')
    A('v_add_u32 v54, s6, v60')
    A('v_lshlrev_b32 v62, 16, v58')
    A('v_bfe_u32 v14, v2, 1, 2')
    A('v_lshl_add_u32 v62, v14, 6, v62')
    A('v_lshl_add_u32 v62, v3, 4, v62')
    A('v_lshlrev_b32 v53, 7, v14')
    A('v_lshl_add_u32 v53, v58, 5, v53')
    A('v_lshrrev_b32 v14, 1, v3')
    A('v_lshl_add_u32 v53, v14, 6, v53')
    A('v_and_b32 v14, 1, v3')
    A('v_lshl_add_u32 v53, v14, 4, v53')
    A(f'v_bfe_u32 v{HV+4}, v1, 2, 3')
    A(f'v_lshlrev_b32 v{HV+4}, 9, v{HV+4}')
    A(f'v_lshl_add_u32 v{HV+4}, v5, 4, v{HV+4}')
    A('v_and_b32 v14, 7, v2')
    A('v_lshlrev_b32 v14, 1, v14')
    A('v_xor_b32 v14, v14, v3')
    A('v_lshlrev_b32 v14, 4, v14')
    A(f'v_lshl_add_u32 v{KA0}, v2, 9, v14')
    A('v_lshl_add_u32 v14, v3, 2, v4')
    A('v_and_b32 v15, 7, v14')
    A('v_lshlrev_b32 v15, 5, v15')
    A('v_lshl_add_u32 v15, v5, 3, v15')
    A(f'v_lshl_add_u32 v{VA0}, v14, 9, v15')
    A(f'v_mov_b32 v{LNDA}, {FL}')
    for v in range(8):
        qq, u = v >> 1, v & 1
        m16 = (1 << (4*qq+u)) | (1 << (4*qq+u+2))
        m32 = m16 | (m16 << 16)
        A(f's_mov_b32 s{64+2*v}, {m32:#x}')
        A(f's_mov_b32 s{65+2*v}, {m32:#x}')
    A(f's_mov_b32 s{sC}, {f32(0.0625*LOG2E)}')
    A(f's_mov_b32 s{sBUD}, {1<<22}')
    A(f's_mov_b32 s{sLND}, 0')
    A(f's_mov_b32 s{sSLOT}, 0')
    A('s_mov_b32 s7, 1664525')
    A('s_lshr_b32 s5, s2, 5')
    A('s_lshl_b32 s5, s5, 13')
    A('s_lshl_b32 s4, s4, 11')
    A('s_add_u32 s5, s5, s4')
    A('s_bfe_u32 s4, s2, 0x30002')
    A('s_lshl_b32 s4, s4, 8')
    A('s_add_u32 s5, s5, s4')
    A(f's_add_u32 s5, s5, {QP:#x}')
    mk_jv(6, 4)
    A('s_lshr_b32 s6, s6, 4')
    A('s_lshl_b32 s6, s6, 13')
    A(f's_add_u32 s6, s6, {QP:#x}')
    A('s_add_u32 s4, s6, 0x1000')
    A('s_lshl_b32 s21, s2, 9')
    A(f's_add_u32 s21, s21, {HP:#x}')
    A('s_lshl_b32 s22, s22, 12')
    A('s_lshl_b32 s20, s20, 6')
    A('s_add_u32 s22, s22, s20')
    A(f's_add_u32 s22, s22, {HP:#x}')
    for c in range(1, 4):
        m16 = (3 << (2*c)) | (3 << (2*c+8))
        A(f's_mov_b32 s{34+2*c}, {m16 | (m16 << 16):#x}')
        A(f's_mov_b32 s{35+2*c}, {m16 | (m16 << 16):#x}')
    for k in range(4):
        A(f's_mov_b32 s{42+k}, {0x07060500 + k:#x}')
    A('s_mov_b32 s46, 0x0c0c0400')
    A('s_mov_b32 s47, 0x04000c0c')

    def publish(D, dst, voff, soff):
        for c in range(1, 4):
            for r in range(4):
                A(f'v_cndmask_b32 v{D+r}, v{D+r}, v{D+4*c+r}, s[{34+2*c}:{35+2*c}]')
        for r in range(4):
            A(f'v_add_u32 v{D+r}, 0x80, v{D+r}')
        A('s_mov_b32 exec_lo, 0x00ff00ff')
        A('s_mov_b32 exec_hi, 0x00ff00ff')
        for r in range(4):
            A(f'v_perm_b32 v{dst+r}, v{D+r}, v{TAG}, s{42+r}')
        A(f'buffer_store_dwordx4 {q(dst)}, v{voff}, {WS}, s{soff} offen {o.stflags}')
        A('s_mov_b64 exec, -1')

    def rbf(r):
        A(f'v_cvt_pk_bf16_f32 v{r}, v{r}, v{r}')
        A(f'v_and_b32 v{r}, 0xffff0000, v{r}')

    XF, AF, QD = 64, 128, 80
    A(f's_waitcnt vmcnt({14+NW1})')
    A(f'v_mul_lo_u32 v{TAG}, v{TAG}, s7')
    for t in range(3):
        A(f'ds_read_b128 {q(XF+4*t)}, v57 offset:{t*64}')
    A(f'ds_read_b64 {q(XF+12,2)}, v55 offset:192')
    A(f'v_add_u32 v{TAG}, 1013904223, v{TAG}')
    def qm(t):
        for c in range(4):
            if t < 3:
                A(f'v_mfma_f32_16x16x32_bf16 {q(QD+4*c)}, {q(AF+16*t+4*c)}, {q(XF+4*t)}, {"0" if t==0 else q(QD+4*c)}')
            else:
                A(f'v_mfma_f32_16x16x16_bf16 {q(QD+4*c)}, {q(AF+48+2*c,2)}, {q(XF+12,2)}, {q(QD+4*c)}')
    for t in range(4):
        A(f's_waitcnt vmcnt({max(0, 10-4*t)+NW1})')
        for c in range(4):
            if t < 3:
                A(f'ds_read_b64_tr_b16 {q(AF+16*t+4*c,2)}, v61 offset:{t*4096+c*32}')
                A(f'ds_read_b64_tr_b16 {q(AF+16*t+4*c+2,2)}, v61 offset:{t*4096+c*32+512}')
            else:
                A(f'ds_read_b64_tr_b16 {q(AF+48+2*c,2)}, v63 offset:{c*32}')
        if t >= 1:
            A(f's_waitcnt lgkmcnt({8 if t < 3 else 4})')
            qm(t-1)
    A('s_waitcnt lgkmcnt(0)')
    qm(3)
    A('s_nop 5')
    publish(QD, T, 62, 5)
    g.stamp(1)
    for i in range(8):
        A(f'v_mov_b32 v{O+i}, 0')
    for i in range(32):
        A(f'v_mov_b32 v{PV+i}, 0')
    A(f'v_mov_b32 v{M}, 0xff7fffff')
    A(f'v_mov_b32 v{LS}, 0')
    A('v_lshlrev_b32 v57, 3, v1')
    A(f'v_add_u32 v57, {QS}, v57')
    A('v_bfe_u32 v58, v2, 1, 1')
    SCA = 245
    A(f'v_lshlrev_b32 v{SCA}, 6, v58')
    A(f'v_lshl_add_u32 v{SCA}, v3, 4, v{SCA}')
    A(f'v_add_u32 v{SCA}, {SCB}, v{SCA}')
    A('v_lshlrev_b32 v58, 9, v58')
    A('v_lshl_add_u32 v58, v3, 4, v58')
    A(f'v_add_u32 v58, {QS}, v58')

    def poll_landed():
        d = g.new('pd')
        sp = g.new('ps')
        A(f's_cmp_ge_u32 s{sLND}, s{sNEED}')
        A(f's_cbranch_scc1 {d}')
        g.lab(sp)
        A(f'ds_read_b32 v14, v{LNDA}')
        A('s_waitcnt lgkmcnt(0)')
        A(f'v_readfirstlane_b32 s{sLND}, v14')
        A(f's_cmp_ge_u32 s{sLND}, s{sNEED}')
        A(f's_cbranch_scc1 {d}')
        if o.lsleep:
            A(f's_sleep {o.lsleep}')
        A(f's_sub_u32 s{sBUD}, s{sBUD}, 1')
        A(f's_cbranch_scc0 {sp}')
        A(f's_mov_b32 s{sBUD}, 0')
        g.lab(d)

    hload = f'buffer_load_dwordx4 {q(HV)}, v{HV+4}, {WS}, s22 offen {o.ldflags}'
    def qloads():
        for i in range(8):
            A(f'buffer_load_dwordx4 {q(KV+4*i)}, v56, {WS}, s{6 if i < 4 else 4} offen offset:{(i&3)*1024} {o.ldflags}')
    A('s_waitcnt vmcnt(1)')
    A(f's_mov_b32 s{sNEED}, {o.qwait}')
    poll_landed()
    qloads()
    HD = 104
    for t in range(2):
        A(f'ds_read_b128 {q(96+4*t)}, v54 offset:{t*64}')
    for t in range(2):
        for c in range(4):
            A(f'ds_read_b64_tr_b16 {q(AF+16*t+4*c,2)}, v51 offset:{t*4096+c*32}')
            A(f'ds_read_b64_tr_b16 {q(AF+16*t+4*c+2,2)}, v51 offset:{t*4096+c*32+512}')
    A(f'v_add_u32 v52, {GS}, v56')
    A(f'ds_read_b128 {q(TL)}, v52')
    A(f'v_add_u32 v52, {XS}, v56')
    A(f'ds_read_b128 {q(TL+4)}, v52')
    A(f'ds_read_b128 {q(TL+8)}, v52 offset:896')
    A(f'v_mov_b32 v14, {(o.c0 << 16) + 1:#x}')
    A('s_waitcnt lgkmcnt(3)')
    A(f'ds_write_b32 v{CONA}, v14')
    for t in range(2):
        for c in range(4):
            A(f'v_mfma_f32_16x16x32_bf16 {q(HD+4*c)}, {q(AF+16*t+4*c)}, {q(96+4*t)}, {"0" if t==0 else q(HD+4*c)}')
    A('s_nop 5')
    publish(HD, 120, 53, 21)
    A('s_waitcnt lgkmcnt(0)')
    for b in range(2):
        acc = TL + 12 + b
        for d in range(4):
            A(f'v_lshlrev_b32 v{TL+16}, 16, v{TL+d}')
            A(f'v_and_b32 v{TL+17}, 0xffff0000, v{TL+d}')
            A(f'v_lshlrev_b32 v{TL+18}, 16, v{TL+4+4*b+d}')
            A(f'v_and_b32 v{TL+19}, 0xffff0000, v{TL+4+4*b+d}')
            A(f'v_mul_f32 v{TL+16}, v{TL+16}, v{TL+18}')
            A(f'v_mul_f32 v{TL+17}, v{TL+17}, v{TL+19}')
            A(f'v_cvt_pk_bf16_f32 v{TL+18}, v{TL+16}, v{TL+17}')
            A(f'v_lshlrev_b32 v{TL+16}, 16, v{TL+18}')
            A(f'v_and_b32 v{TL+17}, 0xffff0000, v{TL+18}')
            if d == 0:
                A(f'v_add_f32 v{acc}, v{TL+16}, v{TL+17}')
            else:
                A(f'v_add_f32 v{acc}, v{acc}, v{TL+16}')
                A(f'v_add_f32 v{acc}, v{acc}, v{TL+17}')
    Z = TL + 12
    A('s_nop 1')
    A(f'v_permlane32_swap_b32 v{Z}, v{Z+1}')
    A(f'v_add_f32 v{Z}, v{Z}, v{Z+1}')
    A(f'v_mov_b32 v{Z+1}, v{Z}')
    A('s_nop 1')
    A(f'v_permlane16_swap_b32 v{Z}, v{Z+1}')
    A(f'v_add_f32 v{Z}, v{Z}, v{Z+1}')
    for rr in (8, 4, 2, 1):
        A('s_nop 1')
        A(f'v_add_f32_dpp v{Z}, v{Z}, v{Z} row_ror:{rr} {DPPM}')
    rbf(Z)
    A(f'v_mul_f32 v{Z}, {f32(-LOG2E)}, v{Z}')
    A(f'v_exp_f32 v{Z}, v{Z}')
    A('s_nop 0')
    A(f'v_add_f32 v{Z}, 1.0, v{Z}')
    A(f'v_rcp_f32 v{G0}, v{Z}')
    A('s_nop 0')
    rbf(G0)
    A(f'v_sub_f32 v{OMG}, 1.0, v{G0}')
    rbf(OMG)
    A(f'v_mov_b32 v{G0+1}, v{G0}')
    A(f'v_mov_b32 v{OMG+1}, v{OMG}')
    A('s_nop 1')
    A(f'v_permlane32_swap_b32 v{G0}, v{G0+1}')
    A(f'v_permlane32_swap_b32 v{OMG}, v{OMG+1}')
    g.lab('.Lqchk')
    for i in range(8):
        A(f's_waitcnt vmcnt({8-i})')
        A(f'v_perm_b32 v14, v{KV+4*i+1}, v{KV+4*i}, s46')
        A(f'v_perm_b32 v15, v{KV+4*i+3}, v{KV+4*i+2}, s47')
        for r in range(4):
            A(f'v_and_b32 v{KV+4*i+r}, 0xffffff00, v{KV+4*i+r}')
        A(f'v_xor_b32 v14, v14, v{TAG}')
        if i == 0:
            A('v_xor_b32 v36, v14, v15')
        else:
            A('v_xor_b32 v14, v14, v15')
            A('v_or_b32 v36, v36, v14')
        if i >= 2:
            h = i & 1
            A(f'v_pk_add_f32 {q(KV+4*h,2)}, {q(KV+4*h,2)}, {q(KV+4*i,2)}')
            A(f'v_pk_add_f32 {q(KV+4*h+2,2)}, {q(KV+4*h+2,2)}, {q(KV+4*i+2,2)}')
    A('v_cmp_ne_u32 vcc, 0, v36')
    A('s_cbranch_vccz .Lqok')
    A(f's_sleep {o.qsleep}')
    qloads()
    A(hload)
    A(f's_sub_u32 s{sBUD}, s{sBUD}, 64')
    A('s_cbranch_scc0 .Lqchk')
    A(f's_mov_b32 s{sBUD}, 0')
    A('s_waitcnt vmcnt(0)')
    g.lab('.Lqok')
    for h in range(2):
        A(f'v_cvt_pk_bf16_f32 v{T+2*h}, v{KV+4*h}, v{KV+4*h+1}')
        A(f'v_cvt_pk_bf16_f32 v{T+2*h+1}, v{KV+4*h+2}, v{KV+4*h+3}')
    A(f'ds_write_b64 v57, {q(T,2)}')
    A(f'ds_write_b64 v57, {q(T+2,2)} offset:512')
    A(hload)
    A('s_waitcnt lgkmcnt(0)')
    for j in range(8):
        A(f'ds_read_b128 {q(QF+4*j)}, v58 offset:{j*64}')
    g.stamp(2)

    ctl = len(wins) > 1 or o.ctlonly
    sCODE, sTAG, sFO = 23, 20, 21
    A(f's_mov_b32 s{sCODE}, {o.c0 << 16:#x}')
    if ctl:
        A(f'v_readfirstlane_b32 s{sTAG}, v{TAG}')
        if o.diag:
            A('v_mov_b32 v239, 0')
        A(f's_add_u32 s52, s{pWS}, {FLG:#x}')
        A(f's_addc_u32 s53, s{pWS+1}, 0')
        A('s_lshl_b32 s8, s2, 8')
        assert len(o.cps) <= 16
        cm = sum(1 << c for c in o.cps)
        for i in range(4):
            A(f's_mov_b32 s{36+i}, {(cm >> (32*i)) & 0xffffffff:#x}')
        if o.delta:
            cm = sum(1 << (c - o.delta) for c in o.cps)
            assert all(c - o.delta not in (64, 65) for c in o.cps)
            for i in range(4):
                A(f's_mov_b32 s{10+i}, {(cm >> (32*i)) & 0xffffffff:#x}')
        A(f's_lshl_b32 s{sFO}, s2, 8')
        A(f's_add_u32 s{sFO}, s{sFO}, {FLG:#x}')
    DST = [24, 25, 26, 27, 28, 29, 30, 31, 32, 33, 34, 35, 56, 57]
    def control(back):
        half = 0 if back == '.Lktile' else 1
        mask = sum(1 << (c - 64 * half) for c in o.cps if 64 * half <= c < 64 * half + 64)
        if o.delta:
            sk = g.new('sk')
            A(f's_bitcmp0_b64 s[{10+2*half}:{11+2*half}], s{sNEED}')
            A(f's_cbranch_scc1 {sk}')
            A(f'v_xor_b32 v14, 1, v{TAG}')
            A('s_mov_b64 exec, 1')
            A(f'buffer_store_dword v14, v59, {WS}, s{sFO} offen {o.stflags}')
            A('s_mov_b64 exec, -1')
            g.lab(sk)
        A(f's_bitcmp0_b64 s[{36+2*half}:{37+2*half}], s{sNEED}')
        A(f's_cbranch_scc1 {back}')
        for i in range(14):
            m = ((i >> 1) + 1) | ((i & 1) << 3) | (o.gm[i >> 1] << 4)
            A(f's_xor_b32 s{DST[i]}, s8, {m << 8:#x}')
            A(f's_load_dword s{DST[i]}, s[52:53], s{DST[i]}')
        A('s_mov_b64 exec, 1')
        A(f'buffer_store_dword v{TAG}, v59, {WS}, s{sFO} offen {o.stflags}')
        A('s_mov_b64 exec, -1')
        if half and o.prew:
            sk = g.new('sk')
            A(f's_cmp_lg_u32 s{sNEED}, {o.prew}')
            A(f's_cbranch_scc1 {sk}')
            A('v_lshlrev_b32 v14, 6, v1')
            A(f'buffer_load_dword v246, v14, {WS}, s44 offen {o.ldflags}')
            g.lab(sk)
        A(f's_add_u32 s{sFO}, s{sFO}, 0x10000')
        A('s_mov_b32 s15, 0')
        A('s_waitcnt lgkmcnt(0)')
        A('s_add_u32 s52, s52, 0x10000')
        A('s_addc_u32 s53, s53, 0')
        for i in range(14):
            A(f's_cmp_eq_u32 s{DST[i]}, s{sTAG}')
            A('s_addc_u32 s15, s15, 0')
        if o.delta:
            A('s_mov_b32 s9, 0')
            for i in range(14):
                A(f's_xor_b32 s{DST[i]}, s{DST[i]}, s{sTAG}')
                A(f's_cmp_gt_u32 s{DST[i]}, 1')
                A('s_addc_u32 s9, s9, 0')
            A(f's_cmp_ge_u32 s9, {o.farn}')
            A(f's_cselect_b32 s9, {o.farsub}, 0')
            A('s_sub_u32 s15, s15, s9')
            A('s_max_i32 s15, s15, 0')
        if o.diag:
            A(f's_lshr_b32 m0, s{sNEED}, 1')
            A('s_add_u32 s24, s15, 1')
            A('v_writelane_b32 v239, s24, m0')
        A(f's_mov_b32 s{sCODE}, 0')
        if half and o.thr2:
            sk = g.new('sk')
            A(f's_cmp_lt_u32 s{sNEED}, {o.late}')
            A(f's_cbranch_scc1 {sk}')
            for k, thr in enumerate(o.thr2[:len(wins)-1]):
                A(f's_cmp_ge_u32 s15, {thr}')
                A(f's_cselect_b32 s{sCODE}, {(k+1) << 16:#x}, s{sCODE}')
            A(f's_branch {back}')
            g.lab(sk)
        for k, thr in enumerate(o.thr[:len(wins)-1]):
            A(f's_cmp_ge_u32 s15, {thr}')
            A(f's_cselect_b32 s{sCODE}, {(k+1) << 16:#x}, s{sCODE}')
        A(f's_branch {back}')
    A(f's_mov_b32 s{sNEED}, 1')
    g.L.append('.p2align 6')
    g.lab('.Lktile')
    A(f'v_add_u32 v{KAC}, s{sSLOT}, v{KA0}')
    for i in range(1, 4):
        A(f'v_xor_b32 v{KAC+i}, {i*64}, v{KAC}')
    poll_landed()
    for i in range(16):
        j, hh = i >> 1, i & 1
        A(f'ds_read_b128 {q(KV+4*i)}, v{KAC+(j&3)} offset:{hh*8192+(j>>2)*256}')
    A(f's_add_u32 s{sNEED}, s{sNEED}, 1')
    A(f's_or_b32 s15, s{sNEED}, s{sCODE}')
    A('v_mov_b32 v14, s15')
    for i in range(16):
        j, hh = i >> 1, i & 1
        A(f's_waitcnt lgkmcnt({15-i})')
        if i == 15:
            A(f'ds_write_b32 v{CONA}, v14')
        A(f'v_mfma_f32_16x16x32_bf16 {q(S+4*hh)}, {q(KV+4*i)}, {q(QF+4*j)}, {"0" if j==0 else q(S+4*hh)}')
    A(f's_add_u32 s{sSLOT}, s{sSLOT}, {SLOT:#x}')
    A(f's_cmp_eq_u32 s{sSLOT}, {NSL*SLOT:#x}')
    A(f's_cselect_b32 s{sSLOT}, 0, s{sSLOT}')
    A('s_nop 4')
    for i in range(4):
        A(f'v_cvt_pk_bf16_f32 v{T+i}, v{S+2*i}, v{S+2*i+1}')
    A('s_mov_b64 exec, s[64:65]')
    A(f'ds_write_b128 v{SCA}, {q(T)}')
    A('s_mov_b64 exec, -1')
    A(f'v_max3_f32 v14, v{S}, v{S+1}, v{S+2}')
    A(f'v_max3_f32 v15, v{S+3}, v{S+4}, v{S+5}')
    A(f'v_max3_f32 v14, v14, v{S+6}, v{S+7}')
    A(f'v_max3_f32 v{M}, v14, v15, v{M}')
    A(f'v_add_u32 v{SCA}, 128, v{SCA}')
    if ctl:
        A(f's_cmp_gt_u32 s{sNEED}, 64')
        A('s_cbranch_scc1 .Lkdone')
        control('.Lktile')
        g.lab('.Lkdone')
    else:
        A(f's_cmp_le_u32 s{sNEED}, 64')
        A('s_cbranch_scc1 .Lktile')
    A(f'v_mov_b32 v15, v{M}')
    A(f'v_subrev_u32 v{SCA}, {64*128}, v{SCA}')
    A('s_nop 0')
    A(f'v_permlane16_swap_b32 v{M}, v15')
    A(f'v_max_f32 v{M}, v{M}, v15')
    A(f'v_mov_b32 v15, v{M}')
    A('s_nop 1')
    A(f'v_permlane32_swap_b32 v{M}, v15')
    A(f'v_max_f32 v{M}, v{M}, v15')
    rbf(M)
    A(f'v_mul_f32 v{NM}, s{sC}, v{M}')

    H = TL
    g.lab('.Lhchk')
    A('s_waitcnt vmcnt(0)')
    A(f'v_perm_b32 v14, v{HV+1}, v{HV}, s46')
    A(f'v_perm_b32 v15, v{HV+3}, v{HV+2}, s47')
    A('v_xor_b32 v14, v14, v15')
    A(f'v_cmp_ne_u32 vcc, v14, v{TAG}')
    A('s_cbranch_vccz .Lhok')
    A(hload)
    A(f's_sub_u32 s{sBUD}, s{sBUD}, 64')
    A('s_cbranch_scc0 .Lhchk')
    A(f's_mov_b32 s{sBUD}, 0')
    A('s_waitcnt vmcnt(0)')
    g.lab('.Lhok')
    for r in range(4):
        A(f'v_and_b32 v{H+r}, 0xffffff00, v{HV+r}')
    for rr in (4, 8):
        for r in range(4):
            A(f'v_add_f32_dpp v{H+r}, v{H+r}, v{H+r} row_ror:{rr} {DPPM}')
    for r in range(4):
        A(f'v_mov_b32 v{H+4+r}, v{H+r}')
    A('s_nop 0')
    for r in range(4):
        A(f'v_permlane16_swap_b32 v{H+r}, v{H+4+r}')
    for r in range(4):
        A(f'v_add_f32 v{H+r}, v{H+r}, v{H+4+r}')
    for r in range(4):
        rbf(H + r)
    for r in range(4):
        A(f'v_mul_f32 v{H+4+r}, {f32(-LOG2E)}, v{H+r}')
    for r in range(4):
        A(f'v_exp_f32 v{H+4+r}, v{H+4+r}')
    A('s_nop 0')
    for r in range(4):
        A(f'v_add_f32 v{H+4+r}, 1.0, v{H+4+r}')
    for r in range(4):
        A(f'v_rcp_f32 v{H+4+r}, v{H+4+r}')
    A('s_nop 0')
    for r in range(4):
        A(f'v_mul_f32 v{H+r}, v{H+r}, v{H+4+r}')
    A(f'v_cvt_pk_bf16_f32 v{H+4}, v{H}, v{H+1}')
    A(f'v_cvt_pk_bf16_f32 v{H+5}, v{H+2}, v{H+3}')
    A('v_and_b32 v14, 1, v2')
    A('v_and_b32 v15, 1, v3')
    A('v_lshlrev_b32 v14, 3, v14')
    A('v_lshl_add_u32 v57, v15, 2, v14')
    A(f'ds_bpermute_b32 v{H+6}, v57, v{H+4}')
    A(f'ds_bpermute_b32 v{H+8}, v57, v{H+5}')
    A('s_mov_b32 s48, 0x00030003')
    A('s_mov_b32 s49, 0x00300030')
    A('s_mov_b32 s50, 0x03000300')
    A('s_mov_b32 s51, 0x30003000')
    A('v_lshl_add_u32 v14, v15, 2, v4')
    A('v_mul_u32_u24 v60, 896, v14')
    A('v_lshrrev_b32 v14, 1, v3')
    A('v_lshl_add_u32 v60, v14, 5, v60')
    A('v_lshl_add_u32 v60, v5, 3, v60')
    A('v_mul_u32_u24 v63, 3584, v15')
    A('v_add_u32 v63, v63, v60')
    A(f'v_add_u32 v63, {WOS}, v63')
    A(f'v_add_u32 v60, {W2S}, v60')
    A('s_waitcnt lgkmcnt(0)')
    A(f'v_cndmask_b32 v{HA}, 0, v{H+6}, s[48:49]')
    A(f'v_cndmask_b32 v{HA+1}, 0, v{H+8}, s[48:49]')
    A(f'v_cndmask_b32 v{HA+2}, 0, v{H+6}, s[50:51]')
    A(f'v_cndmask_b32 v{HA+3}, 0, v{H+8}, s[50:51]')
    RG = TL
    HG = TL + 16
    for i in range(4):
        A(f'v_mov_b32 v{RG+4*i+3}, v{TAG}')
    A('v_lshrrev_b32 v57, 2, v1')
    A(f'v_mul_u32_u24 v61, {YROW}, v57')
    A('v_lshl_add_u32 v61, v5, 4, v61')
    A('v_lshrrev_b32 v58, 5, v1')
    A('v_lshl_add_u32 v58, v58, 2, v4')
    A('v_lshlrev_b32 v58, 12, v58')
    A('v_lshl_add_u32 v58, v15, 6, v58')
    A('v_lshl_add_u32 v58, v5, 4, v58')
    A(f'v_add_u32 v57, {XS}, v56')
    A(f'v_mov_b64 {q(T,2)}, {q(G0,2)}')
    A(f'v_mov_b64 {q(T+2,2)}, {q(OMG,2)}')
    A(f'v_mov_b32 v{P8}, v{TAG}')
    A(f'v_mov_b32 v{P8+1}, v58')
    A(f'v_mov_b32 v{P8+2}, v60')
    A(f'v_mov_b32 v{P8+3}, v63')
    A(f'ds_write_b128 v57, {q(HA)}')
    A(f'ds_write_b128 v57, {q(T)} offset:1024')
    A(f'ds_write_b128 v57, {q(P8)} offset:2048')
    mk_jv(44, 46)
    A('s_lshl_b32 s44, s44, 12')
    A(f's_add_u32 s44, s44, {REC:#x}')
    if o.rpair:
        A('s_andn2_b32 s47, s2, 15')
        A('s_and_b32 s43, s2, 7')
        A('s_lshl_b32 s43, s43, 1')
        A('s_or_b32 s47, s47, s43')
        A('s_bfe_u32 s43, s2, 0x10003')
        A('s_or_b32 s47, s47, s43')
        A('s_lshl_b32 s47, s47, 3')
    else:
        A('s_lshl_b32 s47, s2, 3')
    A('s_lshr_b32 s43, s2, 4')
    A('s_mul_i32 s43, s43, 3')
    A('v_lshrrev_b32 v14, 1, v3')
    A('v_lshl_add_u32 v14, v15, 1, v14')
    A('v_add_u32 v14, s43, v14')
    A('v_and_b32 v62, 1, v14')
    A('v_mul_u32_u24 v62, 896, v62')
    A('v_cmp_lt_u32 vcc, 13, v14')
    A('v_lshrrev_b32 v14, 1, v14')
    A('v_lshl_add_u32 v62, v14, 7, v62')
    A('v_lshl_add_u32 v62, v5, 1, v62')
    A('v_mov_b32 v14, 0x10000')
    A('v_cndmask_b32 v62, v62, v14, vcc')
    A('s_and_b32 s46, s47, 0x78')
    A(f's_add_u32 s43, s44, {RECB-REC:#x}')

    g.L.append('.p2align 6')
    g.lab('.Lvtile')
    A(f'ds_read_b128 {q(T)}, v{SCA}')
    A(f'v_add_u32 v{SCA}, 128, v{SCA}')
    A(f'v_add_u32 v{VAC}, s{sSLOT}, v{VA0}')
    for i in range(1, 8):
        A(f'v_xor_b32 v{VAC+i}, {i*32}, v{VAC}')
    A('s_waitcnt lgkmcnt(0)')
    for i in range(4):
        A(f'v_lshlrev_b32 v{S+2*i}, 16, v{T+i}')
        A(f'v_and_b32 v{S+2*i+1}, 0xffff0000, v{T+i}')
    for i in range(8):
        A(f'v_fma_f32 v{P8+i}, v{S+i}, s{sC}, -v{NM}')
    for i in range(8):
        A(f'v_exp_f32 v{P8+i}, v{P8+i}')
    A('s_nop 0')
    for i in range(4):
        A(f'v_cvt_pk_bf16_f32 v{T+i}, v{P8+2*i}, v{P8+2*i+1}')
    A(f'v_add_f32 v{LS}, v{LS}, v{P8}')
    A(f'v_add_f32 v{P8+1}, v{P8+1}, v{P8+2}')
    A(f'v_add_f32 v{P8+3}, v{P8+3}, v{P8+4}')
    A(f'v_add_f32 v{P8+5}, v{P8+5}, v{P8+6}')
    A(f'v_add_f32 v{LS}, v{LS}, v{P8+7}')
    A(f'v_add_f32 v{P8+1}, v{P8+1}, v{P8+3}')
    A(f'v_add_f32 v{LS}, v{LS}, v{P8+5}')
    A(f'v_add_f32 v{LS}, v{LS}, v{P8+1}')
    for v in range(8):
        A(f's_mov_b64 exec, s[{64+2*v}:{65+2*v}]')
        A(f'v_mov_b64 {q(PV+4*v,2)}, {q(T,2)}')
        A(f'v_mov_b64 {q(PV+4*v+2,2)}, {q(T+2,2)}')
    A('s_mov_b64 exec, -1')
    poll_landed()
    order = [(i & 1) * 8 + (i >> 1) for i in range(16)]
    def vread(i):
        m = order[i]
        for kh in range(2):
            A(f'ds_read_b64_tr_b16 {q(KV+4*i+2*kh,2)}, v{VAC+(m&7)} offset:{kh*8192+(m>>3)*256}')
    PRE = 7
    for i in range(PRE):
        vread(i)
    A(f's_add_u32 s{sNEED}, s{sNEED}, 1')
    A(f's_or_b32 s15, s{sNEED}, s{sCODE}')
    A('v_mov_b32 v14, s15')
    for i in range(16):
        issued = min(16, i + PRE)
        A(f's_waitcnt lgkmcnt({2*(issued-i-1)})')
        m = order[i]
        a = m >> 3
        if i == 15:
            A(f'ds_write_b32 v{CONA}, v14')
        A(f'v_mfma_f32_16x16x32_bf16 {q(O+4*a)}, {q(PV+4*(m&7))}, {q(KV+4*i)}, {q(O+4*a)}')
        if i + PRE < 16:
            vread(i + PRE)
    A(f's_add_u32 s{sSLOT}, s{sSLOT}, {SLOT:#x}')
    A(f's_cmp_eq_u32 s{sSLOT}, {NSL*SLOT:#x}')
    A(f's_cselect_b32 s{sSLOT}, 0, s{sSLOT}')
    if ctl:
        A(f's_cmp_gt_u32 s{sNEED}, {max(o.cps)}')
        A('s_cbranch_scc1 .Lvlast')
        control('.Lvtile')
        g.lab('.Lvlast')
    A(f's_cmp_le_u32 s{sNEED}, 128')
    A('s_cbranch_scc1 .Lvtile')

    g.stamp(3)
    A(f'v_mov_b32 v15, v{LS}')
    A('s_mov_b32 vcc_lo, 0xf0f0f0f0')
    A('s_mov_b32 vcc_hi, 0xf0f0f0f0')
    A(f'v_permlane16_swap_b32 v{LS}, v15')
    A(f'v_add_f32 v{LS}, v{LS}, v15')
    A(f'v_mov_b32 v15, v{LS}')
    A(f'v_mov_b64 {q(RG,2)}, {q(O,2)}')
    A(f'v_mov_b64 {q(RG+8,2)}, {q(O+2,2)}')
    A(f'v_permlane32_swap_b32 v{LS}, v15')
    A(f'v_add_f32 v{LS}, v{LS}, v15')
    A(f'v_cndmask_b32 v15, v{NM}, v{LS}, vcc')
    A(f'v_mov_b64 {q(RG+4,2)}, {q(O+4,2)}')
    A(f'v_mov_b64 {q(RG+12,2)}, {q(O+6,2)}')
    for h in range(2):
        for a in range(2):
            r = RG + 8*h + 4*a
            A(f'v_mov_b32_dpp v{r+2}, v15 quad_perm:[{2*h},{2*h},{2*h},{2*h}] {DPPM}')
            A(f'buffer_store_dwordx4 {q(r)}, v56, {WS}, s44 offen offset:{h*2048+a*1024} {o.recflags}')
    for i in range(4):
        A(f'buffer_store_dwordx4 {q(RG+4*i)}, v56, {WS}, s43 offen offset:{i*1024} sc1')
    A(f's_cmp_ge_u32 s2, {NRED}')
    A('s_cbranch_scc1 .Lfin')
    for i in range(16):
        A(f'v_not_b32 v{KV+4*i+3}, v{TAG}')
    A('s_lshl_b32 s64, s47, 3')
    A(f's_add_u32 s64, s64, {YB:#x}')
    for i in range(1, 16):
        A(f's_add_u32 s{64+i}, s64, {i*16*YROW:#x}')
    sen = None
    if o.sen:
        A('s_and_b32 s4, s2, 7')
        A('s_lshl_b32 s4, 1, s4')
        A('s_not_b32 s4, s4')
        A('v_mov_b32 v14, 0')
        if o.sen > 1:
            A('s_waitcnt vmcnt(0)')
        sen = (LNDA, YDONE, 5, 4)
    else:
        A(f's_mov_b32 s{sNEED}, {YDONE:#x}')
        poll_landed()
    mk = [8, 10, 12, 14, 20, 22, 24, 26, 28, 30, 32, 34, 36, 38, 40, 42]
    g.apoll('h2', [f'buffer_load_dwordx4 {q(KV+4*i)}, v61, {WS}, s{64+i} offen {o.ldflags}' for i in range(16)],
            [KV+4*i+3 for i in range(16)], mk, TAG, sBUD, o.h2sleep, sen=sen, thro=o.h2thr)
    for k in range(4):
        A(f'v_pk_add_f32 v[{36+2*k}:{37+2*k}], {q(KV+8*k,2)}, {q(KV+8*k+4,2)}')
    for k in range(4):
        A(f'v_pk_add_f32 v[{44+2*k}:{45+2*k}], {q(KV+32+8*k,2)}, {q(KV+32+8*k+4,2)}')
    for k in range(4):
        A(f'v_pk_add_f32 v[{36+2*k}:{37+2*k}], v[{36+2*k}:{37+2*k}], v[{44+2*k}:{45+2*k}]')
    for k in range(8):
        A(f'v_add_f32 v{16+k}, v{KV+8*k+2}, v{KV+8*k+6}')
    A('v_pk_add_f32 v[36:37], v[36:37], v[38:39]')
    A('v_pk_add_f32 v[40:41], v[40:41], v[42:43]')
    A('v_pk_add_f32 v[16:17], v[16:17], v[18:19]')
    A('v_pk_add_f32 v[20:21], v[20:21], v[22:23]')
    A('v_pk_add_f32 v[36:37], v[36:37], v[40:41]')
    A('v_pk_add_f32 v[16:17], v[16:17], v[20:21]')
    A('s_nop 0')
    A('v_permlane32_swap_b32 v36, v37')
    A('v_permlane32_swap_b32 v16, v17')
    A('v_add_f32 v36, v36, v37')
    A('v_add_f32 v16, v16, v17')
    A('v_mov_b32 v17, v16')
    A('s_nop 1')
    A('v_permlane32_swap_b32 v16, v17')
    A('v_add_f32 v16, v16, v17')
    A('s_nop 1')
    A('v_permlane16_swap_b32 v36, v16')
    A('v_add_f32 v36, v36, v16')
    for rr in (4, 8):
        A('s_nop 1')
        A(f'v_add_f32_dpp v36, v36, v36 row_ror:{rr} {DPPM}')
    A('v_cvt_pk_bf16_f32 v36, v36, v36')
    A('s_mov_b32 exec_lo, 0x000f000f')
    A('s_mov_b32 exec_hi, 0xf')
    A(f'buffer_store_short v36, v62, s[{sOUT}:{sOUT+3}], s46 offen')
    A('s_cmp_lg_u32 s2, 0')
    A('s_cbranch_scc1 .Lfin')
    A('s_mov_b64 exec, 1')
    A(f'buffer_store_dword v{TAG}, v59, {WS}, 0 offen')
    g.lab('.Lfin')
    if o.diag:
        g.stamp(6)
        A('s_mov_b64 exec, 1')
        A('s_lshl_b32 s4, s2, 7')
        A(f's_add_u32 s4, s4, {STAMP:#x}')
        for k in (0, 1, 2, 3, 6):
            A(f'v_mov_b32 v14, s{86+2*k}')
            A(f'v_mov_b32 v15, s{87+2*k}')
            A(f'buffer_store_dwordx2 v[14:15], v59, {WS}, s4 offen offset:{8*k}')
            A('s_nop 1')
        A('v_mov_b32 v14, s101')
        A('v_mov_b32 v15, s87')
        A(f'buffer_store_dwordx2 v[14:15], v59, {WS}, s4 offen offset:56')
        if ctl:
            A('s_mov_b64 exec, -1')
            A('v_lshlrev_b32 v14, 2, v1')
            A('s_lshl_b32 s4, s2, 8')
            A(f's_add_u32 s4, s4, {STAMP+0x20000:#x}')
            A(f'buffer_store_dword v239, v14, {WS}, s4 offen')
    g.lab('.Lexit')
    A('s_endpgm')

    ref = open('cdna_kernels/' + NAME + '.s.ref').read().split('\n')
    head = [l for l in ref if l.startswith(';') and '@launch' not in l and 'Override launch' not in l and 'grid=ceil' not in l]
    txt = '\n'.join(head) + '\n'
    txt += f'; @launch grid=(256,1,1) block=(128,1,1) lds={LDS_BYTES}\n'
    txt += '.amdgcn_target "amdgcn-amd-amdhsa--gfx950"\n.text\n'
    txt += '\n'.join(g.L) + '\n'
    txt += f'''.section .rodata,"a"
.p2align 6
.amdhsa_kernel {K}
  .amdhsa_next_free_vgpr 256
  .amdhsa_next_free_sgpr 102
  .amdhsa_accum_offset 256
  .amdhsa_group_segment_fixed_size 0
  .amdhsa_kernarg_size 96
  .amdhsa_user_sgpr_count 2
  .amdhsa_user_sgpr_kernarg_segment_ptr 1
  .amdhsa_system_sgpr_workgroup_id_x 1
  .amdhsa_float_denorm_mode_32 3
.end_amdhsa_kernel
'''
    return txt


def parser():
    p = argparse.ArgumentParser()
    il = lambda x: [int(v) for v in x.split(',') if v]
    p.add_argument('-o', default='cdna_kernels/' + NAME + '.s')
    p.add_argument('--window', type=int, default=18)
    p.add_argument('--gs', type=int, default=2)
    p.add_argument('--unit', type=int, default=8)
    p.add_argument('--idxsh', type=int, default=3)
    p.add_argument('--perm', type=il, default=[0, 2, 1, 3])
    p.add_argument('--qwait', type=int, default=3)
    p.add_argument('--cfirst', type=int, default=15)
    p.add_argument('--wk', type=il, default=[])
    p.add_argument('--w1', type=il, default=[28,28,28,28,28,28,28,24])
    p.add_argument('--icpf', type=int, default=16)
    p.add_argument('--wins', type=il, default=[19,20,21,22,24])
    p.add_argument('--thr', type=il, default=[3,6,10,12,13])
    p.add_argument('--c0', type=int, default=2)
    p.add_argument('--wd', type=int, default=21)
    p.add_argument('--ctlonly', action='store_true')
    p.add_argument('--cps', type=il, default=[28,52,76,92,108,116])
    p.add_argument('--nb', type=int, default=2)
    p.add_argument('--loc', type=int, default=1)
    p.add_argument('--recflags', default='')
    p.add_argument('--prew', type=int, default=108)
    p.add_argument('--h2thr', type=int, default=0)
    p.add_argument('--h1thro', type=int, default=-1)
    p.add_argument('--sen', type=int, default=0)
    p.add_argument('--senw', type=int, default=0)
    p.add_argument('--yw', type=int, default=4)
    p.add_argument('--dual', type=int, default=1)
    p.add_argument('--altp', type=int, default=100)
    p.add_argument('--delta', type=int, default=0)
    p.add_argument('--farn', type=int, default=2)
    p.add_argument('--farsub', type=int, default=4)
    p.add_argument('--gm', type=il, default=[1,2,4,8,3,12,15])
    p.add_argument('--thr2', type=il, default=[])
    p.add_argument('--late', type=int, default=100)
    p.add_argument('--rx', type=int, default=1)
    p.add_argument('--rpair', type=int, default=1)
    p.add_argument('--nobr', action='store_true')
    p.add_argument('--pairskip', type=int, default=1)
    p.add_argument('--diag', action='store_true')
    p.add_argument('--prog', action='store_true')
    p.add_argument('--kflags', default='nt')
    p.add_argument('--vflags', default='nt')
    p.add_argument('--wqflags', default='nt')
    p.add_argument('--stflags', default='sc1')
    p.add_argument('--ldflags', default='sc1')
    p.add_argument('--lsleep', type=int, default=1)
    p.add_argument('--qsleep', type=int, default=6)
    p.add_argument('--h1sleep', type=int, default=0)
    p.add_argument('--h1thr', type=int, default=16)
    p.add_argument('--h1slow', type=int, default=0)
    p.add_argument('--h2sleep0', type=int, default=-1)
    p.add_argument('--h2sleep', type=int, default=0)
    return p


if __name__ == '__main__':
    o = parser().parse_args()
    open(o.o, 'w').write(gen(o))
```

```python
import sys, struct, argparse

NAME = 'gated_mix__gqa_block_cached__dense_activation_silu__decode'

RING = 0
SLOT = 16384
NSL = 9
STG = RING + 8 * SLOT
W1S = RING + 7 * SLOT
W2S = RING + (128 % NSL) * SLOT
WOS = RING + (129 % NSL) * SLOT
SCB = RING + NSL * SLOT
XS = SCB + 8192
GS = XS + 2048
QS = GS + 1024
FL = QS + 1024
LDS_BYTES = FL + 512

SEN = 0x10000
QP = 0x20000
HP = 0x40000
FLG = 0x500000
REC = 0x100000
YB = 0x200000
YROW = 5120
NRED = 80
RECB = 0x600000
WS_BYTES = 0x700000
STAMP = 0x400000
YDONE = 0x10000

DOC = """;
"""

def f32(x):
    return '0x%08x' % struct.unpack('<I', struct.pack('<f', x))[0]

LOG2E = 1.4426950408889634
DPPM = 'row_mask:0xf bank_mask:0xf'


class G:
    def __init__(self, o):
        self.L = []
        self.o = o
        self.uid = 0

    def A(self, s):
        self.L.append('    ' + s)

    def lab(self, s):
        self.L.append(s + ':')

    def new(self, p):
        self.uid += 1
        return f'.L{p}_{self.uid}'

    def srd(self, d, ptr, nbytes):
        A = self.A
        A(f's_mov_b32 s{d}, s{ptr}')
        A(f's_mov_b32 s{d+1}, s{ptr+1}')
        A(f's_mov_b32 s{d+2}, {nbytes:#x}')
        A(f's_mov_b32 s{d+3}, 0x20000')

    def stamp(self, k):
        if self.o.diag:
            self.A(f's_memrealtime s[{86+2*k}:{87+2*k}]')
            self.A('s_waitcnt lgkmcnt(0)')

    def apoll(self, name, loads, tagregs, masks, TAG, sBUD, sleep, slow=None, between=None, alt=None, sen=None, thro=-1):
        A = self.A
        if not sen:
            for ld in loads:
                A(ld)
        if between:
            between()
        self.lab(f'.L{name}_loop')
        if sleep:
            A(f's_sleep {sleep}')
        if thro >= 0:
            A(f's_waitcnt vmcnt({thro})')
        for t, m in zip(tagregs, masks):
            A(f'v_cmp_ne_u32 s[{m}:{m+1}], v{t}, v{TAG}')
        A(f's_or_b64 vcc, s[{masks[0]}:{masks[0]+1}], s[{masks[1]}:{masks[1]+1}]')
        for m in masks[2:]:
            A(f's_or_b64 vcc, vcc, s[{m}:{m+1}]')
        A(f's_cbranch_scc0 .L{name}_ok')
        if sen:
            lnda, bit, sreg, own = sen
            A('s_waitcnt lgkmcnt(0)')
            A('v_readfirstlane_b32 vcc_lo, v14')
            A(f'ds_read_b32 v14, v{lnda}')
            A(f's_cmp_ge_u32 vcc_lo, {bit:#x}')
            A(f's_cselect_b32 s{sreg}, -1, s{own}')
        if self.o.pairskip and len(loads) > 4:
            for k in range(0, len(loads), 2):
                sk = self.new('sk')
                m0_, m1_ = masks[k], masks[k+1]
                if sen:
                    A(f's_bitcmp0_b32 s{sreg}, {k//2}')
                    A(f's_cbranch_scc1 {sk}')
                A(f's_or_b64 exec, s[{m0_}:{m0_+1}], s[{m1_}:{m1_+1}]')
                A(f's_cbranch_execz {sk}')
                A('s_wqm_b64 exec, exec')
                A(loads[k])
                A(loads[k+1])
                self.lab(sk)
        else:
            for ld, m in zip(loads, masks):
                sk = self.new('sk')
                A(f's_wqm_b64 exec, s[{m}:{m+1}]')
                if not self.o.nobr:
                    A(f's_cbranch_execz {sk}')
                A(ld)
                self.lab(sk)
        A('s_mov_b64 exec, -1')
        if slow:
            thr, extra = slow
            sk = self.new('sk')
            A('s_bcnt1_i32_b64 vcc_lo, vcc')
            A(f's_cmp_le_u32 vcc_lo, {thr}')
            A(f's_cbranch_scc1 {sk}')
            A(f's_sleep {extra}')
            self.lab(sk)
        if alt:
            cnt, period, altloads = alt
            A(f's_sub_u32 s{cnt}, s{cnt}, 1')
            A(f's_cbranch_scc0 .L{name}_loop')
            A(f's_mov_b32 s{cnt}, {period}')
            A('s_waitcnt vmcnt(0)')
            for ld, t in zip(altloads, tagregs):
                sk = self.new('sk')
                A(f'v_cmp_ne_u32 vcc, v{t}, v{TAG}')
                A('s_wqm_b64 exec, vcc')
                A(f's_cbranch_execz {sk}')
                A(ld)
                self.lab(sk)
                A('s_mov_b64 exec, -1')
            A('s_waitcnt vmcnt(0)')
            A(f's_sub_u32 s{sBUD}, s{sBUD}, 1024')
        else:
            A(f's_sub_u32 s{sBUD}, s{sBUD}, 16')
        A(f's_cbranch_scc0 .L{name}_loop')
        A(f's_mov_b32 s{sBUD}, 0')
        self.lab(f'.L{name}_ok')


def q(b, n=4):
    return f'v[{b}:{b+n-1}]'


def gen(o):
    g = G(o)
    A = g.A
    W = o.window
    K = NAME + '_kernel'
    pX, pK, pV, pWQ, pWO, pW1, pW2, pG, pOUT, pWS = 36, 38, 40, 42, 44, 48, 50, 52, 54, 58

    def mk_jv(d, t):
        if o.loc:
            A(f's_and_b32 s{d}, s2, 7')
            A(f's_lshl_b32 s{d}, s{d}, 4')
            A(f's_bfe_u32 s{t}, s2, 0x40003')
            A(f's_or_b32 s{d}, s{d}, s{t}')
            A(f's_and_b32 s{t}, s2, 0x80')
            A(f's_or_b32 s{d}, s{d}, s{t}')
        else:
            A(f's_mov_b32 s{d}, s2')
    def mk_j2(d, t):
        if o.loc:
            A(f's_and_b32 s{d}, s2, 7')
            A(f's_lshl_b32 s{d}, s{d}, 5')
            A(f's_lshr_b32 s{t}, s2, 3')
            A(f's_or_b32 s{d}, s{d}, s{t}')
        else:
            A(f's_mov_b32 s{d}, s2')
    g.L.append(f'.globl {K}\n.p2align 8\n.type {K},@function\n{K}:')
    A('s_cmp_ge_u32 s2, 256')
    A('s_cbranch_scc1 .Lexit')
    if o.diag:
        A('s_memrealtime s[30:31]')
    A('s_load_dwordx16 s[36:51], s[0:1], 0')
    A('s_load_dwordx8 s[52:59], s[0:1], 64')
    if o.icpf:
        A(f's_cmp_ge_u32 s2, {o.icpf}')
        A('s_cbranch_scc1 .Lnopf')
        A('s_getpc_b64 s[4:5]')
        g.lab('.Lpc')
        A('v_lshlrev_b32 v9, 7, v0')
        for i in range(3 if (len(o.wins) > 2 and o.nb == 8) else 2):
            A(f'v_add_u32 v10, {0x4000*i:#x}, v9')
            A('v_min_u32 v10, .Lexit-.Lpc, v10')
            A(f'global_load_dword v{249-i}, v10, s[4:5]')
        g.lab('.Lnopf')
    A('v_lshrrev_b32 v1, 6, v0')
    A('v_lshlrev_b32 v8, 2, v0')
    A('v_readfirstlane_b32 s3, v1')
    A(f'v_add_u32 v8, {FL}, v8')
    A('v_mov_b32 v14, 0')
    A('ds_write_b32 v8, v14')
    A('v_and_b32 v1, 63, v0')
    if o.lay:
        A('s_cmp_eq_u32 s3, 0')
        A('s_cbranch_scc1 .Lldr')
        g.L.append('@C1@')
        g.lab('.Lldr')
    else:
        A('s_cmp_lg_u32 s3, 0')
        A('s_cbranch_scc1 .Lcons')

    gs, U, sh = o.gs, o.unit, o.idxsh
    lg = gs.bit_length() - 1
    A(f's_lshr_b32 s17, s2, {sh}')
    A(f's_and_b32 s17, s17, {gs-1}')
    A(f's_lshr_b32 s18, s2, {sh+lg}')
    A(f's_lshl_b32 s18, s18, {sh}')
    if o.rx == 1:
        A('s_lshr_b32 s19, s2, 4')
        A('s_xor_b32 s19, s19, s2')
        A(f's_and_b32 s19, s19, {(1<<sh)-1}')
    elif o.rx == 2:
        A('s_lshr_b32 s19, s2, 4')
        A('s_add_u32 s19, s19, s2')
        A(f's_and_b32 s19, s19, {(1<<sh)-1}')
    elif o.rx == 3:
        A('s_lshr_b32 s19, s2, 5')
        A('s_add_u32 s19, s19, s2')
        A(f's_and_b32 s19, s19, {(1<<sh)-1}')
    else:
        A(f's_and_b32 s19, s2, {(1<<sh)-1}')
    A('s_or_b32 s18, s18, s19')
    if o.loc:
        mk_jv(18, 19)
        A('s_lshr_b32 s18, s18, 1')
    A(f's_lshl_b32 s16, s18, {20+lg}')
    A(f's_mul_i32 s17, s17, {U*4096}')
    A('s_add_u32 s16, s16, s17')
    A('v_lshrrev_b32 v3, 5, v1')
    A('v_and_b32 v5, 31, v1')
    A('v_lshlrev_b32 v4, 1, v3')
    A('v_xor_b32 v5, v5, v4')
    A('v_lshlrev_b32 v5, 4, v5')
    A('v_lshl_add_u32 v20, v3, 9, v5')
    for i in range(1, 4):
        A(f'v_xor_b32 v{20+i}, {i*64}, v20')
    A(f'v_mov_b32 v7, {FL+256}')
    A('v_lshlrev_b32 v24, 4, v1')
    j0 = (W - 1) % 16
    lag = (W - 1) // 16 + 1
    A('s_mov_b32 s20, -7')
    A('s_mov_b32 s22, 0')
    A('s_mov_b32 s27, s16')
    A('s_mov_b32 s24, 0')
    A(f's_mov_b32 s25, {1<<22}')
    mk_j2(28, 29)
    A('s_lshr_b32 s4, s28, 3')
    A('s_lshl_b32 s4, s4, 7')
    A('s_bfe_u32 s5, s28, 0x20001')
    A('s_lshl_b32 s5, s5, 5')
    A('s_add_u32 s4, s4, s5')
    A('s_and_b32 s5, s28, 1')
    A('s_lshl_b32 s5, s5, 3')
    A('s_add_u32 s4, s4, s5')
    A('s_mul_i32 s4, s4, 896')
    A('s_mul_i32 s6, s2, 7168')
    A('s_waitcnt lgkmcnt(0)')
    g.srd(8, pK, 0x10000000)
    g.srd(60, pWO, 4096 * 896)
    g.srd(64, pW2, 1792 * 896)
    g.srd(72, pWS, WS_BYTES)
    A('s_lshr_b32 s76, s28, 5')
    A('s_lshl_b32 s76, s76, 16')
    A('s_and_b32 s77, s28, 31')
    A('s_lshl_b32 s77, s77, 7')
    A('s_add_u32 s76, s76, s77')
    A(f's_add_u32 s76, s76, {REC:#x}')
    A('s_add_u32 s77, s76, 0x8000')
    A('s_add_u32 s78, s76, 0x80000')
    A('s_add_u32 s79, s76, 0x88000')
    A(f's_mul_i32 s80, s28, {YROW}')
    A(f's_add_u32 s80, s80, {YB:#x}')
    A('s_add_u32 s81, s80, 0x1000')
    A('s_mov_b32 s48, 0x00030003')
    A('s_mov_b32 s49, 0x00300030')
    A('s_mov_b32 s50, 0x03000300')
    A('s_mov_b32 s51, 0x30003000')
    A(f's_mov_b32 s29, {o.altp}')
    A(f'v_add_u32 v25, {XS}, v24')
    if o.diag:
        g.srd(68, pWS, STAMP + 0x20000)
        A('v_mov_b32 v30, 0')
    A('s_barrier')
    spins = []
    def check(name):
        A('s_cmp_lt_i32 s24, s20')
        A(f's_cbranch_scc1 .Lspin{name}')
        g.lab(f'.Lgo{name}')
        spins.append(name)
    def body(name, wins, first=False):
        NB = len(wins)
        for tt in range(NB):
            Wd = wins[tt]
            if not first:
                check(f'{name}{tt}')
            elif tt == 7:
                A('s_cmp_lt_i32 s24, 1')
                A('s_cbranch_scc1 .Lspinf')
                g.lab('.Lgof')
            for j in range(16):
                if j % 4 == 0:
                    k = tt * 4 + o.perm[j // 4]
                    A(f's_add_u32 m0, s22, {RING + j*1024:#x}')
                    A(f's_add_u32 s23, s16, {((k//U)*gs*U + k % U)*4096:#x}')
                if not (first and tt * 16 + j < Wd):
                    A(f's_waitcnt vmcnt({Wd-1})')
                elif j % 4 == 0:
                    A('s_nop 0')
                A(f'buffer_load_dwordx4 v{20+(j&3)}, s[8:11], s23 offen offset:{(j&3)*1024} {o.kflags} lds')
                if j == (Wd - 1) % 16:
                    if first:
                        v = tt - (Wd - 1) // 16
                        if v > 0:
                            A(f'v_mov_b32 v14, {v}')
                            A('ds_write_b32 v8, v14')
                    else:
                        A(f's_add_u32 s21, s20, {(7 if j <= 9 else 6) - (Wd - 1) // 16}')
                        A('v_mov_b32 v14, s21')
                        A('ds_write_b32 v8, v14')
                if o.prog and j == 0 and tt % 2 == 0:
                    A('s_memrealtime s[86:87]')
                if j == 12:
                    A(f's_add_u32 s22, s22, {SLOT:#x}')
                    A(f's_cmp_eq_u32 s22, {NSL*SLOT:#x}')
                    A('s_cselect_b32 s22, 0, s22')
                if j == 9:
                    if not first or tt >= 6:
                        A('ds_read_b32 v15, v7')
                    A('s_add_u32 s20, s20, 1')
                if j == 13 and tt == NB - 1:
                    if name == 'k':
                        A('s_mov_b32 s16, s27')
                    else:
                        A(f's_add_u32 s16, s16, {16384*gs*NB:#x}')
                        if not o.wk:
                            A('s_cmp_eq_u32 s20, 57')
                            A('s_cselect_b32 s16, s27, s16')
                if j == 14 and (not first or tt >= 6 or o.prog):
                    A('s_waitcnt lgkmcnt(0)')
                    if not first or tt >= 6:
                        A('v_readfirstlane_b32 s19, v15')
                        A('s_and_b32 s24, s19, 0xffff')
                if o.prog and j == 15 and tt % 2 == 1:
                    A('s_add_u32 s17, s20, 6')
                    A('s_lshr_b32 m0, s17, 1')
                    A('s_nop 0')
                    A('v_writelane_b32 v30, s86, m0')
    A(f's_mov_b32 s26, {49 if o.wk else 57}')
    body('f', o.w1 or [W] * 8, True)
    wins = [W] + o.wins
    if o.c0:
        A(f's_branch .Lload{o.c0}')
    for i, Wd in enumerate(wins):
        g.L.append('.p2align 6')
        g.lab(f'.Lload{i}')
        body(f'm{i}_', [Wd] * o.nb)
        A('s_cmp_ge_i32 s20, s26')
        A('s_cbranch_scc1 .Lturn')
        if i + 1 == len(wins):
            g.lab('.Lsel')
        for k in range(len(wins) - 1):
            A(f's_cmp_lt_u32 s19, {(k + 1) << 16:#x}')
            A(f's_cbranch_scc1 .Lload{k}')
        A(f's_branch .Lload{len(wins)-1}')
    g.lab('.Lturn')
    A('s_cmp_gt_i32 s20, 57')
    A('s_cbranch_scc1 .Ldrain')
    A('s_mov_b32 s26, 121')
    if o.wk:
        body('k', o.wk)
    A(f's_mov_b32 s8, s{pV}')
    A(f's_mov_b32 s9, s{pV+1}')
    A('s_branch .Lsel')
    g.lab('.Ldrain')
    NX = 23
    HA, G0, TAG = 248, 252, 244
    OMG = G0 + 2
    HG, WF, YD, YG, W2F = 224, 64, 128, 160, 188
    fp = lambda i: (120 + i) if i < 8 else (208 + i)
    WS = 's[72:75]'
    W = o.wd or W
    todo = list(range(128 - lag + 1, 129))
    def flag(c):
        A(f'v_mov_b32 v14, {c}')
        A('ds_write_b32 v8, v14')
        if c == 128 and o.diag:
            A('s_memrealtime s[86:87]')
    A('s_add_u32 s20, s20, 1')
    check('w')
    for e in range(NX):
        if e < 7:
            A(f's_mov_b32 m0, {W2S + e*1024}')
            A(f's_add_u32 s23, s6, {e*1024}')
            srd = 64
        else:
            k = e - 7
            a_, nn, u = k >> 3, (k >> 1) & 3, k & 1
            if k == 0:
                A('s_mov_b32 exec_hi, 0x00ffffff')
            A(f's_mov_b32 m0, {WOS + k*896}')
            A(f's_add_u32 s23, s4, {(4*a_+16*u+nn)*896}')
            srd = 60
        A(f's_waitcnt vmcnt({W-1})')
        while todo and 2048 + e >= 16 * todo[0] - 1 + W:
            flag(todo.pop(0))
        A(f'buffer_load_dwordx4 v24, s[{srd}:{srd+3}], s23 offen nt lds')
        if e == 0:
            A(f'ds_read_b128 {q(HA)}, v25')
            A(f'ds_read_b128 {q(G0)}, v25 offset:1024')
            A(f'ds_read_b128 {q(TAG)}, v25 offset:2048')
        if e == 3:
            A('s_waitcnt lgkmcnt(0)')
            for i in range(4):
                A(f'v_not_b32 v{HG+4*i+3}, v{TAG}')
        if e == 4:
            for i in range(5):
                A(f'v_mov_b32 v{YG+4*i+3}, v{TAG}')
        if e == 5:
            A(f'v_add_u32 v57, {RECB-REC:#x}, v{TAG+1}')
    for c in todo:
        A(f's_waitcnt vmcnt({2048 + NX - 16*c})')
        flag(c)
    A('s_mov_b64 exec, -1')
    h1loads = [f'buffer_load_dwordx4 {q(HG+4*i)}, v{TAG+1}, {WS}, s{76+i} offen {o.ldflags}' for i in range(4)]
    A('s_waitcnt vmcnt(16) lgkmcnt(0)')
    for i in range(14):
        A(f'ds_read_b64_tr_b16 {q(W2F+2*i,2)}, v{TAG+2} offset:{i*64}')
    for i in range(7):
        A(f's_waitcnt lgkmcnt({12-2*i})')
        A(f'v_mfma_f32_16x16x16_bf16 {q(YD+4*i)}, {q(HA,2)}, {q(W2F+4*i,2)}, 0')
    for i in range(7):
        A(f'v_mfma_f32_16x16x16_bf16 {q(YD+4*i)}, {q(HA+2,2)}, {q(W2F+4*i+2,2)}, {q(YD+4*i)}')
    for ld in h1loads:
        A(ld)
    A('s_nop 3')
    for i in range(7):
        A(f'v_mul_f32 v{fp(2*i)}, v{OMG}, v{YD+4*i}')
        A(f'v_mul_f32 v{fp(2*i+1)}, v{OMG+1}, v{YD+4*i+1}')
    A('s_waitcnt vmcnt(12)')
    for ld in h1loads:
        A(ld)
    A('s_waitcnt vmcnt(8)')
    def between():
        for i in range(14):
            A(f'ds_read_b64_tr_b16 {q(WF+4*i,2)}, v{TAG+3} offset:{i*64}')
            A(f'ds_read_b64_tr_b16 {q(WF+4*i+2,2)}, v{TAG+3} offset:{i*64+3584}')
    alt = (29, o.altp, [f'buffer_load_dwordx4 {q(HG+4*i)}, v57, {WS}, s{76+i} offen {o.ldflags}' for i in range(4)])
    g.apoll('h1', h1loads, [HG+4*i+3 for i in range(4)], [36, 38, 40, 10], TAG, 25, o.h1sleep, between=between, alt=alt, thro=o.h1thro)
    g.stamp(4)
    for i in range(4):
        A(f'v_mov_b32 v{16+i}, v{HG+4*i+2}')
        A(f'v_mov_b32 v{20+i}, v{HG+4*i+2}')
    for i in range(4):
        if i == 3:
            A('v_max_f32 v36, v16, v17')
        A(f'v_permlane16_swap_b32 v{16+i}, v{20+i}')
    A('v_max_f32 v37, v18, v19')
    A('s_nop 0')
    A(f'v_max_f32_dpp v36, v36, v36 row_ror:4 {DPPM}')
    A(f'v_max_f32_dpp v37, v37, v37 row_ror:4 {DPPM}')
    A('s_nop 0')
    A(f'v_max_f32_dpp v36, v36, v36 row_ror:8 {DPPM}')
    A(f'v_max_f32_dpp v37, v37, v37 row_ror:8 {DPPM}')
    A('v_mov_b32 v38, v36')
    A('v_mov_b32 v39, v37')
    A('s_nop 0')
    A('v_permlane32_swap_b32 v36, v38')
    A('v_permlane32_swap_b32 v37, v39')
    A('v_max_f32 v36, v36, v38')
    A('v_max_f32 v37, v37, v39')
    for i in range(4):
        A(f'v_sub_f32 v{40+i}, v{16+i}, v{36+(i>>1)}')
    for i in range(4):
        A(f'v_exp_f32 v{40+i}, v{40+i}')
    A('s_mov_b32 vcc_lo, 0xaaaaaaaa')
    for b in range(2):
        srcs0 = (HG+8*b, HG+8*b+1, 20+2*b)
        srcs1 = (HG+8*b+4, HG+8*b+5, 21+2*b)
        for k in range(3):
            A(f'v_mul_f32 v{44+3*b+k}, v{40+2*b}, v{srcs0[k]}')
        for k in range(3):
            A(f'v_fmac_f32 v{44+3*b+k}, v{41+2*b}, v{srcs1[k]}')
    A('s_mov_b32 vcc_hi, 0xaaaaaaaa')
    for k in range(3):
        A(f'v_permlane32_swap_b32 v{44+k}, v{47+k}')
    for k in range(3):
        A(f'v_add_f32 v{44+k}, v{44+k}, v{47+k}')
    for rr in (4, 8):
        for k in (2, 0, 1) if rr == 8 else (0, 1, 2):
            if rr == 8 and k == 2:
                A('s_nop 1')
            A(f'v_add_f32_dpp v{44+k}, v{44+k}, v{44+k} row_ror:{rr} {DPPM}')
            if rr == 8 and k == 2:
                A('v_rcp_f32 v46, v46')
    A('v_mul_f32 v44, v44, v46')
    A('v_mul_f32 v45, v45, v46')
    A('v_cvt_pk_bf16_f32 v44, v44, v45')
    A('v_mov_b32 v45, v44')
    A('s_nop 1')
    A('v_permlane32_swap_b32 v44, v45')
    A('s_nop 1')
    for nn in range(4):
        A(f'v_mov_b32_dpp v{36+nn}, v45 quad_perm:[{nn},{nn},{nn},{nn}] {DPPM}')
    for nn in range(4):
        A(f'v_cndmask_b32_dpp v{36+nn}, v44, v{36+nn}, vcc quad_perm:[{nn},{nn},{nn},{nn}] {DPPM}')
    for nn in range(4):
        A(f'v_cndmask_b32 v{48+nn}, 0, v{36+nn}, s[48:49]')
    for nn in range(4):
        A(f'v_cndmask_b32 v{52+nn}, 0, v{36+nn}, s[50:51]')
    A('s_waitcnt lgkmcnt(0)')
    seq = []
    for i in range(7):
        seq.append((i, 0))
        if i >= 1:
            seq.append((i-1, 1))
    seq.append((6, 1))
    for n, (i, e) in enumerate(seq):
        A(f'v_mfma_f32_16x16x32_bf16 {q(YD+4*i)}, {q(48+4*e)}, {q(WF+8*i+4*e)}, {"0" if e==0 else q(YD+4*i)}')
    for v in range(14):
        A(f'v_fma_f32 v{YG+4*(v//3)+v%3}, v{G0+(v&1)}, v{YD+4*(v>>1)+(v&1)}, v{fp(v)}')
        if v % 3 == 2 or v == 13:
            k = v // 3
            A(f'buffer_store_dwordx4 {q(YG+4*k)}, v24, {WS}, s{80+(k>>2)} offen offset:{(k&3)*1024} {o.stflags}')
    g.stamp(5)
    A(f's_waitcnt vmcnt({o.yw})')
    A(f'v_mov_b32 v14, {YDONE + 128:#x}')
    A('ds_write_b32 v8, v14')
    if o.diag:
        A('s_waitcnt lgkmcnt(0)')
        A('v_mov_b32 v16, s86')
        A('v_mov_b32 v17, s87')
        A('v_mov_b32 v18, 0')
        A('v_mov_b32 v19, 0')
        A('s_lshl_b32 s17, s2, 7')
        A(f's_add_u32 s17, s17, {STAMP+64:#x}')
        A('s_mov_b64 exec, 1')
        A('buffer_store_dwordx4 v[16:19], v19, s[68:71], s17 offen')
        for k in range(4):
            A(f'v_mov_b32 v{32+k}, s{94+k}')
        A('s_sub_u32 s17, s17, 32')
        A('buffer_store_dwordx4 v[32:35], v19, s[68:71], s17 offen')
        A('s_mov_b64 exec, -1')
        A('v_lshlrev_b32 v19, 2, v1')
        A('s_lshl_b32 s17, s2, 8')
        A(f's_add_u32 s17, s17, {STAMP+0x10000:#x}')
        A('buffer_store_dword v30, v19, s[68:71], s17 offen')
    A('s_endpgm')
    for tt in spins + ['f']:
        g.lab(f'.Lspin{tt}')
        A('ds_read_b32 v15, v7')
        A('s_waitcnt lgkmcnt(0)')
        A('v_readfirstlane_b32 s24, v15')
        A('s_and_b32 s24, s24, 0xffff')
        A('s_cmp_ge_i32 s24, 1' if tt == 'f' else 's_cmp_ge_i32 s24, s20')
        A(f's_cbranch_scc1 .Lgo{tt}')
        A('s_sleep 1')
        A('s_sub_u32 s25, s25, 1')
        A(f's_cbranch_scc0 .Lspin{tt}')
        A('s_mov_b32 s25, 0')
        A(f's_branch .Lgo{tt}')

    sX, sWQ, sWS, sW1, sG, sOUT = 8, 12, 16, 24, 32, 60
    TAG, LNDA, CONA, KA0, VA0, M, NM, LS = 6, 7, 8, 9, 10, 11, 12, 13
    KAC, VAC, O, S, T, P8 = 16, 20, 28, 36, 44, 48
    KV, QF, PV, FP, G0, TL = 64, 128, 160, 192, 206, 208
    HV = 240
    HA = 250
    OMG = 254
    sT, sSLOT, sLND, sC, sNEED, sBUD = 81, 82, 83, 84, 85, 80
    sRAW = 100
    WS = f's[{sWS}:{sWS+3}]'
    c1_start = len(g.L)
    if not o.lay:
        g.L.append('.p2align 6')
    g.lab('.Lcons')
    A('v_lshlrev_b32 v56, 4, v1')
    A('v_lshrrev_b32 v58, 3, v1')
    A('v_and_b32 v59, 7, v1')
    A('v_lshlrev_b32 v57, 13, v58')
    A('v_lshl_add_u32 v57, v59, 4, v57')
    A('v_mul_u32_u24 v58, 3584, v58')
    A('v_lshl_add_u32 v58, v59, 4, v58')
    A('v_mov_b32 v59, 0')
    A('v_and_b32 v2, 15, v1')
    A('v_lshrrev_b32 v3, 4, v1')
    A('v_bfe_u32 v4, v1, 2, 2')
    A('v_and_b32 v5, 3, v1')
    if o.qloc:
        mk_j2(28, 29)
    else:
        A('s_mov_b32 s28, s2')
    A('s_and_b32 s4, s28, 3')
    A(f's_mul_i32 s5, s4, {112*8192}')
    A('s_lshr_b32 s6, s28, 2')
    A('s_lshl_b32 s6, s6, 7')
    A('s_add_u32 s5, s5, s6')
    A('s_and_b32 s20, s2, 7')
    A(f's_mul_i32 s21, s20, {56*3584}')
    A('s_lshr_b32 s22, s2, 3')
    A('s_lshl_b32 s23, s22, 7')
    A('s_add_u32 s21, s21, s23')
    A('s_cmp_lt_u32 s2, 224')
    A('s_cselect_b32 s21, s21, 0x200000')
    A('s_waitcnt lgkmcnt(0)')
    g.srd(sWS, pWS, WS_BYTES)
    g.srd(sX, pX, 1792)
    g.srd(sWQ, pWQ, 448 * 8192)
    if o.cfirst < 0:
        A('s_barrier')
    g.stamp(0)
    if o.diag:
        A('s_mov_b32 s101, s30')
    A(f'buffer_load_dword v{TAG}, v59, {WS}, 0 offen')
    A(f's_mov_b32 m0, {XS}')
    A('s_nop 0')
    A(f'buffer_load_dwordx4 v56, s[{sX}:{sX+3}], 0 offen lds')
    A(f'buffer_load_dwordx4 v56, s[{sX}:{sX+3}], 0 offen offset:1024 lds')
    for t in range(14):
        if o.cfirst == t:
            A('s_barrier')
        A(f's_mov_b32 m0, {STG + t*1024}')
        A(f's_add_u32 s6, s5, {t*65536:#x}')
        A(f'buffer_load_dwordx4 v57, s[{sWQ}:{sWQ+3}], s6 offen {o.wqflags} lds')
    if o.cfirst == 14:
        A('s_barrier')
    g.srd(sW1, pW1, 448 * 3584)
    g.srd(sG, pG, 896)
    A(f's_mov_b32 m0, {GS}')
    g.srd(sOUT, pOUT, 1792)
    A(f'buffer_load_dwordx4 v56, s[{sG}:{sG+3}], 0 offen lds')
    for t in range(8):
        A(f's_mov_b32 m0, {W1S + t*1024}')
        if t < 7:
            A(f's_add_u32 s6, s21, {t*8*3584:#x}')
        else:
            A('s_mov_b32 s6, 0x200000')
        A(f'buffer_load_dwordx4 v58, s[{sW1}:{sW1+3}], s6 offen nt lds')
    if o.cfirst > 14:
        A('s_barrier')
    NW1 = 9
    if o.lay:
        A('s_branch .Lcons2')
        c1 = g.L[c1_start:]
        del g.L[c1_start:]
        i = g.L.index('@C1@')
        g.L[i:i+1] = c1
        g.L.append('.p2align 6')
        g.lab('.Lcons2')
    A('v_and_b32 v58, 1, v2')
    A('v_mul_u32_u24 v60, 896, v58')
    A('v_lshl_add_u32 v60, v3, 4, v60')
    A(f'v_add_u32 v60, {XS}, v60')
    A('v_lshl_add_u32 v61, v3, 3, v4')
    A('v_lshlrev_b32 v61, 7, v61')
    A('v_lshl_add_u32 v61, v5, 3, v61')
    A(f'v_add_u32 v51, {W1S}, v61')
    A(f'v_add_u32 v61, {STG}, v61')
    A('v_lshl_add_u32 v63, v3, 2, v4')
    A('v_lshlrev_b32 v63, 7, v63')
    A('v_lshl_add_u32 v63, v5, 3, v63')
    A(f'v_add_u32 v63, {STG+96*128}, v63')
    A('s_mul_i32 s6, s4, 224')
    A('v_add_u32 v57, s6, v60')
    A('v_lshlrev_b32 v55, 3, v3')
    A('v_sub_u32 v55, v57, v55')
    A('s_mul_i32 s6, s20, 112')
    A('v_add_u32 v54, s6, v60')
    A('v_lshlrev_b32 v62, 16, v58')
    A('v_bfe_u32 v14, v2, 1, 2')
    A('v_lshl_add_u32 v62, v14, 6, v62')
    A('v_lshl_add_u32 v62, v3, 4, v62')
    A('v_lshlrev_b32 v53, 7, v14')
    A('v_lshl_add_u32 v53, v58, 5, v53')
    A('v_lshrrev_b32 v14, 1, v3')
    A('v_lshl_add_u32 v53, v14, 6, v53')
    A('v_and_b32 v14, 1, v3')
    A('v_lshl_add_u32 v53, v14, 4, v53')
    A(f'v_bfe_u32 v{HV+4}, v1, 2, 3')
    A(f'v_lshlrev_b32 v{HV+4}, 9, v{HV+4}')
    A(f'v_lshl_add_u32 v{HV+4}, v5, 4, v{HV+4}')
    A('v_and_b32 v14, 7, v2')
    A('v_lshlrev_b32 v14, 1, v14')
    A('v_xor_b32 v14, v14, v3')
    A('v_lshlrev_b32 v14, 4, v14')
    A(f'v_lshl_add_u32 v{KA0}, v2, 9, v14')
    A('v_lshl_add_u32 v14, v3, 2, v4')
    A('v_and_b32 v15, 7, v14')
    A('v_lshlrev_b32 v15, 5, v15')
    A('v_lshl_add_u32 v15, v5, 3, v15')
    A(f'v_lshl_add_u32 v{VA0}, v14, 9, v15')
    A(f'v_mov_b32 v{LNDA}, {FL}')
    for v in range(8):
        qq, u = v >> 1, v & 1
        m16 = (1 << (4*qq+u)) | (1 << (4*qq+u+2))
        m32 = m16 | (m16 << 16)
        A(f's_mov_b32 s{64+2*v}, {m32:#x}')
        A(f's_mov_b32 s{65+2*v}, {m32:#x}')
    A(f's_mov_b32 s{sC}, {f32(0.0625*LOG2E)}')
    A(f's_mov_b32 s{sBUD}, {1<<22}')
    A(f's_mov_b32 s{sLND}, 0')
    A(f's_mov_b32 s{sSLOT}, 0')
    A('s_mov_b32 s7, 1664525')
    A('s_lshr_b32 s5, s28, 5')
    A('s_lshl_b32 s5, s5, 13')
    A('s_lshl_b32 s4, s4, 11')
    A('s_add_u32 s5, s5, s4')
    A('s_bfe_u32 s4, s28, 0x30002')
    A('s_lshl_b32 s4, s4, 8')
    A('s_add_u32 s5, s5, s4')
    A(f's_add_u32 s5, s5, {QP:#x}')
    mk_jv(6, 4)
    A('s_lshr_b32 s6, s6, 4')
    A('s_lshl_b32 s6, s6, 13')
    A(f's_add_u32 s6, s6, {QP:#x}')
    A('s_add_u32 s4, s6, 0x1000')
    A('s_lshl_b32 s21, s2, 9')
    A(f's_add_u32 s21, s21, {HP:#x}')
    A('s_lshl_b32 s22, s22, 12')
    A('s_lshl_b32 s20, s20, 6')
    A('s_add_u32 s22, s22, s20')
    A(f's_add_u32 s22, s22, {HP:#x}')
    for c in range(1, 4):
        m16 = (3 << (2*c)) | (3 << (2*c+8))
        A(f's_mov_b32 s{34+2*c}, {m16 | (m16 << 16):#x}')
        A(f's_mov_b32 s{35+2*c}, {m16 | (m16 << 16):#x}')
    for k in range(4):
        A(f's_mov_b32 s{42+k}, {0x07060500 + k:#x}')
    A('s_mov_b32 s46, 0x0c0c0400')
    A('s_mov_b32 s47, 0x04000c0c')

    def publish(D, dst, voff, soff):
        for c in range(1, 4):
            for r in range(4):
                A(f'v_cndmask_b32 v{D+r}, v{D+r}, v{D+4*c+r}, s[{34+2*c}:{35+2*c}]')
        for r in range(4):
            A(f'v_add_u32 v{D+r}, 0x80, v{D+r}')
        A('s_mov_b32 exec_lo, 0x00ff00ff')
        A('s_mov_b32 exec_hi, 0x00ff00ff')
        for r in range(4):
            A(f'v_perm_b32 v{dst+r}, v{D+r}, v{TAG}, s{42+r}')
        A(f'buffer_store_dwordx4 {q(dst)}, v{voff}, {WS}, s{soff} offen {o.stflags}')
        A('s_mov_b64 exec, -1')

    def rbf(r):
        A(f'v_cvt_pk_bf16_f32 v{r}, v{r}, v{r}')
        A(f'v_and_b32 v{r}, 0xffff0000, v{r}')

    XF, AF, QD = 64, 128, 80
    A(f's_waitcnt vmcnt({14+NW1})')
    A(f'v_mul_lo_u32 v{TAG}, v{TAG}, s7')
    for t in range(3):
        A(f'ds_read_b128 {q(XF+4*t)}, v57 offset:{t*64}')
    A(f'ds_read_b64 {q(XF+12,2)}, v55 offset:192')
    A(f'v_add_u32 v{TAG}, 1013904223, v{TAG}')
    def qm(t):
        for c in range(4):
            if t < 3:
                A(f'v_mfma_f32_16x16x32_bf16 {q(QD+4*c)}, {q(AF+16*t+4*c)}, {q(XF+4*t)}, {"0" if t==0 else q(QD+4*c)}')
            else:
                A(f'v_mfma_f32_16x16x16_bf16 {q(QD+4*c)}, {q(AF+48+2*c,2)}, {q(XF+12,2)}, {q(QD+4*c)}')
    for t in range(4):
        A(f's_waitcnt vmcnt({max(0, 10-4*t)+NW1})')
        for c in range(4):
            if t < 3:
                A(f'ds_read_b64_tr_b16 {q(AF+16*t+4*c,2)}, v61 offset:{t*4096+c*32}')
                A(f'ds_read_b64_tr_b16 {q(AF+16*t+4*c+2,2)}, v61 offset:{t*4096+c*32+512}')
            else:
                A(f'ds_read_b64_tr_b16 {q(AF+48+2*c,2)}, v63 offset:{c*32}')
        if t >= 1:
            A(f's_waitcnt lgkmcnt({8 if t < 3 else 4})')
            qm(t-1)
    A('s_waitcnt lgkmcnt(0)')
    qm(3)
    A('s_nop 5')
    publish(QD, T, 62, 5)
    g.stamp(1)
    for i in range(8):
        A(f'v_mov_b32 v{O+i}, 0')
    for i in range(32):
        A(f'v_mov_b32 v{PV+i}, 0')
    A(f'v_mov_b32 v{M}, 0xff7fffff')
    A(f'v_mov_b32 v{LS}, 0')
    A('v_lshlrev_b32 v57, 3, v1')
    A(f'v_add_u32 v57, {QS}, v57')
    A('v_bfe_u32 v58, v2, 1, 1')
    SCA = 245
    A(f'v_lshlrev_b32 v{SCA}, 6, v58')
    A(f'v_lshl_add_u32 v{SCA}, v3, 4, v{SCA}')
    A(f'v_add_u32 v{SCA}, {SCB}, v{SCA}')
    A('v_lshlrev_b32 v58, 9, v58')
    A('v_lshl_add_u32 v58, v3, 4, v58')
    A(f'v_add_u32 v58, {QS}, v58')

    def poll_landed():
        d = g.new('pd')
        sp = g.new('ps')
        A(f's_cmp_ge_u32 s{sLND}, s{sNEED}')
        A(f's_cbranch_scc1 {d}')
        g.lab(sp)
        A(f'ds_read_b32 v14, v{LNDA}')
        A('s_waitcnt lgkmcnt(0)')
        A(f'v_readfirstlane_b32 s{sLND}, v14')
        A(f's_cmp_ge_u32 s{sLND}, s{sNEED}')
        A(f's_cbranch_scc1 {d}')
        if o.lsleep:
            A(f's_sleep {o.lsleep}')
        A(f's_sub_u32 s{sBUD}, s{sBUD}, 1')
        A(f's_cbranch_scc0 {sp}')
        A(f's_mov_b32 s{sBUD}, 0')
        g.lab(d)

    hload = f'buffer_load_dwordx4 {q(HV)}, v{HV+4}, {WS}, s22 offen {o.ldflags}'
    def qloads():
        for i in range(8):
            A(f'buffer_load_dwordx4 {q(KV+4*i)}, v56, {WS}, s{6 if i < 4 else 4} offen offset:{(i&3)*1024} {o.ldflags}')
    A('s_waitcnt vmcnt(1)')
    A(f's_mov_b32 s{sNEED}, {o.qwait}')
    poll_landed()
    qloads()
    HD = 104
    for t in range(2):
        A(f'ds_read_b128 {q(96+4*t)}, v54 offset:{t*64}')
    for t in range(2):
        for c in range(4):
            A(f'ds_read_b64_tr_b16 {q(AF+16*t+4*c,2)}, v51 offset:{t*4096+c*32}')
            A(f'ds_read_b64_tr_b16 {q(AF+16*t+4*c+2,2)}, v51 offset:{t*4096+c*32+512}')
    A(f'v_add_u32 v52, {GS}, v56')
    A(f'ds_read_b128 {q(TL)}, v52')
    A(f'v_add_u32 v52, {XS}, v56')
    A(f'ds_read_b128 {q(TL+4)}, v52')
    A(f'ds_read_b128 {q(TL+8)}, v52 offset:896')
    A(f'v_mov_b32 v14, {(o.c0 << 16) + 1:#x}')
    A('s_waitcnt lgkmcnt(3)')
    A(f'ds_write_b32 v{CONA}, v14')
    for t in range(2):
        for c in range(4):
            A(f'v_mfma_f32_16x16x32_bf16 {q(HD+4*c)}, {q(AF+16*t+4*c)}, {q(96+4*t)}, {"0" if t==0 else q(HD+4*c)}')
    A('s_nop 5')
    publish(HD, 120, 53, 21)
    A('s_waitcnt lgkmcnt(0)')
    for b in range(2):
        acc = TL + 12 + b
        for d in range(4):
            A(f'v_lshlrev_b32 v{TL+16}, 16, v{TL+d}')
            A(f'v_and_b32 v{TL+17}, 0xffff0000, v{TL+d}')
            A(f'v_lshlrev_b32 v{TL+18}, 16, v{TL+4+4*b+d}')
            A(f'v_and_b32 v{TL+19}, 0xffff0000, v{TL+4+4*b+d}')
            A(f'v_mul_f32 v{TL+16}, v{TL+16}, v{TL+18}')
            A(f'v_mul_f32 v{TL+17}, v{TL+17}, v{TL+19}')
            A(f'v_cvt_pk_bf16_f32 v{TL+18}, v{TL+16}, v{TL+17}')
            A(f'v_lshlrev_b32 v{TL+16}, 16, v{TL+18}')
            A(f'v_and_b32 v{TL+17}, 0xffff0000, v{TL+18}')
            if d == 0:
                A(f'v_add_f32 v{acc}, v{TL+16}, v{TL+17}')
            else:
                A(f'v_add_f32 v{acc}, v{acc}, v{TL+16}')
                A(f'v_add_f32 v{acc}, v{acc}, v{TL+17}')
    Z = TL + 12
    A('s_nop 1')
    A(f'v_permlane32_swap_b32 v{Z}, v{Z+1}')
    A(f'v_add_f32 v{Z}, v{Z}, v{Z+1}')
    A(f'v_mov_b32 v{Z+1}, v{Z}')
    A('s_nop 1')
    A(f'v_permlane16_swap_b32 v{Z}, v{Z+1}')
    A(f'v_add_f32 v{Z}, v{Z}, v{Z+1}')
    for rr in (8, 4, 2, 1):
        A('s_nop 1')
        A(f'v_add_f32_dpp v{Z}, v{Z}, v{Z} row_ror:{rr} {DPPM}')
    rbf(Z)
    A(f'v_mul_f32 v{Z}, {f32(-LOG2E)}, v{Z}')
    A(f'v_exp_f32 v{Z}, v{Z}')
    A('s_nop 0')
    A(f'v_add_f32 v{Z}, 1.0, v{Z}')
    A(f'v_rcp_f32 v{G0}, v{Z}')
    A('s_nop 0')
    rbf(G0)
    A(f'v_sub_f32 v{OMG}, 1.0, v{G0}')
    rbf(OMG)
    A(f'v_mov_b32 v{G0+1}, v{G0}')
    A(f'v_mov_b32 v{OMG+1}, v{OMG}')
    A('s_nop 1')
    A(f'v_permlane32_swap_b32 v{G0}, v{G0+1}')
    A(f'v_permlane32_swap_b32 v{OMG}, v{OMG+1}')
    g.lab('.Lqchk')
    for i in range(8):
        A(f's_waitcnt vmcnt({8-i})')
        A(f'v_perm_b32 v14, v{KV+4*i+1}, v{KV+4*i}, s46')
        A(f'v_perm_b32 v15, v{KV+4*i+3}, v{KV+4*i+2}, s47')
        for r in range(4):
            A(f'v_and_b32 v{KV+4*i+r}, 0xffffff00, v{KV+4*i+r}')
        A(f'v_xor_b32 v14, v14, v{TAG}')
        if i == 0:
            A('v_xor_b32 v36, v14, v15')
        else:
            A('v_xor_b32 v14, v14, v15')
            A('v_or_b32 v36, v36, v14')
        if i >= 2:
            h = i & 1
            A(f'v_pk_add_f32 {q(KV+4*h,2)}, {q(KV+4*h,2)}, {q(KV+4*i,2)}')
            A(f'v_pk_add_f32 {q(KV+4*h+2,2)}, {q(KV+4*h+2,2)}, {q(KV+4*i+2,2)}')
    A('v_cmp_ne_u32 vcc, 0, v36')
    A('s_cbranch_vccz .Lqok')
    A(f's_sleep {o.qsleep}')
    qloads()
    A(hload)
    A(f's_sub_u32 s{sBUD}, s{sBUD}, 64')
    A('s_cbranch_scc0 .Lqchk')
    A(f's_mov_b32 s{sBUD}, 0')
    A('s_waitcnt vmcnt(0)')
    g.lab('.Lqok')
    for h in range(2):
        A(f'v_cvt_pk_bf16_f32 v{T+2*h}, v{KV+4*h}, v{KV+4*h+1}')
        A(f'v_cvt_pk_bf16_f32 v{T+2*h+1}, v{KV+4*h+2}, v{KV+4*h+3}')
    A(f'ds_write_b64 v57, {q(T,2)}')
    A(f'ds_write_b64 v57, {q(T+2,2)} offset:512')
    A(hload)
    A('s_waitcnt lgkmcnt(0)')
    for j in range(8):
        A(f'ds_read_b128 {q(QF+4*j)}, v58 offset:{j*64}')
    g.stamp(2)

    ctl = len(wins) > 1 or o.ctlonly
    sCODE, sTAG, sFO = 23, 20, 21
    A(f's_mov_b32 s{sCODE}, {o.c0 << 16:#x}')
    if ctl:
        A(f'v_readfirstlane_b32 s{sTAG}, v{TAG}')
        if o.diag:
            A('v_mov_b32 v239, 0')
        A(f's_add_u32 s52, s{pWS}, {FLG:#x}')
        A(f's_addc_u32 s53, s{pWS+1}, 0')
        A('s_lshl_b32 s8, s2, 8')
        assert len(o.cps) <= 16
        cm = sum(1 << c for c in o.cps)
        for i in range(4):
            A(f's_mov_b32 s{36+i}, {(cm >> (32*i)) & 0xffffffff:#x}')
        if o.delta:
            cm = sum(1 << (c - o.delta) for c in o.cps)
            assert all(c - o.delta not in (64, 65) for c in o.cps)
            for i in range(4):
                A(f's_mov_b32 s{10+i}, {(cm >> (32*i)) & 0xffffffff:#x}')
        A(f's_lshl_b32 s{sFO}, s2, 8')
        A(f's_add_u32 s{sFO}, s{sFO}, {FLG:#x}')
    DST = [24, 25, 26, 27, 28, 29, 30, 31, 32, 33, 34, 35, 56, 57]
    def control(back):
        half = 0 if back == '.Lktile' else 1
        mask = sum(1 << (c - 64 * half) for c in o.cps if 64 * half <= c < 64 * half + 64)
        if o.delta:
            sk = g.new('sk')
            A(f's_bitcmp0_b64 s[{10+2*half}:{11+2*half}], s{sNEED}')
            A(f's_cbranch_scc1 {sk}')
            A(f'v_xor_b32 v14, 1, v{TAG}')
            A('s_mov_b64 exec, 1')
            A(f'buffer_store_dword v14, v59, {WS}, s{sFO} offen {o.stflags}')
            A('s_mov_b64 exec, -1')
            g.lab(sk)
        A(f's_bitcmp0_b64 s[{36+2*half}:{37+2*half}], s{sNEED}')
        A(f's_cbranch_scc1 {back}')
        for i in range(14):
            m = ((i >> 1) + 1) | ((i & 1) << 3) | (o.gm[i >> 1] << 4)
            A(f's_xor_b32 s{DST[i]}, s8, {m << 8:#x}')
            A(f's_load_dword s{DST[i]}, s[52:53], s{DST[i]}')
        A('s_mov_b64 exec, 1')
        A(f'buffer_store_dword v{TAG}, v59, {WS}, s{sFO} offen {o.stflags}')
        A('s_mov_b64 exec, -1')
        if half and o.prew:
            sk = g.new('sk')
            A(f's_cmp_lg_u32 s{sNEED}, {o.prew}')
            A(f's_cbranch_scc1 {sk}')
            A('v_lshlrev_b32 v14, 6, v1')
            A(f'buffer_load_dword v246, v14, {WS}, s44 offen {o.ldflags}')
            g.lab(sk)
        A(f's_add_u32 s{sFO}, s{sFO}, 0x10000')
        A('s_mov_b32 s15, 0')
        A('s_waitcnt lgkmcnt(0)')
        A('s_add_u32 s52, s52, 0x10000')
        A('s_addc_u32 s53, s53, 0')
        for i in range(14):
            A(f's_cmp_eq_u32 s{DST[i]}, s{sTAG}')
            A('s_addc_u32 s15, s15, 0')
        if o.delta:
            A('s_mov_b32 s9, 0')
            for i in range(14):
                A(f's_xor_b32 s{DST[i]}, s{DST[i]}, s{sTAG}')
                A(f's_cmp_gt_u32 s{DST[i]}, 1')
                A('s_addc_u32 s9, s9, 0')
            A(f's_cmp_ge_u32 s9, {o.farn}')
            A(f's_cselect_b32 s9, {o.farsub}, 0')
            A('s_sub_u32 s15, s15, s9')
            A('s_max_i32 s15, s15, 0')
        if o.diag:
            A(f's_lshr_b32 m0, s{sNEED}, 1')
            A('s_add_u32 s24, s15, 1')
            A('v_writelane_b32 v239, s24, m0')
        A(f's_mov_b32 s{sCODE}, 0')
        if half and o.thr2:
            sk = g.new('sk')
            A(f's_cmp_lt_u32 s{sNEED}, {o.late}')
            A(f's_cbranch_scc1 {sk}')
            for k, thr in enumerate(o.thr2[:len(wins)-1]):
                A(f's_cmp_ge_u32 s15, {thr}')
                A(f's_cselect_b32 s{sCODE}, {(k+1) << 16:#x}, s{sCODE}')
            A(f's_branch {back}')
            g.lab(sk)
        for k, thr in enumerate(o.thr[:len(wins)-1]):
            A(f's_cmp_ge_u32 s15, {thr}')
            A(f's_cselect_b32 s{sCODE}, {(k+1) << 16:#x}, s{sCODE}')
        A(f's_branch {back}')
    A(f's_mov_b32 s{sNEED}, 1')
    g.L.append('.p2align 6')
    g.lab('.Lktile')
    A(f'v_add_u32 v{KAC}, s{sSLOT}, v{KA0}')
    for i in range(1, 4):
        A(f'v_xor_b32 v{KAC+i}, {i*64}, v{KAC}')
    poll_landed()
    for i in range(16):
        j, hh = i >> 1, i & 1
        A(f'ds_read_b128 {q(KV+4*i)}, v{KAC+(j&3)} offset:{hh*8192+(j>>2)*256}')
    A(f's_add_u32 s{sNEED}, s{sNEED}, 1')
    A(f's_or_b32 s15, s{sNEED}, s{sCODE}')
    A('v_mov_b32 v14, s15')
    for i in range(16):
        j, hh = i >> 1, i & 1
        A(f's_waitcnt lgkmcnt({15-i})')
        if i == 15:
            A(f'ds_write_b32 v{CONA}, v14')
        A(f'v_mfma_f32_16x16x32_bf16 {q(S+4*hh)}, {q(KV+4*i)}, {q(QF+4*j)}, {"0" if j==0 else q(S+4*hh)}')
    A(f's_add_u32 s{sSLOT}, s{sSLOT}, {SLOT:#x}')
    A(f's_cmp_eq_u32 s{sSLOT}, {NSL*SLOT:#x}')
    A(f's_cselect_b32 s{sSLOT}, 0, s{sSLOT}')
    A('s_nop 4')
    for i in range(4):
        A(f'v_cvt_pk_bf16_f32 v{T+i}, v{S+2*i}, v{S+2*i+1}')
    A('s_mov_b64 exec, s[64:65]')
    A(f'ds_write_b128 v{SCA}, {q(T)}')
    A('s_mov_b64 exec, -1')
    A(f'v_max3_f32 v14, v{S}, v{S+1}, v{S+2}')
    A(f'v_max3_f32 v15, v{S+3}, v{S+4}, v{S+5}')
    A(f'v_max3_f32 v14, v14, v{S+6}, v{S+7}')
    A(f'v_max3_f32 v{M}, v14, v15, v{M}')
    A(f'v_add_u32 v{SCA}, 128, v{SCA}')
    if ctl:
        A(f's_cmp_gt_u32 s{sNEED}, 64')
        A('s_cbranch_scc1 .Lkdone')
        control('.Lktile')
        g.lab('.Lkdone')
    else:
        A(f's_cmp_le_u32 s{sNEED}, 64')
        A('s_cbranch_scc1 .Lktile')
    A(f'v_mov_b32 v15, v{M}')
    A(f'v_subrev_u32 v{SCA}, {64*128}, v{SCA}')
    A('s_nop 0')
    A(f'v_permlane16_swap_b32 v{M}, v15')
    A(f'v_max_f32 v{M}, v{M}, v15')
    A(f'v_mov_b32 v15, v{M}')
    A('s_nop 1')
    A(f'v_permlane32_swap_b32 v{M}, v15')
    A(f'v_max_f32 v{M}, v{M}, v15')
    rbf(M)
    A(f'v_mul_f32 v{NM}, s{sC}, v{M}')

    H = TL
    g.lab('.Lhchk')
    A('s_waitcnt vmcnt(0)')
    A(f'v_perm_b32 v14, v{HV+1}, v{HV}, s46')
    A(f'v_perm_b32 v15, v{HV+3}, v{HV+2}, s47')
    A('v_xor_b32 v14, v14, v15')
    A(f'v_cmp_ne_u32 vcc, v14, v{TAG}')
    A('s_cbranch_vccz .Lhok')
    A(hload)
    A(f's_sub_u32 s{sBUD}, s{sBUD}, 64')
    A('s_cbranch_scc0 .Lhchk')
    A(f's_mov_b32 s{sBUD}, 0')
    A('s_waitcnt vmcnt(0)')
    g.lab('.Lhok')
    for r in range(4):
        A(f'v_and_b32 v{H+r}, 0xffffff00, v{HV+r}')
    for rr in (4, 8):
        for r in range(4):
            A(f'v_add_f32_dpp v{H+r}, v{H+r}, v{H+r} row_ror:{rr} {DPPM}')
    for r in range(4):
        A(f'v_mov_b32 v{H+4+r}, v{H+r}')
    A('s_nop 0')
    for r in range(4):
        A(f'v_permlane16_swap_b32 v{H+r}, v{H+4+r}')
    for r in range(4):
        A(f'v_add_f32 v{H+r}, v{H+r}, v{H+4+r}')
    for r in range(4):
        rbf(H + r)
    for r in range(4):
        A(f'v_mul_f32 v{H+4+r}, {f32(-LOG2E)}, v{H+r}')
    for r in range(4):
        A(f'v_exp_f32 v{H+4+r}, v{H+4+r}')
    A('s_nop 0')
    for r in range(4):
        A(f'v_add_f32 v{H+4+r}, 1.0, v{H+4+r}')
    for r in range(4):
        A(f'v_rcp_f32 v{H+4+r}, v{H+4+r}')
    A('s_nop 0')
    for r in range(4):
        A(f'v_mul_f32 v{H+r}, v{H+r}, v{H+4+r}')
    A(f'v_cvt_pk_bf16_f32 v{H+4}, v{H}, v{H+1}')
    A(f'v_cvt_pk_bf16_f32 v{H+5}, v{H+2}, v{H+3}')
    A('v_and_b32 v14, 1, v2')
    A('v_and_b32 v15, 1, v3')
    A('v_lshlrev_b32 v14, 3, v14')
    A('v_lshl_add_u32 v57, v15, 2, v14')
    A(f'ds_bpermute_b32 v{H+6}, v57, v{H+4}')
    A(f'ds_bpermute_b32 v{H+8}, v57, v{H+5}')
    A('s_mov_b32 s48, 0x00030003')
    A('s_mov_b32 s49, 0x00300030')
    A('s_mov_b32 s50, 0x03000300')
    A('s_mov_b32 s51, 0x30003000')
    A('v_lshl_add_u32 v14, v15, 2, v4')
    A('v_mul_u32_u24 v60, 896, v14')
    A('v_lshrrev_b32 v14, 1, v3')
    A('v_lshl_add_u32 v60, v14, 5, v60')
    A('v_lshl_add_u32 v60, v5, 3, v60')
    A('v_mul_u32_u24 v63, 3584, v15')
    A('v_add_u32 v63, v63, v60')
    A(f'v_add_u32 v63, {WOS}, v63')
    A(f'v_add_u32 v60, {W2S}, v60')
    A('s_waitcnt lgkmcnt(0)')
    A(f'v_cndmask_b32 v{HA}, 0, v{H+6}, s[48:49]')
    A(f'v_cndmask_b32 v{HA+1}, 0, v{H+8}, s[48:49]')
    A(f'v_cndmask_b32 v{HA+2}, 0, v{H+6}, s[50:51]')
    A(f'v_cndmask_b32 v{HA+3}, 0, v{H+8}, s[50:51]')
    RG = TL
    HG = TL + 16
    for i in range(4):
        A(f'v_mov_b32 v{RG+4*i+3}, v{TAG}')
    A('v_lshrrev_b32 v57, 2, v1')
    A(f'v_mul_u32_u24 v61, {YROW}, v57')
    A('v_lshl_add_u32 v61, v5, 4, v61')
    A('v_lshrrev_b32 v58, 5, v1')
    A('v_lshl_add_u32 v58, v58, 2, v4')
    A('v_lshlrev_b32 v58, 12, v58')
    A('v_lshl_add_u32 v58, v15, 6, v58')
    A('v_lshl_add_u32 v58, v5, 4, v58')
    A(f'v_add_u32 v57, {XS}, v56')
    A(f'v_mov_b64 {q(T,2)}, {q(G0,2)}')
    A(f'v_mov_b64 {q(T+2,2)}, {q(OMG,2)}')
    A(f'v_mov_b32 v{P8}, v{TAG}')
    A(f'v_mov_b32 v{P8+1}, v58')
    A(f'v_mov_b32 v{P8+2}, v60')
    A(f'v_mov_b32 v{P8+3}, v63')
    A(f'ds_write_b128 v57, {q(HA)}')
    A(f'ds_write_b128 v57, {q(T)} offset:1024')
    A(f'ds_write_b128 v57, {q(P8)} offset:2048')
    mk_jv(44, 46)
    A('s_lshl_b32 s44, s44, 12')
    A(f's_add_u32 s44, s44, {REC:#x}')
    if o.rpair:
        A('s_andn2_b32 s47, s2, 15')
        A('s_and_b32 s43, s2, 7')
        A('s_lshl_b32 s43, s43, 1')
        A('s_or_b32 s47, s47, s43')
        A('s_bfe_u32 s43, s2, 0x10003')
        A('s_or_b32 s47, s47, s43')
        A('s_lshl_b32 s47, s47, 3')
    else:
        A('s_lshl_b32 s47, s2, 3')
    A('s_lshr_b32 s43, s2, 4')
    A('s_mul_i32 s43, s43, 3')
    A('v_lshrrev_b32 v14, 1, v3')
    A('v_lshl_add_u32 v14, v15, 1, v14')
    A('v_add_u32 v14, s43, v14')
    A('v_and_b32 v62, 1, v14')
    A('v_mul_u32_u24 v62, 896, v62')
    A('v_cmp_lt_u32 vcc, 13, v14')
    A('v_lshrrev_b32 v14, 1, v14')
    A('v_lshl_add_u32 v62, v14, 7, v62')
    A('v_lshl_add_u32 v62, v5, 1, v62')
    A('v_mov_b32 v14, 0x10000')
    A('v_cndmask_b32 v62, v62, v14, vcc')
    A('s_and_b32 s46, s47, 0x78')
    A(f's_add_u32 s43, s44, {RECB-REC:#x}')

    g.L.append('.p2align 6')
    g.lab('.Lvtile')
    A(f'ds_read_b128 {q(T)}, v{SCA}')
    A(f'v_add_u32 v{SCA}, 128, v{SCA}')
    A(f'v_add_u32 v{VAC}, s{sSLOT}, v{VA0}')
    for i in range(1, 8):
        A(f'v_xor_b32 v{VAC+i}, {i*32}, v{VAC}')
    A('s_waitcnt lgkmcnt(0)')
    for i in range(4):
        A(f'v_lshlrev_b32 v{S+2*i}, 16, v{T+i}')
        A(f'v_and_b32 v{S+2*i+1}, 0xffff0000, v{T+i}')
    for i in range(8):
        A(f'v_fma_f32 v{P8+i}, v{S+i}, s{sC}, -v{NM}')
    for i in range(8):
        A(f'v_exp_f32 v{P8+i}, v{P8+i}')
    A('s_nop 0')
    for i in range(4):
        A(f'v_cvt_pk_bf16_f32 v{T+i}, v{P8+2*i}, v{P8+2*i+1}')
    A(f'v_add_f32 v{LS}, v{LS}, v{P8}')
    A(f'v_add_f32 v{P8+1}, v{P8+1}, v{P8+2}')
    A(f'v_add_f32 v{P8+3}, v{P8+3}, v{P8+4}')
    A(f'v_add_f32 v{P8+5}, v{P8+5}, v{P8+6}')
    A(f'v_add_f32 v{LS}, v{LS}, v{P8+7}')
    A(f'v_add_f32 v{P8+1}, v{P8+1}, v{P8+3}')
    A(f'v_add_f32 v{LS}, v{LS}, v{P8+5}')
    A(f'v_add_f32 v{LS}, v{LS}, v{P8+1}')
    for v in range(8):
        A(f's_mov_b64 exec, s[{64+2*v}:{65+2*v}]')
        A(f'v_mov_b64 {q(PV+4*v,2)}, {q(T,2)}')
        A(f'v_mov_b64 {q(PV+4*v+2,2)}, {q(T+2,2)}')
    A('s_mov_b64 exec, -1')
    poll_landed()
    order = [(i & 1) * 8 + (i >> 1) for i in range(16)]
    def vread(i):
        m = order[i]
        for kh in range(2):
            A(f'ds_read_b64_tr_b16 {q(KV+4*i+2*kh,2)}, v{VAC+(m&7)} offset:{kh*8192+(m>>3)*256}')
    PRE = 7
    for i in range(PRE):
        vread(i)
    A(f's_add_u32 s{sNEED}, s{sNEED}, 1')
    A(f's_or_b32 s15, s{sNEED}, s{sCODE}')
    A('v_mov_b32 v14, s15')
    for i in range(16):
        issued = min(16, i + PRE)
        A(f's_waitcnt lgkmcnt({2*(issued-i-1)})')
        m = order[i]
        a = m >> 3
        if i == 15:
            A(f'ds_write_b32 v{CONA}, v14')
        A(f'v_mfma_f32_16x16x32_bf16 {q(O+4*a)}, {q(PV+4*(m&7))}, {q(KV+4*i)}, {q(O+4*a)}')
        if i + PRE < 16:
            vread(i + PRE)
    A(f's_add_u32 s{sSLOT}, s{sSLOT}, {SLOT:#x}')
    A(f's_cmp_eq_u32 s{sSLOT}, {NSL*SLOT:#x}')
    A(f's_cselect_b32 s{sSLOT}, 0, s{sSLOT}')
    if ctl:
        A(f's_cmp_gt_u32 s{sNEED}, {max(o.cps)}')
        A('s_cbranch_scc1 .Lvlast')
        control('.Lvtile')
        g.lab('.Lvlast')
    A(f's_cmp_le_u32 s{sNEED}, 128')
    A('s_cbranch_scc1 .Lvtile')

    g.stamp(3)
    A(f'v_mov_b32 v15, v{LS}')
    A('s_mov_b32 vcc_lo, 0xf0f0f0f0')
    A('s_mov_b32 vcc_hi, 0xf0f0f0f0')
    A(f'v_permlane16_swap_b32 v{LS}, v15')
    A(f'v_add_f32 v{LS}, v{LS}, v15')
    A(f'v_mov_b32 v15, v{LS}')
    A(f'v_mov_b64 {q(RG,2)}, {q(O,2)}')
    A(f'v_mov_b64 {q(RG+8,2)}, {q(O+2,2)}')
    A(f'v_permlane32_swap_b32 v{LS}, v15')
    A(f'v_add_f32 v{LS}, v{LS}, v15')
    A(f'v_cndmask_b32 v15, v{NM}, v{LS}, vcc')
    A(f'v_mov_b64 {q(RG+4,2)}, {q(O+4,2)}')
    A(f'v_mov_b64 {q(RG+12,2)}, {q(O+6,2)}')
    for h in range(2):
        for a in range(2):
            r = RG + 8*h + 4*a
            A(f'v_mov_b32_dpp v{r+2}, v15 quad_perm:[{2*h},{2*h},{2*h},{2*h}] {DPPM}')
            A(f'buffer_store_dwordx4 {q(r)}, v56, {WS}, s44 offen offset:{h*2048+a*1024} {o.recflags}')
    for i in range(4):
        A(f'buffer_store_dwordx4 {q(RG+4*i)}, v56, {WS}, s43 offen offset:{i*1024} sc1')
    A(f's_cmp_ge_u32 s2, {NRED}')
    A('s_cbranch_scc1 .Lfin')
    for i in range(16):
        A(f'v_not_b32 v{KV+4*i+3}, v{TAG}')
    A('s_lshl_b32 s64, s47, 3')
    A(f's_add_u32 s64, s64, {YB:#x}')
    for i in range(1, 16):
        A(f's_add_u32 s{64+i}, s64, {i*16*YROW:#x}')
    sen = None
    if o.sen:
        A('s_and_b32 s4, s2, 7')
        A('s_lshl_b32 s4, 1, s4')
        A('s_not_b32 s4, s4')
        A('v_mov_b32 v14, 0')
        if o.sen > 1:
            A('s_waitcnt vmcnt(0)')
        sen = (LNDA, YDONE, 5, 4)
    else:
        A(f's_mov_b32 s{sNEED}, {YDONE:#x}')
        poll_landed()
    mk = [8, 10, 12, 14, 20, 22, 24, 26, 28, 30, 32, 34, 36, 38, 40, 42]
    g.apoll('h2', [f'buffer_load_dwordx4 {q(KV+4*i)}, v61, {WS}, s{64+i} offen {o.ldflags}' for i in range(16)],
            [KV+4*i+3 for i in range(16)], mk, TAG, sBUD, o.h2sleep, sen=sen, thro=o.h2thr)
    for k in range(4):
        A(f'v_pk_add_f32 v[{36+2*k}:{37+2*k}], {q(KV+8*k,2)}, {q(KV+8*k+4,2)}')
    for k in range(4):
        A(f'v_pk_add_f32 v[{44+2*k}:{45+2*k}], {q(KV+32+8*k,2)}, {q(KV+32+8*k+4,2)}')
    for k in range(4):
        A(f'v_pk_add_f32 v[{36+2*k}:{37+2*k}], v[{36+2*k}:{37+2*k}], v[{44+2*k}:{45+2*k}]')
    for k in range(8):
        A(f'v_add_f32 v{16+k}, v{KV+8*k+2}, v{KV+8*k+6}')
    A('v_pk_add_f32 v[36:37], v[36:37], v[38:39]')
    A('v_pk_add_f32 v[40:41], v[40:41], v[42:43]')
    A('v_pk_add_f32 v[16:17], v[16:17], v[18:19]')
    A('v_pk_add_f32 v[20:21], v[20:21], v[22:23]')
    A('v_pk_add_f32 v[36:37], v[36:37], v[40:41]')
    A('v_pk_add_f32 v[16:17], v[16:17], v[20:21]')
    A('s_nop 0')
    A('v_permlane32_swap_b32 v36, v37')
    A('v_permlane32_swap_b32 v16, v17')
    A('v_add_f32 v36, v36, v37')
    A('v_add_f32 v16, v16, v17')
    A('v_mov_b32 v17, v16')
    A('s_nop 1')
    A('v_permlane32_swap_b32 v16, v17')
    A('v_add_f32 v16, v16, v17')
    A('s_nop 1')
    A('v_permlane16_swap_b32 v36, v16')
    A('v_add_f32 v36, v36, v16')
    for rr in (4, 8):
        A('s_nop 1')
        A(f'v_add_f32_dpp v36, v36, v36 row_ror:{rr} {DPPM}')
    A('v_cvt_pk_bf16_f32 v36, v36, v36')
    A('s_mov_b32 exec_lo, 0x000f000f')
    A('s_mov_b32 exec_hi, 0xf')
    A(f'buffer_store_short v36, v62, s[{sOUT}:{sOUT+3}], s46 offen')
    A('s_cmp_lg_u32 s2, 0')
    A('s_cbranch_scc1 .Lfin')
    A('s_mov_b64 exec, 1')
    A(f'buffer_store_dword v{TAG}, v59, {WS}, 0 offen')
    g.lab('.Lfin')
    if o.diag:
        g.stamp(6)
        A('s_mov_b64 exec, 1')
        A('s_lshl_b32 s4, s2, 7')
        A(f's_add_u32 s4, s4, {STAMP:#x}')
        for k in (0, 1, 2, 3, 6):
            A(f'v_mov_b32 v14, s{86+2*k}')
            A(f'v_mov_b32 v15, s{87+2*k}')
            A(f'buffer_store_dwordx2 v[14:15], v59, {WS}, s4 offen offset:{8*k}')
            A('s_nop 1')
        A('v_mov_b32 v14, s101')
        A('v_mov_b32 v15, s87')
        A(f'buffer_store_dwordx2 v[14:15], v59, {WS}, s4 offen offset:56')
        if ctl:
            A('s_mov_b64 exec, -1')
            A('v_lshlrev_b32 v14, 2, v1')
            A('s_lshl_b32 s4, s2, 8')
            A(f's_add_u32 s4, s4, {STAMP+0x20000:#x}')
            A(f'buffer_store_dword v239, v14, {WS}, s4 offen')
    g.lab('.Lexit')
    A('s_endpgm')

    ref = open('cdna_kernels/' + NAME + '.s.ref').read().split('\n')
    head = [l for l in ref if l.startswith(';') and '@launch' not in l and 'Override launch' not in l and 'grid=ceil' not in l]
    txt = '\n'.join(head) + '\n'
    txt += f'; @launch grid=(256,1,1) block=(128,1,1) lds={LDS_BYTES}\n'
    txt += DOC
    txt += '.amdgcn_target "amdgcn-amd-amdhsa--gfx950"\n.text\n'
    txt += '\n'.join(g.L) + '\n'
    txt += f'''.section .rodata,"a"
.p2align 6
.amdhsa_kernel {K}
  .amdhsa_next_free_vgpr 256
  .amdhsa_next_free_sgpr 102
  .amdhsa_accum_offset 256
  .amdhsa_group_segment_fixed_size 0
  .amdhsa_kernarg_size 96
  .amdhsa_user_sgpr_count 2
  .amdhsa_user_sgpr_kernarg_segment_ptr 1
  .amdhsa_system_sgpr_workgroup_id_x 1
  .amdhsa_float_denorm_mode_32 3
.end_amdhsa_kernel
'''
    return txt


def parser():
    p = argparse.ArgumentParser()
    il = lambda x: [int(v) for v in x.split(',') if v]
    p.add_argument('-o', default='cdna_kernels/' + NAME + '.s')
    p.add_argument('--window', type=int, default=18)
    p.add_argument('--gs', type=int, default=2)
    p.add_argument('--unit', type=int, default=8)
    p.add_argument('--idxsh', type=int, default=3)
    p.add_argument('--perm', type=il, default=[0, 2, 1, 3])
    p.add_argument('--qwait', type=int, default=3)
    p.add_argument('--cfirst', type=int, default=15)
    p.add_argument('--wk', type=il, default=[])
    p.add_argument('--w1', type=il, default=[28,28,28,28,28,28,28,24])
    p.add_argument('--icpf', type=int, default=16)
    p.add_argument('--wins', type=il, default=[19,20,21,22,24])
    p.add_argument('--thr', type=il, default=[3,6,10,12,13])
    p.add_argument('--c0', type=int, default=2)
    p.add_argument('--wd', type=int, default=21)
    p.add_argument('--ctlonly', action='store_true')
    p.add_argument('--cps', type=il, default=[28,52,76,92,108,116])
    p.add_argument('--nb', type=int, default=2)
    p.add_argument('--loc', type=int, default=1)
    p.add_argument('--recflags', default='')
    p.add_argument('--prew', type=int, default=108)
    p.add_argument('--qloc', type=int, default=0)
    p.add_argument('--lay', type=int, default=1)
    p.add_argument('--h2thr', type=int, default=0)
    p.add_argument('--h1thro', type=int, default=0)
    p.add_argument('--sen', type=int, default=0)
    p.add_argument('--senw', type=int, default=0)
    p.add_argument('--yw', type=int, default=4)
    p.add_argument('--dual', type=int, default=1)
    p.add_argument('--altp', type=int, default=40)
    p.add_argument('--delta', type=int, default=0)
    p.add_argument('--farn', type=int, default=2)
    p.add_argument('--farsub', type=int, default=4)
    p.add_argument('--gm', type=il, default=[1,2,4,8,3,12,15])
    p.add_argument('--thr2', type=il, default=[])
    p.add_argument('--late', type=int, default=100)
    p.add_argument('--rx', type=int, default=1)
    p.add_argument('--rpair', type=int, default=1)
    p.add_argument('--nobr', action='store_true')
    p.add_argument('--pairskip', type=int, default=1)
    p.add_argument('--diag', action='store_true')
    p.add_argument('--prog', action='store_true')
    p.add_argument('--kflags', default='nt')
    p.add_argument('--vflags', default='nt')
    p.add_argument('--wqflags', default='nt')
    p.add_argument('--stflags', default='sc1')
    p.add_argument('--ldflags', default='sc1')
    p.add_argument('--lsleep', type=int, default=1)
    p.add_argument('--qsleep', type=int, default=6)
    p.add_argument('--h1sleep', type=int, default=0)
    p.add_argument('--h1thr', type=int, default=16)
    p.add_argument('--h1slow', type=int, default=0)
    p.add_argument('--h2sleep0', type=int, default=-1)
    p.add_argument('--h2sleep', type=int, default=0)
    return p


if __name__ == '__main__':
    o = parser().parse_args()
    open(o.o, 'w').write(gen(o))
```

```python
import sys, struct, argparse

NAME = 'gated_mix__gqa_block_cached__dense_activation_silu__decode'

RING = 0
SLOT = 16384
NSL = 9
STG = RING + 8 * SLOT
W1S = RING + 7 * SLOT
W2S = RING + (128 % NSL) * SLOT
WOS = RING + (129 % NSL) * SLOT
SCB = RING + NSL * SLOT
XS = SCB + 8192
GS = XS + 2048
QS = GS + 1024
FL = QS + 1024
LDS_BYTES = FL + 512

SEN = 0x10000
QP = 0x20000
HP = 0x40000
FLG = 0x500000
REC = 0x100000
YB = 0x200000
YROW = 5120
NRED = 80
RECB = 0x600000
WS_BYTES = 0x700000
STAMP = 0x400000
YDONE = 0x10000

DOC = """;
"""

def f32(x):
    return '0x%08x' % struct.unpack('<I', struct.pack('<f', x))[0]

LOG2E = 1.4426950408889634
DPPM = 'row_mask:0xf bank_mask:0xf'


class G:
    def __init__(self, o):
        self.L = []
        self.o = o
        self.uid = 0

    def A(self, s):
        self.L.append('    ' + s)

    def lab(self, s):
        self.L.append(s + ':')

    def new(self, p):
        self.uid += 1
        return f'.L{p}_{self.uid}'

    def srd(self, d, ptr, nbytes):
        A = self.A
        A(f's_mov_b32 s{d}, s{ptr}')
        A(f's_mov_b32 s{d+1}, s{ptr+1}')
        A(f's_mov_b32 s{d+2}, {nbytes:#x}')
        A(f's_mov_b32 s{d+3}, 0x20000')

    def stamp(self, k):
        if self.o.diag:
            self.A(f's_memrealtime s[{86+2*k}:{87+2*k}]')
            self.A('s_waitcnt lgkmcnt(0)')

    def apoll(self, name, loads, tagregs, masks, TAG, sBUD, sleep, slow=None, between=None, alt=None, sen=None, thro=-1):
        A = self.A
        if not sen:
            for ld in loads:
                A(ld)
        if between:
            between()
        self.lab(f'.L{name}_loop')
        if sleep:
            A(f's_sleep {sleep}')
        if thro >= 0:
            A(f's_waitcnt vmcnt({thro})')
        for t, m in zip(tagregs, masks):
            A(f'v_cmp_ne_u32 s[{m}:{m+1}], v{t}, v{TAG}')
        A(f's_or_b64 vcc, s[{masks[0]}:{masks[0]+1}], s[{masks[1]}:{masks[1]+1}]')
        for m in masks[2:]:
            A(f's_or_b64 vcc, vcc, s[{m}:{m+1}]')
        A(f's_cbranch_scc0 .L{name}_ok')
        if sen:
            lnda, bit, sreg, own = sen
            A('s_waitcnt lgkmcnt(0)')
            A('v_readfirstlane_b32 vcc_lo, v14')
            A(f'ds_read_b32 v14, v{lnda}')
            A(f's_cmp_ge_u32 vcc_lo, {bit:#x}')
            A(f's_cselect_b32 s{sreg}, -1, s{own}')
        if self.o.pairskip and len(loads) > 4:
            for k in range(0, len(loads), 2):
                sk = self.new('sk')
                m0_, m1_ = masks[k], masks[k+1]
                if sen:
                    A(f's_bitcmp0_b32 s{sreg}, {k//2}')
                    A(f's_cbranch_scc1 {sk}')
                A(f's_or_b64 exec, s[{m0_}:{m0_+1}], s[{m1_}:{m1_+1}]')
                A(f's_cbranch_execz {sk}')
                A('s_wqm_b64 exec, exec')
                A(loads[k])
                A(loads[k+1])
                self.lab(sk)
        else:
            for ld, m in zip(loads, masks):
                sk = self.new('sk')
                A(f's_wqm_b64 exec, s[{m}:{m+1}]')
                if not self.o.nobr:
                    A(f's_cbranch_execz {sk}')
                A(ld)
                self.lab(sk)
        A('s_mov_b64 exec, -1')
        if slow:
            thr, extra = slow
            sk = self.new('sk')
            A('s_bcnt1_i32_b64 vcc_lo, vcc')
            A(f's_cmp_le_u32 vcc_lo, {thr}')
            A(f's_cbranch_scc1 {sk}')
            A(f's_sleep {extra}')
            self.lab(sk)
        if alt:
            cnt, period, altloads = alt
            A(f's_sub_u32 s{cnt}, s{cnt}, 1')
            A(f's_cbranch_scc0 .L{name}_loop')
            A(f's_mov_b32 s{cnt}, {period}')
            A('s_waitcnt vmcnt(0)')
            for ld, t in zip(altloads, tagregs):
                sk = self.new('sk')
                A(f'v_cmp_ne_u32 vcc, v{t}, v{TAG}')
                A('s_wqm_b64 exec, vcc')
                A(f's_cbranch_execz {sk}')
                A(ld)
                self.lab(sk)
                A('s_mov_b64 exec, -1')
            A('s_waitcnt vmcnt(0)')
            A(f's_sub_u32 s{sBUD}, s{sBUD}, 1024')
        else:
            A(f's_sub_u32 s{sBUD}, s{sBUD}, 16')
        A(f's_cbranch_scc0 .L{name}_loop')
        A(f's_mov_b32 s{sBUD}, 0')
        self.lab(f'.L{name}_ok')


def q(b, n=4):
    return f'v[{b}:{b+n-1}]'


def gen(o):
    g = G(o)
    A = g.A
    W = o.window
    K = NAME + '_kernel'
    pX, pK, pV, pWQ, pWO, pW1, pW2, pG, pOUT, pWS = 36, 38, 40, 42, 44, 48, 50, 52, 54, 58

    def mk_jv(d, t):
        if o.loc:
            A(f's_and_b32 s{d}, s2, 7')
            A(f's_lshl_b32 s{d}, s{d}, 4')
            A(f's_bfe_u32 s{t}, s2, 0x40003')
            A(f's_or_b32 s{d}, s{d}, s{t}')
            A(f's_and_b32 s{t}, s2, 0x80')
            A(f's_or_b32 s{d}, s{d}, s{t}')
        else:
            A(f's_mov_b32 s{d}, s2')
    def mk_j2(d, t):
        if o.loc:
            A(f's_and_b32 s{d}, s2, 7')
            A(f's_lshl_b32 s{d}, s{d}, 5')
            A(f's_lshr_b32 s{t}, s2, 3')
            A(f's_or_b32 s{d}, s{d}, s{t}')
        else:
            A(f's_mov_b32 s{d}, s2')
    g.L.append(f'.globl {K}\n.p2align 8\n.type {K},@function\n{K}:')
    A('s_cmp_ge_u32 s2, 256')
    A('s_cbranch_scc1 .Lexit')
    if o.diag:
        A('s_memrealtime s[30:31]')
    A('s_load_dwordx16 s[36:51], s[0:1], 0')
    A('s_load_dwordx8 s[52:59], s[0:1], 64')
    if o.icpf:
        A(f's_cmp_ge_u32 s2, {o.icpf}')
        A('s_cbranch_scc1 .Lnopf')
        A('s_getpc_b64 s[4:5]')
        g.lab('.Lpc')
        A('v_lshlrev_b32 v9, 7, v0')
        for i in range(3 if (len(o.wins) > 2 and o.nb == 8) else 2):
            A(f'v_add_u32 v10, {0x4000*i:#x}, v9')
            A('v_min_u32 v10, .Lexit-.Lpc, v10')
            A(f'global_load_dword v{249-i}, v10, s[4:5]')
        g.lab('.Lnopf')
    A('v_lshrrev_b32 v1, 6, v0')
    A('v_lshlrev_b32 v8, 2, v0')
    A('v_readfirstlane_b32 s3, v1')
    A(f'v_add_u32 v8, {FL}, v8')
    A('v_mov_b32 v14, 0')
    A('ds_write_b32 v8, v14')
    A('v_and_b32 v1, 63, v0')
    if o.lay:
        A('s_cmp_eq_u32 s3, 0')
        A('s_cbranch_scc1 .Lldr')
        g.L.append('@C1@')
        g.lab('.Lldr')
    else:
        A('s_cmp_lg_u32 s3, 0')
        A('s_cbranch_scc1 .Lcons')

    gs, U, sh = o.gs, o.unit, o.idxsh
    lg = gs.bit_length() - 1
    A(f's_lshr_b32 s17, s2, {sh}')
    A(f's_and_b32 s17, s17, {gs-1}')
    A(f's_lshr_b32 s18, s2, {sh+lg}')
    A(f's_lshl_b32 s18, s18, {sh}')
    if o.rx == 1:
        A('s_lshr_b32 s19, s2, 4')
        A('s_xor_b32 s19, s19, s2')
        A(f's_and_b32 s19, s19, {(1<<sh)-1}')
    elif o.rx == 2:
        A('s_lshr_b32 s19, s2, 4')
        A('s_add_u32 s19, s19, s2')
        A(f's_and_b32 s19, s19, {(1<<sh)-1}')
    elif o.rx == 3:
        A('s_lshr_b32 s19, s2, 5')
        A('s_add_u32 s19, s19, s2')
        A(f's_and_b32 s19, s19, {(1<<sh)-1}')
    else:
        A(f's_and_b32 s19, s2, {(1<<sh)-1}')
    A('s_or_b32 s18, s18, s19')
    if o.loc:
        mk_jv(18, 19)
        A('s_lshr_b32 s18, s18, 1')
    A(f's_lshl_b32 s16, s18, {20+lg}')
    A(f's_mul_i32 s17, s17, {U*4096}')
    A('s_add_u32 s16, s16, s17')
    A('v_lshrrev_b32 v3, 5, v1')
    A('v_and_b32 v5, 31, v1')
    A('v_lshlrev_b32 v4, 1, v3')
    A('v_xor_b32 v5, v5, v4')
    A('v_lshlrev_b32 v5, 4, v5')
    A('v_lshl_add_u32 v20, v3, 9, v5')
    for i in range(1, 4):
        A(f'v_xor_b32 v{20+i}, {i*64}, v20')
    A(f'v_mov_b32 v7, {FL+256}')
    A('v_lshlrev_b32 v24, 4, v1')
    j0 = (W - 1) % 16
    lag = (W - 1) // 16 + 1
    A('s_mov_b32 s20, -7')
    A('s_mov_b32 s22, 0')
    A('s_mov_b32 s27, s16')
    A('s_mov_b32 s24, 0')
    A(f's_mov_b32 s25, {1<<22}')
    mk_j2(28, 29)
    A('s_lshr_b32 s4, s28, 3')
    A('s_lshl_b32 s4, s4, 7')
    A('s_bfe_u32 s5, s28, 0x20001')
    A('s_lshl_b32 s5, s5, 5')
    A('s_add_u32 s4, s4, s5')
    A('s_and_b32 s5, s28, 1')
    A('s_lshl_b32 s5, s5, 3')
    A('s_add_u32 s4, s4, s5')
    A('s_mul_i32 s4, s4, 896')
    A('s_mul_i32 s6, s2, 7168')
    A('s_waitcnt lgkmcnt(0)')
    g.srd(8, pK, 0x10000000)
    g.srd(60, pWO, 4096 * 896)
    g.srd(64, pW2, 1792 * 896)
    g.srd(72, pWS, WS_BYTES)
    A('s_lshr_b32 s76, s28, 5')
    A('s_lshl_b32 s76, s76, 16')
    A('s_and_b32 s77, s28, 31')
    A('s_lshl_b32 s77, s77, 7')
    A('s_add_u32 s76, s76, s77')
    A(f's_add_u32 s76, s76, {REC:#x}')
    A('s_add_u32 s77, s76, 0x8000')
    A('s_add_u32 s78, s76, 0x80000')
    A('s_add_u32 s79, s76, 0x88000')
    A(f's_mul_i32 s80, s28, {YROW}')
    A(f's_add_u32 s80, s80, {YB:#x}')
    A('s_add_u32 s81, s80, 0x1000')
    A('s_mov_b32 s48, 0x00030003')
    A('s_mov_b32 s49, 0x00300030')
    A('s_mov_b32 s50, 0x03000300')
    A('s_mov_b32 s51, 0x30003000')
    A(f's_mov_b32 s29, {o.altp}')
    A(f'v_add_u32 v25, {XS}, v24')
    if o.diag:
        g.srd(68, pWS, STAMP + 0x20000)
        A('v_mov_b32 v30, 0')
    A('s_barrier')
    spins = []
    def check(name):
        A('s_cmp_lt_i32 s24, s20')
        A(f's_cbranch_scc1 .Lspin{name}')
        g.lab(f'.Lgo{name}')
        spins.append(name)
    def body(name, wins, first=False):
        NB = len(wins)
        for tt in range(NB):
            Wd = wins[tt]
            if not first:
                check(f'{name}{tt}')
            elif tt == 7:
                A('s_cmp_lt_i32 s24, 1')
                A('s_cbranch_scc1 .Lspinf')
                g.lab('.Lgof')
            for j in range(16):
                if j % 4 == 0:
                    k = tt * 4 + o.perm[j // 4]
                    A(f's_add_u32 m0, s22, {RING + j*1024:#x}')
                    A(f's_add_u32 s23, s16, {((k//U)*gs*U + k % U)*4096:#x}')
                if not (first and tt * 16 + j < Wd):
                    A(f's_waitcnt vmcnt({Wd-1})')
                elif j % 4 == 0:
                    A('s_nop 0')
                A(f'buffer_load_dwordx4 v{20+(j&3)}, s[8:11], s23 offen offset:{(j&3)*1024} {o.kflags} lds')
                if j == (Wd - 1) % 16:
                    if first:
                        v = tt - (Wd - 1) // 16
                        if v > 0:
                            A(f'v_mov_b32 v14, {v}')
                            A('ds_write_b32 v8, v14')
                    else:
                        A(f's_add_u32 s21, s20, {(7 if j <= 9 else 6) - (Wd - 1) // 16}')
                        A('v_mov_b32 v14, s21')
                        A('ds_write_b32 v8, v14')
                if o.prog and j == 0 and tt % 2 == 0:
                    A('s_memrealtime s[86:87]')
                if j == 12:
                    A(f's_add_u32 s22, s22, {SLOT:#x}')
                    A(f's_cmp_eq_u32 s22, {NSL*SLOT:#x}')
                    A('s_cselect_b32 s22, 0, s22')
                if j == 9:
                    if not first or tt >= 6:
                        A('ds_read_b32 v15, v7')
                    A('s_add_u32 s20, s20, 1')
                if j == 13 and tt == NB - 1:
                    if name == 'k':
                        A('s_mov_b32 s16, s27')
                    else:
                        A(f's_add_u32 s16, s16, {16384*gs*NB:#x}')
                        if not o.wk:
                            A('s_cmp_eq_u32 s20, 57')
                            A('s_cselect_b32 s16, s27, s16')
                if j == 14 and (not first or tt >= 6 or o.prog):
                    A('s_waitcnt lgkmcnt(0)')
                    if not first or tt >= 6:
                        A('v_readfirstlane_b32 s19, v15')
                        A('s_and_b32 s24, s19, 0xffff')
                if o.prog and j == 15 and tt % 2 == 1:
                    A('s_add_u32 s17, s20, 6')
                    A('s_lshr_b32 m0, s17, 1')
                    A('s_nop 0')
                    A('v_writelane_b32 v30, s86, m0')
    A(f's_mov_b32 s26, {49 if o.wk else 57}')
    body('f', o.w1 or [W] * 8, True)
    wins = [W] + o.wins
    if o.c0:
        A(f's_branch .Lload{o.c0}')
    for i, Wd in enumerate(wins):
        g.L.append('.p2align 6')
        g.lab(f'.Lload{i}')
        body(f'm{i}_', [Wd] * o.nb)
        A('s_cmp_ge_i32 s20, s26')
        A('s_cbranch_scc1 .Lturn')
        if i + 1 == len(wins):
            g.lab('.Lsel')
        for k in range(len(wins) - 1):
            A(f's_cmp_lt_u32 s19, {(k + 1) << 16:#x}')
            A(f's_cbranch_scc1 .Lload{k}')
        A(f's_branch .Lload{len(wins)-1}')
    g.lab('.Lturn')
    A('s_cmp_gt_i32 s20, 57')
    A('s_cbranch_scc1 .Ldrain')
    A('s_mov_b32 s26, 121')
    if o.wk:
        body('k', o.wk)
    A(f's_mov_b32 s8, s{pV}')
    A(f's_mov_b32 s9, s{pV+1}')
    A('s_branch .Lsel')
    g.lab('.Ldrain')
    NX = 23
    HA, G0, TAG = 248, 252, 244
    OMG = G0 + 2
    HG, WF, YD, YG, W2F = 224, 64, 128, 160, 188
    fp = lambda i: (120 + i) if i < 8 else (208 + i)
    WS = 's[72:75]'
    W = o.wd or W
    todo = list(range(128 - lag + 1, 129))
    def flag(c):
        A(f'v_mov_b32 v14, {c}')
        A('ds_write_b32 v8, v14')
        if c == 128 and o.diag:
            A('s_memrealtime s[86:87]')
    A('s_add_u32 s20, s20, 1')
    check('w')
    h1loads = [f'buffer_load_dwordx4 {q(HG+4*i)}, v{TAG+1}, {WS}, s{76+i} offen {o.ldflags}' for i in range(4)]
    A(f'ds_read_b128 {q(TAG)}, v25 offset:2048')
    A(f'ds_read_b128 {q(HA)}, v25')
    A(f'ds_read_b128 {q(G0)}, v25 offset:1024')
    pos = 2048
    def paced(text):
        nonlocal pos
        A(f's_waitcnt vmcnt({W-1})')
        while todo and pos >= 16 * todo[0] - 1 + W:
            flag(todo.pop(0))
        A(text)
        pos += 1
    for e in range(NX):
        if e < 7:
            A(f's_mov_b32 m0, {W2S + e*1024}')
            A(f's_add_u32 s23, s6, {e*1024}')
            srd = 64
        else:
            k = e - 7
            a_, nn, u = k >> 3, (k >> 1) & 3, k & 1
            if k == 0:
                A('s_mov_b32 exec_hi, 0x00ffffff')
            A(f's_mov_b32 m0, {WOS + k*896}')
            A(f's_add_u32 s23, s4, {(4*a_+16*u+nn)*896}')
            srd = 60
        paced(f'buffer_load_dwordx4 v24, s[{srd}:{srd+3}], s23 offen nt lds')
        if e == 1:
            A('s_waitcnt lgkmcnt(0)')
            if o.early:
                for ld in h1loads:
                    paced(ld)
            else:
                for i in range(4):
                    A(f'v_not_b32 v{HG+4*i+3}, v{TAG}')
        if e == 4:
            for i in range(5):
                A(f'v_mov_b32 v{YG+4*i+3}, v{TAG}')
        if e == 5:
            A(f'v_add_u32 v57, {RECB-REC:#x}, v{TAG+1}')
    for c in todo:
        A(f's_waitcnt vmcnt({pos - 16*c})')
        flag(c)
    A('s_mov_b64 exec, -1')
    A('s_waitcnt vmcnt(16) lgkmcnt(0)')
    for i in range(14):
        A(f'ds_read_b64_tr_b16 {q(W2F+2*i,2)}, v{TAG+2} offset:{i*64}')
    for i in range(7):
        A(f's_waitcnt lgkmcnt({12-2*i})')
        A(f'v_mfma_f32_16x16x16_bf16 {q(YD+4*i)}, {q(HA,2)}, {q(W2F+4*i,2)}, 0')
    for i in range(7):
        A(f'v_mfma_f32_16x16x16_bf16 {q(YD+4*i)}, {q(HA+2,2)}, {q(W2F+4*i+2,2)}, {q(YD+4*i)}')
    for ld in h1loads:
        A(ld)
    A('s_nop 3')
    for i in range(7):
        A(f'v_mul_f32 v{fp(2*i)}, v{OMG}, v{YD+4*i}')
        A(f'v_mul_f32 v{fp(2*i+1)}, v{OMG+1}, v{YD+4*i+1}')
    A('s_waitcnt vmcnt(12)')
    for ld in h1loads:
        A(ld)
    A('s_waitcnt vmcnt(8)')
    def between():
        for i in range(14):
            A(f'ds_read_b64_tr_b16 {q(WF+4*i,2)}, v{TAG+3} offset:{i*64}')
            A(f'ds_read_b64_tr_b16 {q(WF+4*i+2,2)}, v{TAG+3} offset:{i*64+3584}')
    alt = (29, o.altp, [f'buffer_load_dwordx4 {q(HG+4*i)}, v57, {WS}, s{76+i} offen {o.ldflags}' for i in range(4)])
    g.apoll('h1', h1loads, [HG+4*i+3 for i in range(4)], [36, 38, 40, 10], TAG, 25, o.h1sleep, between=between, alt=alt, thro=o.h1thro)
    g.stamp(4)
    for i in range(4):
        A(f'v_mov_b32 v{16+i}, v{HG+4*i+2}')
        A(f'v_mov_b32 v{20+i}, v{HG+4*i+2}')
    for i in range(4):
        if i == 3:
            A('v_max_f32 v36, v16, v17')
        A(f'v_permlane16_swap_b32 v{16+i}, v{20+i}')
    A('v_max_f32 v37, v18, v19')
    A('s_nop 0')
    A(f'v_max_f32_dpp v36, v36, v36 row_ror:4 {DPPM}')
    A(f'v_max_f32_dpp v37, v37, v37 row_ror:4 {DPPM}')
    A('s_nop 0')
    A(f'v_max_f32_dpp v36, v36, v36 row_ror:8 {DPPM}')
    A(f'v_max_f32_dpp v37, v37, v37 row_ror:8 {DPPM}')
    A('v_mov_b32 v38, v36')
    A('v_mov_b32 v39, v37')
    A('s_nop 0')
    A('v_permlane32_swap_b32 v36, v38')
    A('v_permlane32_swap_b32 v37, v39')
    A('v_max_f32 v36, v36, v38')
    A('v_max_f32 v37, v37, v39')
    for i in range(4):
        A(f'v_sub_f32 v{40+i}, v{16+i}, v{36+(i>>1)}')
    for i in range(4):
        A(f'v_exp_f32 v{40+i}, v{40+i}')
    A('s_mov_b32 vcc_lo, 0xaaaaaaaa')
    for b in range(2):
        srcs0 = (HG+8*b, HG+8*b+1, 20+2*b)
        srcs1 = (HG+8*b+4, HG+8*b+5, 21+2*b)
        for k in range(3):
            A(f'v_mul_f32 v{44+3*b+k}, v{40+2*b}, v{srcs0[k]}')
        for k in range(3):
            A(f'v_fmac_f32 v{44+3*b+k}, v{41+2*b}, v{srcs1[k]}')
    A('s_mov_b32 vcc_hi, 0xaaaaaaaa')
    for k in range(3):
        A(f'v_permlane32_swap_b32 v{44+k}, v{47+k}')
    for k in range(3):
        A(f'v_add_f32 v{44+k}, v{44+k}, v{47+k}')
    for rr in (4, 8):
        for k in (2, 0, 1) if rr == 8 else (0, 1, 2):
            if rr == 8 and k == 2:
                A('s_nop 1')
            A(f'v_add_f32_dpp v{44+k}, v{44+k}, v{44+k} row_ror:{rr} {DPPM}')
            if rr == 8 and k == 2:
                A('v_rcp_f32 v46, v46')
    A('v_mul_f32 v44, v44, v46')
    A('v_mul_f32 v45, v45, v46')
    A('v_cvt_pk_bf16_f32 v44, v44, v45')
    A('v_mov_b32 v45, v44')
    A('s_nop 1')
    A('v_permlane32_swap_b32 v44, v45')
    A('s_nop 1')
    for nn in range(4):
        A(f'v_mov_b32_dpp v{36+nn}, v45 quad_perm:[{nn},{nn},{nn},{nn}] {DPPM}')
    for nn in range(4):
        A(f'v_cndmask_b32_dpp v{36+nn}, v44, v{36+nn}, vcc quad_perm:[{nn},{nn},{nn},{nn}] {DPPM}')
    for nn in range(4):
        A(f'v_cndmask_b32 v{48+nn}, 0, v{36+nn}, s[48:49]')
    for nn in range(4):
        A(f'v_cndmask_b32 v{52+nn}, 0, v{36+nn}, s[50:51]')
    A('s_waitcnt lgkmcnt(0)')
    seq = []
    for i in range(7):
        seq.append((i, 0))
        if i >= 1:
            seq.append((i-1, 1))
    seq.append((6, 1))
    for n, (i, e) in enumerate(seq):
        A(f'v_mfma_f32_16x16x32_bf16 {q(YD+4*i)}, {q(48+4*e)}, {q(WF+8*i+4*e)}, {"0" if e==0 else q(YD+4*i)}')
    for v in range(14):
        A(f'v_fma_f32 v{YG+4*(v//3)+v%3}, v{G0+(v&1)}, v{YD+4*(v>>1)+(v&1)}, v{fp(v)}')
        if v % 3 == 2 or v == 13:
            k = v // 3
            A(f'buffer_store_dwordx4 {q(YG+4*k)}, v24, {WS}, s{80+(k>>2)} offen offset:{(k&3)*1024} {o.stflags}')
    g.stamp(5)
    A(f's_waitcnt vmcnt({o.yw})')
    A(f'v_mov_b32 v14, {YDONE + 128:#x}')
    A('ds_write_b32 v8, v14')
    if o.diag:
        A('s_waitcnt lgkmcnt(0)')
        A('v_mov_b32 v16, s86')
        A('v_mov_b32 v17, s87')
        A('v_mov_b32 v18, 0')
        A('v_mov_b32 v19, 0')
        A('s_lshl_b32 s17, s2, 7')
        A(f's_add_u32 s17, s17, {STAMP+64:#x}')
        A('s_mov_b64 exec, 1')
        A('buffer_store_dwordx4 v[16:19], v19, s[68:71], s17 offen')
        for k in range(4):
            A(f'v_mov_b32 v{32+k}, s{94+k}')
        A('s_sub_u32 s17, s17, 32')
        A('buffer_store_dwordx4 v[32:35], v19, s[68:71], s17 offen')
        A('s_mov_b64 exec, -1')
        A('v_lshlrev_b32 v19, 2, v1')
        A('s_lshl_b32 s17, s2, 8')
        A(f's_add_u32 s17, s17, {STAMP+0x10000:#x}')
        A('buffer_store_dword v30, v19, s[68:71], s17 offen')
    A('s_endpgm')
    for tt in spins + ['f']:
        g.lab(f'.Lspin{tt}')
        A('ds_read_b32 v15, v7')
        A('s_waitcnt lgkmcnt(0)')
        A('v_readfirstlane_b32 s24, v15')
        A('s_and_b32 s24, s24, 0xffff')
        A('s_cmp_ge_i32 s24, 1' if tt == 'f' else 's_cmp_ge_i32 s24, s20')
        A(f's_cbranch_scc1 .Lgo{tt}')
        A('s_sleep 1')
        A('s_sub_u32 s25, s25, 1')
        A(f's_cbranch_scc0 .Lspin{tt}')
        A('s_mov_b32 s25, 0')
        A(f's_branch .Lgo{tt}')

    sX, sWQ, sWS, sW1, sG, sOUT = 8, 12, 16, 24, 32, 60
    TAG, LNDA, CONA, KA0, VA0, M, NM, LS = 6, 7, 8, 9, 10, 11, 12, 13
    KAC, VAC, O, S, T, P8 = 16, 20, 28, 36, 44, 48
    KV, QF, PV, FP, G0, TL = 64, 128, 160, 192, 206, 208
    HV = 240
    HA = 250
    OMG = 254
    sT, sSLOT, sLND, sC, sNEED, sBUD = 81, 82, 83, 84, 85, 80
    sRAW = 100
    WS = f's[{sWS}:{sWS+3}]'
    c1_start = len(g.L)
    if not o.lay:
        g.L.append('.p2align 6')
    g.lab('.Lcons')
    A('v_lshlrev_b32 v56, 4, v1')
    A('v_lshrrev_b32 v58, 3, v1')
    A('v_and_b32 v59, 7, v1')
    A('v_lshlrev_b32 v57, 13, v58')
    A('v_lshl_add_u32 v57, v59, 4, v57')
    A('v_mul_u32_u24 v58, 3584, v58')
    A('v_lshl_add_u32 v58, v59, 4, v58')
    A('v_mov_b32 v59, 0')
    A('v_and_b32 v2, 15, v1')
    A('v_lshrrev_b32 v3, 4, v1')
    A('v_bfe_u32 v4, v1, 2, 2')
    A('v_and_b32 v5, 3, v1')
    if o.qloc:
        mk_j2(28, 29)
    else:
        A('s_mov_b32 s28, s2')
    A('s_and_b32 s4, s28, 3')
    A(f's_mul_i32 s5, s4, {112*8192}')
    A('s_lshr_b32 s6, s28, 2')
    A('s_lshl_b32 s6, s6, 7')
    A('s_add_u32 s5, s5, s6')
    A('s_and_b32 s20, s2, 7')
    A(f's_mul_i32 s21, s20, {56*3584}')
    A('s_lshr_b32 s22, s2, 3')
    A('s_lshl_b32 s23, s22, 7')
    A('s_add_u32 s21, s21, s23')
    A('s_cmp_lt_u32 s2, 224')
    A('s_cselect_b32 s21, s21, 0x200000')
    A('s_waitcnt lgkmcnt(0)')
    g.srd(sWS, pWS, WS_BYTES)
    g.srd(sX, pX, 1792)
    g.srd(sWQ, pWQ, 448 * 8192)
    if o.cfirst < 0:
        A('s_barrier')
    g.stamp(0)
    if o.diag:
        A('s_mov_b32 s101, s30')
    A(f'buffer_load_dword v{TAG}, v59, {WS}, 0 offen')
    A(f's_mov_b32 m0, {XS}')
    A('s_nop 0')
    A(f'buffer_load_dwordx4 v56, s[{sX}:{sX+3}], 0 offen lds')
    A(f'buffer_load_dwordx4 v56, s[{sX}:{sX+3}], 0 offen offset:1024 lds')
    for t in range(14):
        if o.cfirst == t:
            A('s_barrier')
        A(f's_mov_b32 m0, {STG + t*1024}')
        A(f's_add_u32 s6, s5, {t*65536:#x}')
        A(f'buffer_load_dwordx4 v57, s[{sWQ}:{sWQ+3}], s6 offen {o.wqflags} lds')
    if o.cfirst == 14:
        A('s_barrier')
    g.srd(sW1, pW1, 448 * 3584)
    g.srd(sG, pG, 896)
    A(f's_mov_b32 m0, {GS}')
    g.srd(sOUT, pOUT, 1792)
    A(f'buffer_load_dwordx4 v56, s[{sG}:{sG+3}], 0 offen lds')
    for t in range(8):
        A(f's_mov_b32 m0, {W1S + t*1024}')
        if t < 7:
            A(f's_add_u32 s6, s21, {t*8*3584:#x}')
        else:
            A('s_mov_b32 s6, 0x200000')
        A(f'buffer_load_dwordx4 v58, s[{sW1}:{sW1+3}], s6 offen nt lds')
    if o.cfirst > 14:
        A('s_barrier')
    NW1 = 9
    if o.lay:
        A('s_branch .Lcons2')
        c1 = g.L[c1_start:]
        del g.L[c1_start:]
        i = g.L.index('@C1@')
        g.L[i:i+1] = c1
        g.L.append('.p2align 6')
        g.lab('.Lcons2')
    A('v_and_b32 v58, 1, v2')
    A('v_mul_u32_u24 v60, 896, v58')
    A('v_lshl_add_u32 v60, v3, 4, v60')
    A(f'v_add_u32 v60, {XS}, v60')
    A('v_lshl_add_u32 v61, v3, 3, v4')
    A('v_lshlrev_b32 v61, 7, v61')
    A('v_lshl_add_u32 v61, v5, 3, v61')
    A(f'v_add_u32 v51, {W1S}, v61')
    A(f'v_add_u32 v61, {STG}, v61')
    A('v_lshl_add_u32 v63, v3, 2, v4')
    A('v_lshlrev_b32 v63, 7, v63')
    A('v_lshl_add_u32 v63, v5, 3, v63')
    A(f'v_add_u32 v63, {STG+96*128}, v63')
    A('s_mul_i32 s6, s4, 224')
    A('v_add_u32 v57, s6, v60')
    A('v_lshlrev_b32 v55, 3, v3')
    A('v_sub_u32 v55, v57, v55')
    A('s_mul_i32 s6, s20, 112')
    A('v_add_u32 v54, s6, v60')
    A('v_lshlrev_b32 v62, 16, v58')
    A('v_bfe_u32 v14, v2, 1, 2')
    A('v_lshl_add_u32 v62, v14, 6, v62')
    A('v_lshl_add_u32 v62, v3, 4, v62')
    A('v_lshlrev_b32 v53, 7, v14')
    A('v_lshl_add_u32 v53, v58, 5, v53')
    A('v_lshrrev_b32 v14, 1, v3')
    A('v_lshl_add_u32 v53, v14, 6, v53')
    A('v_and_b32 v14, 1, v3')
    A('v_lshl_add_u32 v53, v14, 4, v53')
    A(f'v_bfe_u32 v{HV+4}, v1, 2, 3')
    A(f'v_lshlrev_b32 v{HV+4}, 9, v{HV+4}')
    A(f'v_lshl_add_u32 v{HV+4}, v5, 4, v{HV+4}')
    A('v_and_b32 v14, 7, v2')
    A('v_lshlrev_b32 v14, 1, v14')
    A('v_xor_b32 v14, v14, v3')
    A('v_lshlrev_b32 v14, 4, v14')
    A(f'v_lshl_add_u32 v{KA0}, v2, 9, v14')
    A('v_lshl_add_u32 v14, v3, 2, v4')
    A('v_and_b32 v15, 7, v14')
    A('v_lshlrev_b32 v15, 5, v15')
    A('v_lshl_add_u32 v15, v5, 3, v15')
    A(f'v_lshl_add_u32 v{VA0}, v14, 9, v15')
    A(f'v_mov_b32 v{LNDA}, {FL}')
    for v in range(8):
        qq, u = v >> 1, v & 1
        m16 = (1 << (4*qq+u)) | (1 << (4*qq+u+2))
        m32 = m16 | (m16 << 16)
        A(f's_mov_b32 s{64+2*v}, {m32:#x}')
        A(f's_mov_b32 s{65+2*v}, {m32:#x}')
    A(f's_mov_b32 s{sC}, {f32(0.0625*LOG2E)}')
    A(f's_mov_b32 s{sBUD}, {1<<22}')
    A(f's_mov_b32 s{sLND}, 0')
    A(f's_mov_b32 s{sSLOT}, 0')
    A('s_mov_b32 s7, 1664525')
    A('s_lshr_b32 s5, s28, 5')
    A('s_lshl_b32 s5, s5, 13')
    A('s_lshl_b32 s4, s4, 11')
    A('s_add_u32 s5, s5, s4')
    A('s_bfe_u32 s4, s28, 0x30002')
    A('s_lshl_b32 s4, s4, 8')
    A('s_add_u32 s5, s5, s4')
    A(f's_add_u32 s5, s5, {QP:#x}')
    mk_jv(6, 4)
    A('s_lshr_b32 s6, s6, 4')
    A('s_lshl_b32 s6, s6, 13')
    A(f's_add_u32 s6, s6, {QP:#x}')
    A('s_add_u32 s4, s6, 0x1000')
    A('s_lshl_b32 s21, s2, 9')
    A(f's_add_u32 s21, s21, {HP:#x}')
    A('s_lshl_b32 s22, s22, 12')
    A('s_lshl_b32 s20, s20, 6')
    A('s_add_u32 s22, s22, s20')
    A(f's_add_u32 s22, s22, {HP:#x}')
    for c in range(1, 4):
        m16 = (3 << (2*c)) | (3 << (2*c+8))
        A(f's_mov_b32 s{34+2*c}, {m16 | (m16 << 16):#x}')
        A(f's_mov_b32 s{35+2*c}, {m16 | (m16 << 16):#x}')
    for k in range(4):
        A(f's_mov_b32 s{42+k}, {0x07060500 + k:#x}')
    A('s_mov_b32 s46, 0x0c0c0400')
    A('s_mov_b32 s47, 0x04000c0c')

    def publish(D, dst, voff, soff):
        for c in range(1, 4):
            for r in range(4):
                A(f'v_cndmask_b32 v{D+r}, v{D+r}, v{D+4*c+r}, s[{34+2*c}:{35+2*c}]')
        for r in range(4):
            A(f'v_add_u32 v{D+r}, 0x80, v{D+r}')
        A('s_mov_b32 exec_lo, 0x00ff00ff')
        A('s_mov_b32 exec_hi, 0x00ff00ff')
        for r in range(4):
            A(f'v_perm_b32 v{dst+r}, v{D+r}, v{TAG}, s{42+r}')
        A(f'buffer_store_dwordx4 {q(dst)}, v{voff}, {WS}, s{soff} offen {o.stflags}')
        A('s_mov_b64 exec, -1')

    def rbf(r):
        A(f'v_cvt_pk_bf16_f32 v{r}, v{r}, v{r}')
        A(f'v_and_b32 v{r}, 0xffff0000, v{r}')

    XF, AF, QD = 64, 128, 80
    A(f's_waitcnt vmcnt({14+NW1})')
    A(f'v_mul_lo_u32 v{TAG}, v{TAG}, s7')
    for t in range(3):
        A(f'ds_read_b128 {q(XF+4*t)}, v57 offset:{t*64}')
    A(f'ds_read_b64 {q(XF+12,2)}, v55 offset:192')
    A(f'v_add_u32 v{TAG}, 1013904223, v{TAG}')
    def qm(t):
        for c in range(4):
            if t < 3:
                A(f'v_mfma_f32_16x16x32_bf16 {q(QD+4*c)}, {q(AF+16*t+4*c)}, {q(XF+4*t)}, {"0" if t==0 else q(QD+4*c)}')
            else:
                A(f'v_mfma_f32_16x16x16_bf16 {q(QD+4*c)}, {q(AF+48+2*c,2)}, {q(XF+12,2)}, {q(QD+4*c)}')
    for t in range(4):
        A(f's_waitcnt vmcnt({max(0, 10-4*t)+NW1})')
        for c in range(4):
            if t < 3:
                A(f'ds_read_b64_tr_b16 {q(AF+16*t+4*c,2)}, v61 offset:{t*4096+c*32}')
                A(f'ds_read_b64_tr_b16 {q(AF+16*t+4*c+2,2)}, v61 offset:{t*4096+c*32+512}')
            else:
                A(f'ds_read_b64_tr_b16 {q(AF+48+2*c,2)}, v63 offset:{c*32}')
        if t >= 1:
            A(f's_waitcnt lgkmcnt({8 if t < 3 else 4})')
            qm(t-1)
    A('s_waitcnt lgkmcnt(0)')
    qm(3)
    A('s_nop 5')
    publish(QD, T, 62, 5)
    g.stamp(1)
    for i in range(8):
        A(f'v_mov_b32 v{O+i}, 0')
    for i in range(32):
        A(f'v_mov_b32 v{PV+i}, 0')
    A(f'v_mov_b32 v{M}, 0xff7fffff')
    A(f'v_mov_b32 v{LS}, 0')
    A('v_lshlrev_b32 v57, 3, v1')
    A(f'v_add_u32 v57, {QS}, v57')
    A('v_bfe_u32 v58, v2, 1, 1')
    SCA = 245
    A(f'v_lshlrev_b32 v{SCA}, 6, v58')
    A(f'v_lshl_add_u32 v{SCA}, v3, 4, v{SCA}')
    A(f'v_add_u32 v{SCA}, {SCB}, v{SCA}')
    A('v_lshlrev_b32 v58, 9, v58')
    A('v_lshl_add_u32 v58, v3, 4, v58')
    A(f'v_add_u32 v58, {QS}, v58')

    def poll_landed():
        d = g.new('pd')
        sp = g.new('ps')
        A(f's_cmp_ge_u32 s{sLND}, s{sNEED}')
        A(f's_cbranch_scc1 {d}')
        g.lab(sp)
        A(f'ds_read_b32 v14, v{LNDA}')
        A('s_waitcnt lgkmcnt(0)')
        A(f'v_readfirstlane_b32 s{sLND}, v14')
        A(f's_cmp_ge_u32 s{sLND}, s{sNEED}')
        A(f's_cbranch_scc1 {d}')
        if o.lsleep:
            A(f's_sleep {o.lsleep}')
        A(f's_sub_u32 s{sBUD}, s{sBUD}, 1')
        A(f's_cbranch_scc0 {sp}')
        A(f's_mov_b32 s{sBUD}, 0')
        g.lab(d)

    hload = f'buffer_load_dwordx4 {q(HV)}, v{HV+4}, {WS}, s22 offen {o.ldflags}'
    def qloads():
        for i in range(8):
            A(f'buffer_load_dwordx4 {q(KV+4*i)}, v56, {WS}, s{6 if i < 4 else 4} offen offset:{(i&3)*1024} {o.ldflags}')
    A('s_waitcnt vmcnt(1)')
    A(f's_mov_b32 s{sNEED}, {o.qwait}')
    poll_landed()
    qloads()
    HD = 104
    for t in range(2):
        A(f'ds_read_b128 {q(96+4*t)}, v54 offset:{t*64}')
    for t in range(2):
        for c in range(4):
            A(f'ds_read_b64_tr_b16 {q(AF+16*t+4*c,2)}, v51 offset:{t*4096+c*32}')
            A(f'ds_read_b64_tr_b16 {q(AF+16*t+4*c+2,2)}, v51 offset:{t*4096+c*32+512}')
    A(f'v_add_u32 v52, {GS}, v56')
    A(f'ds_read_b128 {q(TL)}, v52')
    A(f'v_add_u32 v52, {XS}, v56')
    A(f'ds_read_b128 {q(TL+4)}, v52')
    A(f'ds_read_b128 {q(TL+8)}, v52 offset:896')
    A(f'v_mov_b32 v14, {(o.c0 << 16) + 1:#x}')
    A('s_waitcnt lgkmcnt(3)')
    A(f'ds_write_b32 v{CONA}, v14')
    for t in range(2):
        for c in range(4):
            A(f'v_mfma_f32_16x16x32_bf16 {q(HD+4*c)}, {q(AF+16*t+4*c)}, {q(96+4*t)}, {"0" if t==0 else q(HD+4*c)}')
    A('s_nop 5')
    publish(HD, 120, 53, 21)
    A('s_waitcnt lgkmcnt(0)')
    for b in range(2):
        acc = TL + 12 + b
        for d in range(4):
            A(f'v_lshlrev_b32 v{TL+16}, 16, v{TL+d}')
            A(f'v_and_b32 v{TL+17}, 0xffff0000, v{TL+d}')
            A(f'v_lshlrev_b32 v{TL+18}, 16, v{TL+4+4*b+d}')
            A(f'v_and_b32 v{TL+19}, 0xffff0000, v{TL+4+4*b+d}')
            A(f'v_mul_f32 v{TL+16}, v{TL+16}, v{TL+18}')
            A(f'v_mul_f32 v{TL+17}, v{TL+17}, v{TL+19}')
            A(f'v_cvt_pk_bf16_f32 v{TL+18}, v{TL+16}, v{TL+17}')
            A(f'v_lshlrev_b32 v{TL+16}, 16, v{TL+18}')
            A(f'v_and_b32 v{TL+17}, 0xffff0000, v{TL+18}')
            if d == 0:
                A(f'v_add_f32 v{acc}, v{TL+16}, v{TL+17}')
            else:
                A(f'v_add_f32 v{acc}, v{acc}, v{TL+16}')
                A(f'v_add_f32 v{acc}, v{acc}, v{TL+17}')
    Z = TL + 12
    A('s_nop 1')
    A(f'v_permlane32_swap_b32 v{Z}, v{Z+1}')
    A(f'v_add_f32 v{Z}, v{Z}, v{Z+1}')
    A(f'v_mov_b32 v{Z+1}, v{Z}')
    A('s_nop 1')
    A(f'v_permlane16_swap_b32 v{Z}, v{Z+1}')
    A(f'v_add_f32 v{Z}, v{Z}, v{Z+1}')
    for rr in (8, 4, 2, 1):
        A('s_nop 1')
        A(f'v_add_f32_dpp v{Z}, v{Z}, v{Z} row_ror:{rr} {DPPM}')
    rbf(Z)
    A(f'v_mul_f32 v{Z}, {f32(-LOG2E)}, v{Z}')
    A(f'v_exp_f32 v{Z}, v{Z}')
    A('s_nop 0')
    A(f'v_add_f32 v{Z}, 1.0, v{Z}')
    A(f'v_rcp_f32 v{G0}, v{Z}')
    A('s_nop 0')
    rbf(G0)
    A(f'v_sub_f32 v{OMG}, 1.0, v{G0}')
    rbf(OMG)
    A(f'v_mov_b32 v{G0+1}, v{G0}')
    A(f'v_mov_b32 v{OMG+1}, v{OMG}')
    A('s_nop 1')
    A(f'v_permlane32_swap_b32 v{G0}, v{G0+1}')
    A(f'v_permlane32_swap_b32 v{OMG}, v{OMG+1}')
    g.lab('.Lqchk')
    for i in range(8):
        A(f's_waitcnt vmcnt({8-i})')
        A(f'v_perm_b32 v14, v{KV+4*i+1}, v{KV+4*i}, s46')
        A(f'v_perm_b32 v15, v{KV+4*i+3}, v{KV+4*i+2}, s47')
        for r in range(4):
            A(f'v_and_b32 v{KV+4*i+r}, 0xffffff00, v{KV+4*i+r}')
        A(f'v_xor_b32 v14, v14, v{TAG}')
        if i == 0:
            A('v_xor_b32 v36, v14, v15')
        else:
            A('v_xor_b32 v14, v14, v15')
            A('v_or_b32 v36, v36, v14')
        if i >= 2:
            h = i & 1
            A(f'v_pk_add_f32 {q(KV+4*h,2)}, {q(KV+4*h,2)}, {q(KV+4*i,2)}')
            A(f'v_pk_add_f32 {q(KV+4*h+2,2)}, {q(KV+4*h+2,2)}, {q(KV+4*i+2,2)}')
    A('v_cmp_ne_u32 vcc, 0, v36')
    A('s_cbranch_vccz .Lqok')
    A(f's_sleep {o.qsleep}')
    qloads()
    A(hload)
    A(f's_sub_u32 s{sBUD}, s{sBUD}, 64')
    A('s_cbranch_scc0 .Lqchk')
    A(f's_mov_b32 s{sBUD}, 0')
    A('s_waitcnt vmcnt(0)')
    g.lab('.Lqok')
    for h in range(2):
        A(f'v_cvt_pk_bf16_f32 v{T+2*h}, v{KV+4*h}, v{KV+4*h+1}')
        A(f'v_cvt_pk_bf16_f32 v{T+2*h+1}, v{KV+4*h+2}, v{KV+4*h+3}')
    A(f'ds_write_b64 v57, {q(T,2)}')
    A(f'ds_write_b64 v57, {q(T+2,2)} offset:512')
    A(hload)
    A('s_waitcnt lgkmcnt(0)')
    for j in range(8):
        A(f'ds_read_b128 {q(QF+4*j)}, v58 offset:{j*64}')
    g.stamp(2)

    ctl = len(wins) > 1 or o.ctlonly
    sCODE, sTAG, sFO = 23, 20, 21
    A(f's_mov_b32 s{sCODE}, {o.c0 << 16:#x}')
    if ctl:
        A(f'v_readfirstlane_b32 s{sTAG}, v{TAG}')
        if o.diag:
            A('v_mov_b32 v239, 0')
        A(f's_add_u32 s52, s{pWS}, {FLG:#x}')
        A(f's_addc_u32 s53, s{pWS+1}, 0')
        A('s_lshl_b32 s8, s2, 8')
        assert len(o.cps) <= 16
        cm = sum(1 << c for c in o.cps)
        for i in range(4):
            A(f's_mov_b32 s{36+i}, {(cm >> (32*i)) & 0xffffffff:#x}')
        if o.delta:
            cm = sum(1 << (c - o.delta) for c in o.cps)
            assert all(c - o.delta not in (64, 65) for c in o.cps)
            for i in range(4):
                A(f's_mov_b32 s{10+i}, {(cm >> (32*i)) & 0xffffffff:#x}')
        A(f's_lshl_b32 s{sFO}, s2, 8')
        A(f's_add_u32 s{sFO}, s{sFO}, {FLG:#x}')
    DST = [24, 25, 26, 27, 28, 29, 30, 31, 32, 33, 34, 35, 56, 57]
    def control(back):
        half = 0 if back == '.Lktile' else 1
        mask = sum(1 << (c - 64 * half) for c in o.cps if 64 * half <= c < 64 * half + 64)
        if o.delta:
            sk = g.new('sk')
            A(f's_bitcmp0_b64 s[{10+2*half}:{11+2*half}], s{sNEED}')
            A(f's_cbranch_scc1 {sk}')
            A(f'v_xor_b32 v14, 1, v{TAG}')
            A('s_mov_b64 exec, 1')
            A(f'buffer_store_dword v14, v59, {WS}, s{sFO} offen {o.stflags}')
            A('s_mov_b64 exec, -1')
            g.lab(sk)
        A(f's_bitcmp0_b64 s[{36+2*half}:{37+2*half}], s{sNEED}')
        A(f's_cbranch_scc1 {back}')
        for i in range(14):
            m = ((i >> 1) + 1) | ((i & 1) << 3) | (o.gm[i >> 1] << 4)
            A(f's_xor_b32 s{DST[i]}, s8, {m << 8:#x}')
            A(f's_load_dword s{DST[i]}, s[52:53], s{DST[i]}')
        A('s_mov_b64 exec, 1')
        A(f'buffer_store_dword v{TAG}, v59, {WS}, s{sFO} offen {o.stflags}')
        A('s_mov_b64 exec, -1')
        if half and o.prew:
            sk = g.new('sk')
            A(f's_cmp_lg_u32 s{sNEED}, {o.prew}')
            A(f's_cbranch_scc1 {sk}')
            A('v_lshlrev_b32 v14, 6, v1')
            A(f'buffer_load_dword v246, v14, {WS}, s44 offen {o.ldflags}')
            g.lab(sk)
        A(f's_add_u32 s{sFO}, s{sFO}, 0x10000')
        A('s_mov_b32 s15, 0')
        A('s_waitcnt lgkmcnt(0)')
        A('s_add_u32 s52, s52, 0x10000')
        A('s_addc_u32 s53, s53, 0')
        for i in range(14):
            A(f's_cmp_eq_u32 s{DST[i]}, s{sTAG}')
            A('s_addc_u32 s15, s15, 0')
        if o.delta:
            A('s_mov_b32 s9, 0')
            for i in range(14):
                A(f's_xor_b32 s{DST[i]}, s{DST[i]}, s{sTAG}')
                A(f's_cmp_gt_u32 s{DST[i]}, 1')
                A('s_addc_u32 s9, s9, 0')
            A(f's_cmp_ge_u32 s9, {o.farn}')
            A(f's_cselect_b32 s9, {o.farsub}, 0')
            A('s_sub_u32 s15, s15, s9')
            A('s_max_i32 s15, s15, 0')
        if o.diag:
            A(f's_lshr_b32 m0, s{sNEED}, 1')
            A('s_add_u32 s24, s15, 1')
            A('v_writelane_b32 v239, s24, m0')
        A(f's_mov_b32 s{sCODE}, 0')
        if half and o.thr2:
            sk = g.new('sk')
            A(f's_cmp_lt_u32 s{sNEED}, {o.late}')
            A(f's_cbranch_scc1 {sk}')
            for k, thr in enumerate(o.thr2[:len(wins)-1]):
                A(f's_cmp_ge_u32 s15, {thr}')
                A(f's_cselect_b32 s{sCODE}, {(k+1) << 16:#x}, s{sCODE}')
            A(f's_branch {back}')
            g.lab(sk)
        for k, thr in enumerate(o.thr[:len(wins)-1]):
            A(f's_cmp_ge_u32 s15, {thr}')
            A(f's_cselect_b32 s{sCODE}, {(k+1) << 16:#x}, s{sCODE}')
        A(f's_branch {back}')
    A(f's_mov_b32 s{sNEED}, 1')
    g.L.append('.p2align 6')
    g.lab('.Lktile')
    A(f'v_add_u32 v{KAC}, s{sSLOT}, v{KA0}')
    for i in range(1, 4):
        A(f'v_xor_b32 v{KAC+i}, {i*64}, v{KAC}')
    poll_landed()
    for i in range(16):
        j, hh = i >> 1, i & 1
        A(f'ds_read_b128 {q(KV+4*i)}, v{KAC+(j&3)} offset:{hh*8192+(j>>2)*256}')
    A(f's_add_u32 s{sNEED}, s{sNEED}, 1')
    A(f's_or_b32 s15, s{sNEED}, s{sCODE}')
    A('v_mov_b32 v14, s15')
    for i in range(16):
        j, hh = i >> 1, i & 1
        A(f's_waitcnt lgkmcnt({15-i})')
        if i == 15:
            A(f'ds_write_b32 v{CONA}, v14')
        A(f'v_mfma_f32_16x16x32_bf16 {q(S+4*hh)}, {q(KV+4*i)}, {q(QF+4*j)}, {"0" if j==0 else q(S+4*hh)}')
    A(f's_add_u32 s{sSLOT}, s{sSLOT}, {SLOT:#x}')
    A(f's_cmp_eq_u32 s{sSLOT}, {NSL*SLOT:#x}')
    A(f's_cselect_b32 s{sSLOT}, 0, s{sSLOT}')
    A('s_nop 4')
    for i in range(4):
        A(f'v_cvt_pk_bf16_f32 v{T+i}, v{S+2*i}, v{S+2*i+1}')
    A('s_mov_b64 exec, s[64:65]')
    A(f'ds_write_b128 v{SCA}, {q(T)}')
    A('s_mov_b64 exec, -1')
    A(f'v_max3_f32 v14, v{S}, v{S+1}, v{S+2}')
    A(f'v_max3_f32 v15, v{S+3}, v{S+4}, v{S+5}')
    A(f'v_max3_f32 v14, v14, v{S+6}, v{S+7}')
    A(f'v_max3_f32 v{M}, v14, v15, v{M}')
    A(f'v_add_u32 v{SCA}, 128, v{SCA}')
    if ctl:
        A(f's_cmp_gt_u32 s{sNEED}, 64')
        A('s_cbranch_scc1 .Lkdone')
        control('.Lktile')
        g.lab('.Lkdone')
    else:
        A(f's_cmp_le_u32 s{sNEED}, 64')
        A('s_cbranch_scc1 .Lktile')
    A(f'v_mov_b32 v15, v{M}')
    A(f'v_subrev_u32 v{SCA}, {64*128}, v{SCA}')
    A('s_nop 0')
    A(f'v_permlane16_swap_b32 v{M}, v15')
    A(f'v_max_f32 v{M}, v{M}, v15')
    A(f'v_mov_b32 v15, v{M}')
    A('s_nop 1')
    A(f'v_permlane32_swap_b32 v{M}, v15')
    A(f'v_max_f32 v{M}, v{M}, v15')
    rbf(M)
    A(f'v_mul_f32 v{NM}, s{sC}, v{M}')

    H = TL
    g.lab('.Lhchk')
    A('s_waitcnt vmcnt(0)')
    A(f'v_perm_b32 v14, v{HV+1}, v{HV}, s46')
    A(f'v_perm_b32 v15, v{HV+3}, v{HV+2}, s47')
    A('v_xor_b32 v14, v14, v15')
    A(f'v_cmp_ne_u32 vcc, v14, v{TAG}')
    A('s_cbranch_vccz .Lhok')
    A(hload)
    A(f's_sub_u32 s{sBUD}, s{sBUD}, 64')
    A('s_cbranch_scc0 .Lhchk')
    A(f's_mov_b32 s{sBUD}, 0')
    A('s_waitcnt vmcnt(0)')
    g.lab('.Lhok')
    for r in range(4):
        A(f'v_and_b32 v{H+r}, 0xffffff00, v{HV+r}')
    for rr in (4, 8):
        for r in range(4):
            A(f'v_add_f32_dpp v{H+r}, v{H+r}, v{H+r} row_ror:{rr} {DPPM}')
    for r in range(4):
        A(f'v_mov_b32 v{H+4+r}, v{H+r}')
    A('s_nop 0')
    for r in range(4):
        A(f'v_permlane16_swap_b32 v{H+r}, v{H+4+r}')
    for r in range(4):
        A(f'v_add_f32 v{H+r}, v{H+r}, v{H+4+r}')
    for r in range(4):
        rbf(H + r)
    for r in range(4):
        A(f'v_mul_f32 v{H+4+r}, {f32(-LOG2E)}, v{H+r}')
    for r in range(4):
        A(f'v_exp_f32 v{H+4+r}, v{H+4+r}')
    A('s_nop 0')
    for r in range(4):
        A(f'v_add_f32 v{H+4+r}, 1.0, v{H+4+r}')
    for r in range(4):
        A(f'v_rcp_f32 v{H+4+r}, v{H+4+r}')
    A('s_nop 0')
    for r in range(4):
        A(f'v_mul_f32 v{H+r}, v{H+r}, v{H+4+r}')
    A(f'v_cvt_pk_bf16_f32 v{H+4}, v{H}, v{H+1}')
    A(f'v_cvt_pk_bf16_f32 v{H+5}, v{H+2}, v{H+3}')
    A('v_and_b32 v14, 1, v2')
    A('v_and_b32 v15, 1, v3')
    A('v_lshlrev_b32 v14, 3, v14')
    A('v_lshl_add_u32 v57, v15, 2, v14')
    A(f'ds_bpermute_b32 v{H+6}, v57, v{H+4}')
    A(f'ds_bpermute_b32 v{H+8}, v57, v{H+5}')
    A('s_mov_b32 s48, 0x00030003')
    A('s_mov_b32 s49, 0x00300030')
    A('s_mov_b32 s50, 0x03000300')
    A('s_mov_b32 s51, 0x30003000')
    A('v_lshl_add_u32 v14, v15, 2, v4')
    A('v_mul_u32_u24 v60, 896, v14')
    A('v_lshrrev_b32 v14, 1, v3')
    A('v_lshl_add_u32 v60, v14, 5, v60')
    A('v_lshl_add_u32 v60, v5, 3, v60')
    A('v_mul_u32_u24 v63, 3584, v15')
    A('v_add_u32 v63, v63, v60')
    A(f'v_add_u32 v63, {WOS}, v63')
    A(f'v_add_u32 v60, {W2S}, v60')
    A('s_waitcnt lgkmcnt(0)')
    A(f'v_cndmask_b32 v{HA}, 0, v{H+6}, s[48:49]')
    A(f'v_cndmask_b32 v{HA+1}, 0, v{H+8}, s[48:49]')
    A(f'v_cndmask_b32 v{HA+2}, 0, v{H+6}, s[50:51]')
    A(f'v_cndmask_b32 v{HA+3}, 0, v{H+8}, s[50:51]')
    RG = TL
    HG = TL + 16
    for i in range(4):
        A(f'v_mov_b32 v{RG+4*i+3}, v{TAG}')
    A('v_lshrrev_b32 v57, 2, v1')
    A(f'v_mul_u32_u24 v61, {YROW}, v57')
    A('v_lshl_add_u32 v61, v5, 4, v61')
    A('v_lshrrev_b32 v58, 5, v1')
    A('v_lshl_add_u32 v58, v58, 2, v4')
    A('v_lshlrev_b32 v58, 12, v58')
    A('v_lshl_add_u32 v58, v15, 6, v58')
    A('v_lshl_add_u32 v58, v5, 4, v58')
    A(f'v_add_u32 v57, {XS}, v56')
    A(f'v_mov_b64 {q(T,2)}, {q(G0,2)}')
    A(f'v_mov_b64 {q(T+2,2)}, {q(OMG,2)}')
    A(f'v_mov_b32 v{P8}, v{TAG}')
    A(f'v_mov_b32 v{P8+1}, v58')
    A(f'v_mov_b32 v{P8+2}, v60')
    A(f'v_mov_b32 v{P8+3}, v63')
    A(f'ds_write_b128 v57, {q(HA)}')
    A(f'ds_write_b128 v57, {q(T)} offset:1024')
    A(f'ds_write_b128 v57, {q(P8)} offset:2048')
    mk_jv(44, 46)
    A('s_lshl_b32 s44, s44, 12')
    A(f's_add_u32 s44, s44, {REC:#x}')
    if o.rpair:
        A('s_andn2_b32 s47, s2, 15')
        A('s_and_b32 s43, s2, 7')
        A('s_lshl_b32 s43, s43, 1')
        A('s_or_b32 s47, s47, s43')
        A('s_bfe_u32 s43, s2, 0x10003')
        A('s_or_b32 s47, s47, s43')
        A('s_lshl_b32 s47, s47, 3')
    else:
        A('s_lshl_b32 s47, s2, 3')
    A('s_lshr_b32 s43, s2, 4')
    A('s_mul_i32 s43, s43, 3')
    A('v_lshrrev_b32 v14, 1, v3')
    A('v_lshl_add_u32 v14, v15, 1, v14')
    A('v_add_u32 v14, s43, v14')
    A('v_and_b32 v62, 1, v14')
    A('v_mul_u32_u24 v62, 896, v62')
    A('v_cmp_lt_u32 vcc, 13, v14')
    A('v_lshrrev_b32 v14, 1, v14')
    A('v_lshl_add_u32 v62, v14, 7, v62')
    A('v_lshl_add_u32 v62, v5, 1, v62')
    A('v_mov_b32 v14, 0x10000')
    A('v_cndmask_b32 v62, v62, v14, vcc')
    A('s_and_b32 s46, s47, 0x78')
    A(f's_add_u32 s43, s44, {RECB-REC:#x}')

    g.L.append('.p2align 6')
    g.lab('.Lvtile')
    A(f'ds_read_b128 {q(T)}, v{SCA}')
    A(f'v_add_u32 v{SCA}, 128, v{SCA}')
    A(f'v_add_u32 v{VAC}, s{sSLOT}, v{VA0}')
    for i in range(1, 8):
        A(f'v_xor_b32 v{VAC+i}, {i*32}, v{VAC}')
    A('s_waitcnt lgkmcnt(0)')
    for i in range(4):
        A(f'v_lshlrev_b32 v{S+2*i}, 16, v{T+i}')
        A(f'v_and_b32 v{S+2*i+1}, 0xffff0000, v{T+i}')
    for i in range(8):
        A(f'v_fma_f32 v{P8+i}, v{S+i}, s{sC}, -v{NM}')
    for i in range(8):
        A(f'v_exp_f32 v{P8+i}, v{P8+i}')
    A('s_nop 0')
    for i in range(4):
        A(f'v_cvt_pk_bf16_f32 v{T+i}, v{P8+2*i}, v{P8+2*i+1}')
    A(f'v_add_f32 v{LS}, v{LS}, v{P8}')
    A(f'v_add_f32 v{P8+1}, v{P8+1}, v{P8+2}')
    A(f'v_add_f32 v{P8+3}, v{P8+3}, v{P8+4}')
    A(f'v_add_f32 v{P8+5}, v{P8+5}, v{P8+6}')
    A(f'v_add_f32 v{LS}, v{LS}, v{P8+7}')
    A(f'v_add_f32 v{P8+1}, v{P8+1}, v{P8+3}')
    A(f'v_add_f32 v{LS}, v{LS}, v{P8+5}')
    A(f'v_add_f32 v{LS}, v{LS}, v{P8+1}')
    for v in range(8):
        A(f's_mov_b64 exec, s[{64+2*v}:{65+2*v}]')
        A(f'v_mov_b64 {q(PV+4*v,2)}, {q(T,2)}')
        A(f'v_mov_b64 {q(PV+4*v+2,2)}, {q(T+2,2)}')
    A('s_mov_b64 exec, -1')
    poll_landed()
    order = [(i & 1) * 8 + (i >> 1) for i in range(16)]
    def vread(i):
        m = order[i]
        for kh in range(2):
            A(f'ds_read_b64_tr_b16 {q(KV+4*i+2*kh,2)}, v{VAC+(m&7)} offset:{kh*8192+(m>>3)*256}')
    PRE = 7
    for i in range(PRE):
        vread(i)
    A(f's_add_u32 s{sNEED}, s{sNEED}, 1')
    A(f's_or_b32 s15, s{sNEED}, s{sCODE}')
    A('v_mov_b32 v14, s15')
    for i in range(16):
        issued = min(16, i + PRE)
        A(f's_waitcnt lgkmcnt({2*(issued-i-1)})')
        m = order[i]
        a = m >> 3
        if i == 15:
            A(f'ds_write_b32 v{CONA}, v14')
        A(f'v_mfma_f32_16x16x32_bf16 {q(O+4*a)}, {q(PV+4*(m&7))}, {q(KV+4*i)}, {q(O+4*a)}')
        if i + PRE < 16:
            vread(i + PRE)
    A(f's_add_u32 s{sSLOT}, s{sSLOT}, {SLOT:#x}')
    A(f's_cmp_eq_u32 s{sSLOT}, {NSL*SLOT:#x}')
    A(f's_cselect_b32 s{sSLOT}, 0, s{sSLOT}')
    if ctl:
        A(f's_cmp_gt_u32 s{sNEED}, {max(o.cps)}')
        A('s_cbranch_scc1 .Lvlast')
        control('.Lvtile')
        g.lab('.Lvlast')
    A(f's_cmp_le_u32 s{sNEED}, 128')
    A('s_cbranch_scc1 .Lvtile')

    g.stamp(3)
    A(f'v_mov_b32 v15, v{LS}')
    A('s_mov_b32 vcc_lo, 0xf0f0f0f0')
    A('s_mov_b32 vcc_hi, 0xf0f0f0f0')
    A(f'v_permlane16_swap_b32 v{LS}, v15')
    A(f'v_add_f32 v{LS}, v{LS}, v15')
    A(f'v_mov_b32 v15, v{LS}')
    A(f'v_mov_b64 {q(RG,2)}, {q(O,2)}')
    A(f'v_mov_b64 {q(RG+8,2)}, {q(O+2,2)}')
    A(f'v_permlane32_swap_b32 v{LS}, v15')
    A(f'v_add_f32 v{LS}, v{LS}, v15')
    A(f'v_cndmask_b32 v15, v{NM}, v{LS}, vcc')
    A(f'v_mov_b64 {q(RG+4,2)}, {q(O+4,2)}')
    A(f'v_mov_b64 {q(RG+12,2)}, {q(O+6,2)}')
    for h in range(2):
        for a in range(2):
            r = RG + 8*h + 4*a
            A(f'v_mov_b32_dpp v{r+2}, v15 quad_perm:[{2*h},{2*h},{2*h},{2*h}] {DPPM}')
            A(f'buffer_store_dwordx4 {q(r)}, v56, {WS}, s44 offen offset:{h*2048+a*1024} {o.recflags}')
    for i in range(4):
        A(f'buffer_store_dwordx4 {q(RG+4*i)}, v56, {WS}, s43 offen offset:{i*1024} sc1')
    A(f's_cmp_ge_u32 s2, {NRED}')
    A('s_cbranch_scc1 .Lfin')
    for i in range(16):
        A(f'v_not_b32 v{KV+4*i+3}, v{TAG}')
    A('s_lshl_b32 s64, s47, 3')
    A(f's_add_u32 s64, s64, {YB:#x}')
    for i in range(1, 16):
        A(f's_add_u32 s{64+i}, s64, {i*16*YROW:#x}')
    sen = None
    if o.sen:
        A('s_and_b32 s4, s2, 7')
        A('s_lshl_b32 s4, 1, s4')
        A('s_not_b32 s4, s4')
        A('v_mov_b32 v14, 0')
        if o.sen > 1:
            A('s_waitcnt vmcnt(0)')
        sen = (LNDA, YDONE, 5, 4)
    else:
        A(f's_mov_b32 s{sNEED}, {YDONE:#x}')
        poll_landed()
    mk = [8, 10, 12, 14, 20, 22, 24, 26, 28, 30, 32, 34, 36, 38, 40, 42]
    g.apoll('h2', [f'buffer_load_dwordx4 {q(KV+4*i)}, v61, {WS}, s{64+i} offen {o.ldflags}' for i in range(16)],
            [KV+4*i+3 for i in range(16)], mk, TAG, sBUD, o.h2sleep, sen=sen, thro=o.h2thr)
    for k in range(4):
        A(f'v_pk_add_f32 v[{36+2*k}:{37+2*k}], {q(KV+8*k,2)}, {q(KV+8*k+4,2)}')
    for k in range(4):
        A(f'v_pk_add_f32 v[{44+2*k}:{45+2*k}], {q(KV+32+8*k,2)}, {q(KV+32+8*k+4,2)}')
    for k in range(4):
        A(f'v_pk_add_f32 v[{36+2*k}:{37+2*k}], v[{36+2*k}:{37+2*k}], v[{44+2*k}:{45+2*k}]')
    for k in range(8):
        A(f'v_add_f32 v{16+k}, v{KV+8*k+2}, v{KV+8*k+6}')
    A('v_pk_add_f32 v[36:37], v[36:37], v[38:39]')
    A('v_pk_add_f32 v[40:41], v[40:41], v[42:43]')
    A('v_pk_add_f32 v[16:17], v[16:17], v[18:19]')
    A('v_pk_add_f32 v[20:21], v[20:21], v[22:23]')
    A('v_pk_add_f32 v[36:37], v[36:37], v[40:41]')
    A('v_pk_add_f32 v[16:17], v[16:17], v[20:21]')
    A('s_nop 0')
    A('v_permlane32_swap_b32 v36, v37')
    A('v_permlane32_swap_b32 v16, v17')
    A('v_add_f32 v36, v36, v37')
    A('v_add_f32 v16, v16, v17')
    A('v_mov_b32 v17, v16')
    A('s_nop 1')
    A('v_permlane32_swap_b32 v16, v17')
    A('v_add_f32 v16, v16, v17')
    A('s_nop 1')
    A('v_permlane16_swap_b32 v36, v16')
    A('v_add_f32 v36, v36, v16')
    for rr in (4, 8):
        A('s_nop 1')
        A(f'v_add_f32_dpp v36, v36, v36 row_ror:{rr} {DPPM}')
    A('v_cvt_pk_bf16_f32 v36, v36, v36')
    A('s_mov_b32 exec_lo, 0x000f000f')
    A('s_mov_b32 exec_hi, 0xf')
    A(f'buffer_store_short v36, v62, s[{sOUT}:{sOUT+3}], s46 offen')
    A('s_cmp_lg_u32 s2, 0')
    A('s_cbranch_scc1 .Lfin')
    A('s_mov_b64 exec, 1')
    A(f'buffer_store_dword v{TAG}, v59, {WS}, 0 offen')
    g.lab('.Lfin')
    if o.diag:
        g.stamp(6)
        A('s_mov_b64 exec, 1')
        A('s_lshl_b32 s4, s2, 7')
        A(f's_add_u32 s4, s4, {STAMP:#x}')
        for k in (0, 1, 2, 3, 6):
            A(f'v_mov_b32 v14, s{86+2*k}')
            A(f'v_mov_b32 v15, s{87+2*k}')
            A(f'buffer_store_dwordx2 v[14:15], v59, {WS}, s4 offen offset:{8*k}')
            A('s_nop 1')
        A('v_mov_b32 v14, s101')
        A('v_mov_b32 v15, s87')
        A(f'buffer_store_dwordx2 v[14:15], v59, {WS}, s4 offen offset:56')
        if ctl:
            A('s_mov_b64 exec, -1')
            A('v_lshlrev_b32 v14, 2, v1')
            A('s_lshl_b32 s4, s2, 8')
            A(f's_add_u32 s4, s4, {STAMP+0x20000:#x}')
            A(f'buffer_store_dword v239, v14, {WS}, s4 offen')
    g.lab('.Lexit')
    A('s_endpgm')

    ref = open('cdna_kernels/' + NAME + '.s.ref').read().split('\n')
    head = [l for l in ref if l.startswith(';') and '@launch' not in l and 'Override launch' not in l and 'grid=ceil' not in l]
    txt = '\n'.join(head) + '\n'
    txt += f'; @launch grid=(256,1,1) block=(128,1,1) lds={LDS_BYTES}\n'
    txt += DOC
    txt += '.amdgcn_target "amdgcn-amd-amdhsa--gfx950"\n.text\n'
    txt += '\n'.join(g.L) + '\n'
    txt += f'''.section .rodata,"a"
.p2align 6
.amdhsa_kernel {K}
  .amdhsa_next_free_vgpr 256
  .amdhsa_next_free_sgpr 102
  .amdhsa_accum_offset 256
  .amdhsa_group_segment_fixed_size 0
  .amdhsa_kernarg_size 96
  .amdhsa_user_sgpr_count 2
  .amdhsa_user_sgpr_kernarg_segment_ptr 1
  .amdhsa_system_sgpr_workgroup_id_x 1
  .amdhsa_float_denorm_mode_32 3
.end_amdhsa_kernel
'''
    return txt


def parser():
    p = argparse.ArgumentParser()
    il = lambda x: [int(v) for v in x.split(',') if v]
    p.add_argument('-o', default='cdna_kernels/' + NAME + '.s')
    p.add_argument('--window', type=int, default=18)
    p.add_argument('--gs', type=int, default=2)
    p.add_argument('--unit', type=int, default=8)
    p.add_argument('--idxsh', type=int, default=3)
    p.add_argument('--perm', type=il, default=[0, 2, 1, 3])
    p.add_argument('--qwait', type=int, default=3)
    p.add_argument('--cfirst', type=int, default=15)
    p.add_argument('--wk', type=il, default=[])
    p.add_argument('--w1', type=il, default=[28,28,28,28,28,28,28,24])
    p.add_argument('--icpf', type=int, default=16)
    p.add_argument('--wins', type=il, default=[19,20,21,22,24])
    p.add_argument('--thr', type=il, default=[3,6,10,12,13])
    p.add_argument('--c0', type=int, default=2)
    p.add_argument('--wd', type=int, default=21)
    p.add_argument('--ctlonly', action='store_true')
    p.add_argument('--cps', type=il, default=[28,52,76,92,108,116])
    p.add_argument('--nb', type=int, default=2)
    p.add_argument('--loc', type=int, default=1)
    p.add_argument('--recflags', default='')
    p.add_argument('--prew', type=int, default=108)
    p.add_argument('--early', type=int, default=0)
    p.add_argument('--qloc', type=int, default=0)
    p.add_argument('--lay', type=int, default=1)
    p.add_argument('--h2thr', type=int, default=0)
    p.add_argument('--h1thro', type=int, default=0)
    p.add_argument('--sen', type=int, default=0)
    p.add_argument('--senw', type=int, default=0)
    p.add_argument('--yw', type=int, default=4)
    p.add_argument('--dual', type=int, default=1)
    p.add_argument('--altp', type=int, default=40)
    p.add_argument('--delta', type=int, default=0)
    p.add_argument('--farn', type=int, default=2)
    p.add_argument('--farsub', type=int, default=4)
    p.add_argument('--gm', type=il, default=[1,2,4,8,3,12,15])
    p.add_argument('--thr2', type=il, default=[])
    p.add_argument('--late', type=int, default=100)
    p.add_argument('--rx', type=int, default=1)
    p.add_argument('--rpair', type=int, default=1)
    p.add_argument('--nobr', action='store_true')
    p.add_argument('--pairskip', type=int, default=1)
    p.add_argument('--diag', action='store_true')
    p.add_argument('--prog', action='store_true')
    p.add_argument('--kflags', default='nt')
    p.add_argument('--vflags', default='nt')
    p.add_argument('--wqflags', default='nt')
    p.add_argument('--stflags', default='sc1')
    p.add_argument('--ldflags', default='sc1')
    p.add_argument('--lsleep', type=int, default=1)
    p.add_argument('--qsleep', type=int, default=6)
    p.add_argument('--h1sleep', type=int, default=0)
    p.add_argument('--h1thr', type=int, default=16)
    p.add_argument('--h1slow', type=int, default=0)
    p.add_argument('--h2sleep0', type=int, default=-1)
    p.add_argument('--h2sleep', type=int, default=0)
    return p


if __name__ == '__main__':
    o = parser().parse_args()
    open(o.o, 'w').write(gen(o))
```
